```python
import torch

def _softmax(x, axis=-1):
    return torch.softmax(x, dim=axis)
def _gelu(x):
    return torch.nn.functional.gelu(x, approximate="tanh")
def _silu(x):
    return torch.nn.functional.silu(x)
def _sigmoid(x):
    return torch.sigmoid(x)
def _layernorm(x, axis=-1, eps=1e-5):
    m = x.mean(dim=axis, keepdim=True)
    v = x.var(dim=axis, keepdim=True, unbiased=False)
    return (x - m) / torch.sqrt(v + eps)
def _scatter_add(tgt, idx, src, axis=0):
    return tgt.clone().index_add_(axis, idx, src)
def _segment_sum(src, seg, n):
    out = torch.zeros((n,) + src.shape[1:], dtype=src.dtype)
    return out.index_add_(0, seg, src)
def _pad(x, pw):
    flat = tuple(v for pair in reversed(pw) for v in pair)
    return torch.nn.functional.pad(x, flat)

kernel_name = 'sequential_preLN__sliding_block_cached__dense_activation_gelu__decode'

def setup_inputs():

    _w = (lambda a: (lambda t: t.to(torch.bfloat16) if t.is_floating_point() else t)(torch.as_tensor(a)))
    def _A_setup():
        B, Sq, D = 1, 1, 512
        Hq, Hkv, Sk, Dh = 32, 8, 65536, 128
        assert Hq % Hkv == 0, (Hq, Hkv)
        return {
            "x": _w((lambda *s: torch.randn(*s, dtype=torch.bfloat16) * 0.1)(B, Sq, D)),
            "k_cache": _w((lambda *s: torch.randn(*s, dtype=torch.bfloat16) * 1.6)(B, Hkv, Sk, Dh)),
            "v_cache": _w((lambda *s: torch.randn(*s, dtype=torch.bfloat16) * 1.6)(B, Hkv, Sk, Dh)),
            "wq": _w((lambda *s: torch.randn(*s, dtype=torch.bfloat16) * 1.6)(D, Hq * Dh) * (D ** -0.5)),
            "wo": _w((lambda *s: torch.randn(*s, dtype=torch.bfloat16) * 1.6)(Hq * Dh, D) * ((Hq * Dh) ** -0.5)),
        }
    _A_in = _A_setup()

    def _B_setup():
        B, S, D, F = 1, 1, 512, 1792
        return {
            "x": _w((lambda *s: torch.randn(*s, dtype=torch.bfloat16) * 0.1)(B, S, D)),
            "w1": _w((lambda *s: torch.randn(*s, dtype=torch.bfloat16) * 3.2)(D, F) * (D ** -0.5)),
            "b1": _w((lambda *s: torch.randn(*s, dtype=torch.bfloat16) * 3.2)(F) * 0.01),
            "w2": _w((lambda *s: torch.randn(*s, dtype=torch.bfloat16) * 3.2)(F, D) * (F ** -0.5)),
            "b2": _w((lambda *s: torch.randn(*s, dtype=torch.bfloat16) * 3.2)(D) * 0.01),
        }
    _B_in = _B_setup()

    return {
        "A_x": _A_in["x"],
        "A_k_cache": _A_in["k_cache"],
        "A_v_cache": _A_in["v_cache"],
        "A_wq": _A_in["wq"],
        "A_wo": _A_in["wo"],
        "B_x": _B_in["x"],
        "B_w1": _B_in["w1"],
        "B_b1": _B_in["b1"],
        "B_w2": _B_in["w2"],
        "B_b2": _B_in["b2"],
    }

def reference(A_x, A_k_cache, A_v_cache, A_wq, A_wo, B_x, B_w1, B_b1, B_w2, B_b2):
    def _A_ref(x, k_cache, v_cache, wq, wo):
        B, Sq, D = x.shape
        Hq, Dh = 32, 128
        Hkv, Sk = k_cache.shape[1], k_cache.shape[2]
        W = min(4096, max(256, Sk // 4))
        rep = Hq // Hkv
        q = (lambda x, *d: x.permute(*d))((x @ wq).reshape(B, Sq, Hq, Dh), 0, 2, 1, 3)
        k = (lambda x, n, axis: torch.repeat_interleave(x, n, dim=axis))(k_cache[:, :, Sk - W:, :], rep, axis=1)
        v = (lambda x, n, axis: torch.repeat_interleave(x, n, dim=axis))(v_cache[:, :, Sk - W:, :], rep, axis=1)
        scores = torch.einsum("bhqd,bhkd->bhqk", q, k) * (Dh ** -0.5)
        p = _softmax(scores, axis=-1)
        o = torch.einsum("bhqk,bhkd->bhqd", p, v)
        return (lambda x, *d: x.permute(*d))(o, 0, 2, 1, 3).reshape(B, Sq, Hq * Dh) @ wo

    def _B_ref(x, w1, b1, w2, b2):
        h = torch.einsum("bsd,df->bsf", x, w1) + b1
        h = _gelu(h)
        return torch.einsum("bsf,fd->bsd", h, w2) + b2

    x = A_x
    h = x + _A_ref(_layernorm(x, axis=-1), A_k_cache, A_v_cache, A_wq, A_wo)
    h2 = h + _B_ref(_layernorm(h, axis=-1), B_w1, B_b1, B_w2, B_b2)
    return h2
```

```python
import sys
NAME = "sequential_preLN__sliding_block_cached__dense_activation_gelu__decode"
out = []
def E(s): out.append("    " + s)
def L(s): out.append(s + ":")

QP  = 0
APO = 65536
APM = APO + 524288
OP  = APM + 8192
HH  = OP + 65536
F1  = HH + 2048
F2  = F1 + 8*1792*4
WS_END = F2 + 28*512*4
WSN = 1 << 20
assert WS_END <= WSN

LOG2E = 0x3fb8aa3b
SCALE = 0x3db504f3
EPS = 0x3727c5ac
INV512 = 0x3b000000

def srd(d, b, n):
    E(f"s_mov_b32 s{d}, s{b}")
    E(f"s_and_b32 s{d+1}, s{b+1}, 0xffff")
    E(f"s_mov_b32 s{d+2}, {n}")
    E(f"s_mov_b32 s{d+3}, 0x00020000")

def rbf(v, src=None):
    src = v if src is None else src
    E(f"v_cvt_pk_bf16_f32 v{v}, v{src}, v{src}")
    E(f"v_lshlrev_b32 v{v}, 16, v{v}")

def wave_reduce(op, v, st=40):
    for mode in ["quad_perm:[1,0,3,2]", "quad_perm:[2,3,0,1]", "row_half_mirror", "row_mirror"]:
        E("s_nop 1")
        E(f"{op}_dpp v{v}, v{v}, v{v} {mode} row_mask:0xf bank_mask:0xf")
    E("s_nop 1")
    for i in range(4):
        E(f"v_readlane_b32 s{st+i}, v{v}, {16*i}")
    E("s_nop 1")
    E(f"v_mov_b32 v{v}, s{st}")
    for i in range(1, 4):
        E(f"{op} v{v}, s{st+i}, v{v}")

def unpack8(dst, src):
    for i in range(4):
        E(f"v_lshlrev_b32 v{dst+2*i}, 16, v{src+i}")
        E(f"v_and_b32 v{dst+2*i+1}, 0xffff0000, v{src+i}")

def fdiv(dst, num, den, rcp, t):
    E(f"v_mul_f32 v{dst}, v{num}, v{rcp}")
    E(f"v_fma_f32 v{t}, -v{dst}, v{den}, v{num}")
    E(f"v_fma_f32 v{dst}, v{t}, v{rcp}, v{dst}")

def header(name):
    out.append(f".globl {name}")
    out.append(".p2align 8")
    out.append(f".type {name},@function")
    L(name)

def gemv(nld, wreg, a_off, red_off, endlabel, store):
    E("v_lshlrev_b32 v96, 2, v1")
    for j in range(nld):
        E(f"ds_read_b32 v{100+j}, v96 offset:{a_off + 128*j}")
    for k in range(8):
        E(f"v_mov_b32 v{80+k}, 0")
    E("s_waitcnt vmcnt(0) lgkmcnt(0)")
    for j in range(nld):
        unpack8(88, wreg + 4*j)
        for k in range(8):
            E(f"v_fmac_f32 v{80+k}, v{100+j}, v{88+k}")
    E("v_lshlrev_b32 v96, 8, v1")
    E("v_lshl_add_u32 v96, v2, 5, v96")
    E(f"ds_write_b128 v96, v[80:83] offset:{red_off}")
    E(f"ds_write_b128 v96, v[84:87] offset:{red_off+16}")
    E("s_waitcnt lgkmcnt(0)")
    E("s_barrier")
    E("v_readfirstlane_b32 s30, v0")
    E("s_nop 3")
    E("s_cmp_ge_u32 s30, 64")
    E(f"s_cbranch_scc1 {endlabel}")
    E("v_lshlrev_b32 v96, 2, v0")
    for r in range(32):
        E(f"ds_read_b32 v{104+r}, v96 offset:{red_off + 256*r}")
    E("s_waitcnt lgkmcnt(0)")
    for r in range(1, 32):
        E(f"v_add_f32 v104, v104, v{104+r}")
    store(104, 96)

def layernorm8(xr, tmp):
    t = tmp
    E(f"v_add_f32 v{t}, v{xr}, v{xr+1}")
    for i in range(2, 8):
        E(f"v_add_f32 v{t}, v{t}, v{xr+i}")
    wave_reduce("v_add_f32", t)
    E(f"v_mul_f32 v{t}, {INV512}, v{t}")
    E(f"v_mov_b32 v{t+1}, 0")
    for i in range(8):
        E(f"v_sub_f32 v{t+2}, v{xr+i}, v{t}")
        E(f"v_fmac_f32 v{t+1}, v{t+2}, v{t+2}")
    wave_reduce("v_add_f32", t+1)
    E(f"v_mul_f32 v{t+1}, {INV512}, v{t+1}")
    rbf(t); rbf(t+1)
    E(f"v_add_f32 v{t+1}, {EPS}, v{t+1}")
    rbf(t+1)
    E(f"v_sqrt_f32 v{t+1}, v{t+1}")
    E("s_nop 0")
    rbf(t+1)
    E(f"v_rcp_f32 v{t+2}, v{t+1}")
    E("s_nop 0")
    for i in range(8):
        E(f"v_sub_f32 v{t+3}, v{xr+i}, v{t}")
        rbf(t+3)
        fdiv(xr+i, t+3, t+1, t+2, t+4)
        rbf(xr+i)

kernels = []

def k1():
    n = "k1_qproj_kernel"; kernels.append((n, 256, 10240))
    header(n)
    E("s_cmp_ge_u32 s2, 256"); E("s_cbranch_scc1 K1_END")
    E("s_load_dwordx2 s[4:5], s[0:1], 0")
    E("s_load_dwordx2 s[6:7], s[0:1], 24")
    E("s_load_dwordx2 s[8:9], s[0:1], 96")
    E("s_waitcnt lgkmcnt(0)")
    srd(12, 4, 1024); srd(16, 6, 512*4096*2); srd(20, 8, WSN)
    E("v_and_b32 v4, 63, v0"); E("v_lshlrev_b32 v4, 4, v4")
    E("buffer_load_dwordx4 v[28:31], v4, s[12:15], 0 offen")
    E("v_lshrrev_b32 v1, 3, v0"); E("v_and_b32 v2, 7, v0")
    E("v_lshlrev_b32 v3, 13, v1"); E("v_lshl_add_u32 v3, v2, 4, v3")
    E("s_and_b32 s24, s2, 3"); E("s_lshl_b32 s24, s24, 20")
    E("s_lshr_b32 s25, s2, 2"); E("s_lshl_b32 s25, s25, 7"); E("s_add_u32 s24, s24, s25")
    for j in range(1, 4):
        E(f"s_add_u32 s{24+j}, s24, {j*262144}")
    for j in range(4):
        E(f"buffer_load_dwordx4 v[{8+4*j}:{11+4*j}], v3, s[16:19], s{24+j} offen")
    E("s_waitcnt vmcnt(4)")
    unpack8(32, 28)
    layernorm8(32, 44)
    E("v_lshlrev_b32 v4, 1, v4")
    E("ds_write_b128 v4, v[32:35]")
    E("ds_write_b128 v4, v[36:39] offset:16")
    E("s_waitcnt lgkmcnt(0)")
    E("s_and_b32 s28, s2, 3"); E("s_lshl_b32 s28, s28, 7")
    E("v_add_u32 v5, s28, v1")
    E("v_lshlrev_b32 v96, 2, v5")
    for j in range(4):
        E(f"ds_read_b32 v{100+j}, v96 offset:{128*j}")
    for k in range(8):
        E(f"v_mov_b32 v{80+k}, 0")
    E("s_waitcnt vmcnt(0) lgkmcnt(0)")
    for j in range(4):
        unpack8(88, 8+4*j)
        for k in range(8):
            E(f"v_fmac_f32 v{80+k}, v{100+j}, v{88+k}")
    red = 2048
    E("v_lshlrev_b32 v96, 8, v1"); E("v_lshl_add_u32 v96, v2, 5, v96")
    E(f"ds_write_b128 v96, v[80:83] offset:{red}")
    E(f"ds_write_b128 v96, v[84:87] offset:{red+16}")
    E("s_waitcnt lgkmcnt(0)"); E("s_barrier")
    E("v_readfirstlane_b32 s30, v0"); E("s_nop 3")
    E("s_cmp_ge_u32 s30, 64"); E("s_cbranch_scc1 K1_END")
    E("v_lshlrev_b32 v96, 2, v0")
    for r in range(32):
        E(f"ds_read_b32 v{104+r}, v96 offset:{red + 256*r}")
    E("s_waitcnt lgkmcnt(0)")
    for r in range(1, 32):
        E(f"v_add_f32 v104, v104, v{104+r}")
    E("s_and_b32 s28, s2, 3"); E("s_lshl_b32 s28, s28, 14")
    E("s_lshr_b32 s29, s2, 2"); E("s_lshl_b32 s29, s29, 8"); E("s_add_u32 s28, s28, s29")
    E(f"s_add_u32 s28, s28, {QP}")
    E("buffer_store_dword v104, v96, s[20:23], s28 offen")
    L("K1_END"); E("s_endpgm")

def k2():
    n = "k2_attn_kernel"; kernels.append((n, 256, 4096 + 32768 + 512))
    header(n)
    E("s_cmp_ge_u32 s2, 256"); E("s_cbranch_scc1 K2_END")
    E("s_load_dwordx2 s[4:5], s[0:1], 8")
    E("s_load_dwordx2 s[6:7], s[0:1], 16")
    E("s_load_dwordx2 s[8:9], s[0:1], 96")
    E("s_waitcnt lgkmcnt(0)")
    srd(12, 4, 0x8000000); srd(16, 6, 0x8000000); srd(20, 8, WSN)
    E("s_lshr_b32 s24, s2, 5")
    E("s_and_b32 s25, s2, 31")
    E("v_lshlrev_b32 v3, 3, v0")
    E("s_lshl_b32 s26, s24, 11")
    for p in range(4):
        E(f"s_add_u32 s{32+p}, s26, {QP + p*16384}")
    for p in range(4):
        E(f"buffer_load_dwordx2 v[{100+2*p}:{101+2*p}], v3, s[20:23], s{32+p} offen")
    E("s_lshl_b32 s27, s24, 24")
    E("s_lshl_b32 s28, s25, 15")
    E("s_add_u32 s27, s27, s28")
    E(f"s_add_u32 s27, s27, {61440*256}")
    E("v_lshrrev_b32 v4, 6, v0")
    E("v_and_b32 v5, 63, v0")
    E("v_and_b32 v6, 15, v5")
    E("v_lshrrev_b32 v7, 4, v5")
    E("v_lshlrev_b32 v8, 5, v4"); E("v_add_u32 v8, v8, v6"); E("v_lshlrev_b32 v8, 8, v8")
    E("v_lshl_add_u32 v8, v7, 4, v8")
    E("v_add_u32 v9, 4096, v8")
    for t in range(2):
        for b in range(4):
            r = 16 + 16*t + 4*b
            E(f"buffer_load_dwordx4 v[{r}:{r+3}], v{8+t}, s[12:15], s27 offen offset:{64*b}")
    E("v_lshlrev_b32 v10, 5, v4"); E("v_add_u32 v10, v10, v7"); E("v_lshlrev_b32 v10, 8, v10")
    E("v_lshl_add_u32 v10, v6, 4, v10")
    E("v_add_u32 v11, 4096, v10")
    for i in range(8):
        r = 48 + 4*i
        E(f"buffer_load_dwordx4 v[{r}:{r+3}], v{10 + i//4}, s[16:19], s27 offen offset:{1024*(i%4)}")
    E("s_waitcnt vmcnt(16)")
    E("v_add_f32 v100, v100, v102"); E("v_add_f32 v104, v104, v106"); E("v_add_f32 v100, v100, v104")
    E("v_add_f32 v101, v101, v103"); E("v_add_f32 v105, v105, v107"); E("v_add_f32 v101, v101, v105")
    E("v_cvt_pk_bf16_f32 v100, v100, v101")
    E("v_lshlrev_b32 v3, 2, v0")
    E("ds_write_b32 v3, v100")
    E("s_waitcnt lgkmcnt(0)"); E("s_barrier")
    E("v_and_b32 v12, 3, v5"); E("v_lshlrev_b32 v13, 8, v12"); E("v_lshl_add_u32 v13, v7, 4, v13")
    for b in range(4):
        E(f"ds_read_b128 v[{80+4*b}:{83+4*b}], v13 offset:{64*b}")
    for k in range(8):
        E(f"v_mov_b32 v{96+k}, 0")
    E("s_waitcnt vmcnt(8) lgkmcnt(0)")
    for t in range(2):
        for b in range(4):
            r = 16 + 16*t + 4*b
            E(f"v_mfma_f32_16x16x32_bf16 v[{96+4*t}:{99+4*t}], v[{r}:{r+3}], v[{80+4*b}:{83+4*b}], v[{96+4*t}:{99+4*t}]")
    E("s_nop 7"); E("s_nop 1")
    E(f"s_mov_b32 s36, {SCALE}")
    for k in range(8):
        rbf(96+k)
        E(f"v_mul_f32 v{96+k}, s36, v{96+k}")
        rbf(96+k)
    E("v_lshlrev_b32 v14, 5, v4"); E("v_lshl_add_u32 v14, v7, 2, v14")
    E("v_lshlrev_b32 v14, 4, v14"); E("v_lshl_add_u32 v14, v12, 2, v14")
    for t in range(2):
        for i in range(4):
            E(f"ds_write_b32 v14, v{96+4*t+i} offset:{1024 + t*256 + i*16}")
    E("s_waitcnt lgkmcnt(0)"); E("s_barrier")
    E("v_lshlrev_b32 v14, 4, v5")
    E("ds_read_b128 v[96:99], v14 offset:1024")
    E("ds_read_b128 v[100:103], v14 offset:2048")
    E("s_waitcnt lgkmcnt(0)")
    for h in range(4):
        E(f"v_max_f32 v{96+h}, v{96+h}, v{100+h}")
    for h in range(4):
        wave_reduce("v_max_f32", 96+h)
    E(f"s_mov_b32 s37, {LOG2E}")
    for h in range(4):
        E(f"v_mul_f32 v{100+h}, s37, v{96+h}")
    E("v_lshlrev_b32 v14, 5, v4"); E("v_add_u32 v14, v14, v7"); E("v_lshlrev_b32 v14, 4, v14")
    for i in range(8):
        E(f"ds_read_b128 v[{112+4*i}:{115+4*i}], v14 offset:{1024 + 64*i}")
    for k in range(32):
        E(f"v_mov_b32 v{160+k}, 0")
    for h in range(4):
        E(f"v_mov_b32 v{104+h}, 0")
    E("s_waitcnt vmcnt(0) lgkmcnt(0)")
    for i in range(8):
        unpack8(144, 48+4*i)
        for h in range(4):
            E(f"v_fma_f32 v{108+h}, v{112+4*i+h}, s37, -v{100+h}")
        for h in range(4):
            E(f"v_exp_f32 v{108+h}, v{108+h}")
        E("s_nop 0")
        for h in range(4):
            E(f"v_add_f32 v{104+h}, v{104+h}, v{108+h}")
            for j in range(8):
                E(f"v_fmac_f32 v{160+8*h+j}, v{108+h}, v{144+j}")
    E("v_lshl_add_u32 v15, v4, 2, v7")
    E("v_lshlrev_b32 v14, 11, v15"); E("v_lshl_add_u32 v14, v6, 5, v14")
    for h in range(4):
        E(f"ds_write_b128 v14, v[{160+8*h}:{163+8*h}] offset:{4096 + 512*h}")
        E(f"ds_write_b128 v14, v[{164+8*h}:{167+8*h}] offset:{4096 + 512*h + 16}")
    E("v_lshlrev_b32 v14, 4, v15")
    E(f"ds_write_b128 v14, v[104:107] offset:{4096+32768}")
    E("v_mov_b32 v14, 0")
    E(f"ds_write_b128 v14, v[96:99] offset:{4096+32768+256}")
    E("s_waitcnt lgkmcnt(0)"); E("s_barrier")
    E("v_lshlrev_b32 v14, 3, v0")
    for r in range(16):
        E(f"ds_read_b64 v[{112+2*r}:{113+2*r}], v14 offset:{4096 + 2048*r}")
    E("s_waitcnt lgkmcnt(0)")
    for r in range(1, 16):
        E(f"v_add_f32 v112, v112, v{112+2*r}")
        E(f"v_add_f32 v113, v113, v{113+2*r}")
    E("v_lshlrev_b32 v14, 14, v4")
    E("v_lshl_add_u32 v14, v5, 3, v14")
    E("s_lshl_b32 s28, s24, 16"); E("s_lshl_b32 s29, s25, 9"); E("s_add_u32 s28, s28, s29")
    E(f"s_add_u32 s28, s28, {APO}")
    E("buffer_store_dwordx2 v[112:113], v14, s[20:23], s28 offen")
    E("v_cmp_gt_u32 vcc, 4, v0")
    E("s_and_saveexec_b64 s[38:39], vcc")
    E("s_cbranch_execz K2_END")
    E("v_lshlrev_b32 v14, 2, v0")
    for r in range(16):
        E(f"ds_read_b32 v{112+r}, v14 offset:{4096+32768+16*r}")
    E(f"ds_read_b32 v128, v14 offset:{4096+32768+256}")
    E("s_waitcnt lgkmcnt(0)")
    for r in range(1, 16):
        E(f"v_add_f32 v112, v112, v{112+r}")
    E("v_mov_b32 v129, v112")
    E("v_lshlrev_b32 v14, 8, v0")
    E("s_lshl_b32 s28, s24, 10"); E("s_lshl_b32 s29, s25, 3"); E("s_add_u32 s28, s28, s29")
    E(f"s_add_u32 s28, s28, {APM}")
    E("buffer_store_dwordx2 v[128:129], v14, s[20:23], s28 offen")
    L("K2_END"); E("s_endpgm")

def k3():
    n = "k3_oproj_kernel"; kernels.append((n, 256, 2048 + 8192))
    header(n)
    E("s_cmp_ge_u32 s2, 256"); E("s_cbranch_scc1 K3_END")
    E("s_load_dwordx2 s[6:7], s[0:1], 32")
    E("s_load_dwordx2 s[8:9], s[0:1], 96")
    E("s_waitcnt lgkmcnt(0)")
    srd(16, 6, 4096*512*2); srd(20, 8, WSN)
    E("s_lshr_b32 s24, s2, 3")
    E("s_and_b32 s25, s2, 7")
    E("v_and_b32 v4, 31, v0"); E("v_lshlrev_b32 v4, 3, v4")
    E("s_lshl_b32 s26, s24, 8"); E(f"s_add_u32 s26, s26, {APM}")
    E("buffer_load_dwordx2 v[28:29], v4, s[20:23], s26 offen")
    E("v_lshrrev_b32 v5, 7, v0"); E("v_and_b32 v6, 127, v0")
    E("v_lshlrev_b32 v7, 13, v5"); E("v_lshl_add_u32 v7, v6, 2, v7")
    E("s_lshl_b32 s27, s24, 14"); E(f"s_add_u32 s27, s27, {APO}")
    E("v_add_u32 v3, 4096, v7")
    for s in range(16):
        E(f"buffer_load_dword v{32+s}, v{7 if s < 8 else 3}, s[20:23], s27 offen offset:{512*(s%8)}")
    E("v_lshrrev_b32 v1, 3, v0"); E("v_and_b32 v2, 7, v0")
    E("v_lshlrev_b32 v3, 10, v1"); E("v_lshl_add_u32 v3, v2, 4, v3")
    E("s_lshl_b32 s28, s24, 17"); E("s_lshl_b32 s29, s25, 7"); E("s_add_u32 s28, s28, s29")
    for j in range(1, 4):
        E(f"s_add_u32 s{32+j}, s28, {j*32768}")
    for j in range(4):
        E(f"buffer_load_dwordx4 v[{8+4*j}:{11+4*j}], v3, s[16:19], s{28 if j == 0 else 32+j} offen")
    E("s_waitcnt vmcnt(20)")
    E("v_mov_b32 v30, v28")
    wave_reduce("v_max_f32", 30)
    E(f"s_mov_b32 s37, {LOG2E}")
    E("v_sub_f32 v31, v28, v30"); E("v_mul_f32 v31, s37, v31"); E("v_exp_f32 v31, v31"); E("s_nop 0")
    E("v_mul_f32 v30, v31, v29")
    wave_reduce("v_add_f32", 30)
    E("v_mul_f32 v30, 0.5, v30")
    E("v_rcp_f32 v48, v30"); E("s_nop 0")
    fdiv(49, 31, 30, 48, 50)
    E("v_lshrrev_b32 v4, 1, v4")
    E("ds_write_b32 v4, v49 offset:1024")
    E("s_waitcnt lgkmcnt(0)")
    E("v_lshlrev_b32 v4, 6, v5")
    for q in range(4):
        E(f"ds_read_b128 v[{52+4*q}:{55+4*q}], v4 offset:{1024+16*q}")
    E("s_waitcnt vmcnt(4) lgkmcnt(0)")
    E("v_mul_f32 v68, v32, v52")
    for s in range(1, 16):
        E(f"v_fmac_f32 v68, v{32+s}, v{52+s}")
    E("v_lshlrev_b32 v4, 2, v0")
    E("ds_write_b32 v4, v68")
    E("s_waitcnt lgkmcnt(0)"); E("s_barrier")
    E("v_lshlrev_b32 v96, 2, v1")
    for j in range(4):
        E(f"ds_read_b32 v{100+j}, v96 offset:{128*j}")
        E(f"ds_read_b32 v{104+j}, v96 offset:{512+128*j}")
    for k in range(8):
        E(f"v_mov_b32 v{80+k}, 0")
    E("s_waitcnt vmcnt(0) lgkmcnt(0)")
    for j in range(4):
        E(f"v_add_f32 v{100+j}, v{100+j}, v{104+j}")
        rbf(100+j)
    for j in range(4):
        unpack8(88, 8+4*j)
        for k in range(8):
            E(f"v_fmac_f32 v{80+k}, v{100+j}, v{88+k}")
    red = 2048
    E("v_lshlrev_b32 v96, 8, v1"); E("v_lshl_add_u32 v96, v2, 5, v96")
    E(f"ds_write_b128 v96, v[80:83] offset:{red}")
    E(f"ds_write_b128 v96, v[84:87] offset:{red+16}")
    E("s_waitcnt lgkmcnt(0)"); E("s_barrier")
    E("v_readfirstlane_b32 s30, v0"); E("s_nop 3")
    E("s_cmp_ge_u32 s30, 64"); E("s_cbranch_scc1 K3_END")
    E("v_lshlrev_b32 v96, 2, v0")
    for r in range(32):
        E(f"ds_read_b32 v{104+r}, v96 offset:{red + 256*r}")
    E("s_waitcnt lgkmcnt(0)")
    for r in range(1, 32):
        E(f"v_add_f32 v104, v104, v{104+r}")
    E("s_lshl_b32 s28, s24, 11"); E("s_lshl_b32 s29, s25, 8"); E("s_add_u32 s28, s28, s29")
    E(f"s_add_u32 s28, s28, {OP}")
    E("buffer_store_dword v104, v96, s[20:23], s28 offen")
    L("K3_END"); E("s_endpgm")

def block_sum(v, lds_off, t):
    wave_reduce("v_add_f32", v)
    E(f"v_lshrrev_b32 v{t}, 6, v0"); E(f"v_lshlrev_b32 v{t}, 2, v{t}")
    E(f"ds_write_b32 v{t}, v{v} offset:{lds_off}")
    E("s_waitcnt lgkmcnt(0)"); E("s_barrier")
    E(f"v_mov_b32 v{t}, 0")
    E(f"ds_read_b128 v[{t+4}:{t+7}], v{t} offset:{lds_off}")
    E("s_waitcnt lgkmcnt(0)")
    E(f"v_add_f32 v{v}, v{t+4}, v{t+5}"); E(f"v_add_f32 v{v}, v{v}, v{t+6}"); E(f"v_add_f32 v{v}, v{v}, v{t+7}")

def k4():
    n = "k4_ffn1_kernel"; kernels.append((n, 224, 2048 + 8192 + 64))
    header(n)
    E("s_cmp_ge_u32 s2, 224"); E("s_cbranch_scc1 K4_END")
    E("s_load_dwordx2 s[4:5], s[0:1], 0")
    E("s_load_dwordx2 s[6:7], s[0:1], 48")
    E("s_load_dwordx2 s[8:9], s[0:1], 96")
    E("s_waitcnt lgkmcnt(0)")
    srd(12, 4, 1024); srd(16, 6, 512*1792*2); srd(20, 8, WSN)
    E("s_lshr_b32 s24, s2, 3")
    E("s_and_b32 s25, s2, 7")
    E("v_lshlrev_b32 v3, 3, v0")
    E(f"s_mov_b32 s26, {OP}")
    E("v_add_u32 v4, 4096, v3")
    for r in range(32):
        base = 3 if (r % 4) < 2 else 4
        if r % 4 == 0:
            E(f"s_add_u32 s27, s26, {(r//4)*8192}")
        E(f"buffer_load_dwordx2 v[{32+2*r}:{33+2*r}], v{base}, s[20:23], s27 offen offset:{2048*(r%2)}")
    E("v_lshlrev_b32 v5, 2, v0")
    E("buffer_load_dword v28, v5, s[12:15], 0 offen")
    E("v_lshrrev_b32 v1, 3, v0"); E("v_and_b32 v2, 7, v0")
    E("s_movk_i32 s28, 3584")
    E("v_mul_lo_u32 v6, v1, s28"); E("v_lshl_add_u32 v6, v2, 4, v6")
    E("s_mul_i32 s29, s25, 64*3584"); E("s_lshl_b32 s31, s24, 7"); E("s_add_u32 s29, s29, s31")
    E("s_add_u32 s31, s29, 32*3584")
    E("buffer_load_dwordx4 v[8:11], v6, s[16:19], s29 offen")
    E("buffer_load_dwordx4 v[12:15], v6, s[16:19], s31 offen")
    E("s_waitcnt vmcnt(2)")
    for r in range(1, 32):
        E(f"v_add_f32 v32, v32, v{32+2*r}")
        E(f"v_add_f32 v33, v33, v{33+2*r}")
    rbf(32); rbf(33)
    E("v_lshlrev_b32 v29, 16, v28"); E("v_and_b32 v30, 0xffff0000, v28")
    E("v_add_f32 v32, v32, v29"); E("v_add_f32 v33, v33, v30")
    rbf(32); rbf(33)
    E("s_cmp_lg_u32 s2, 0"); E("s_cbranch_scc1 K4_NOH")
    E(f"s_mov_b32 s31, {HH}")
    E("buffer_store_dwordx2 v[32:33], v3, s[20:23], s31 offen")
    L("K4_NOH")
    E("v_add_f32 v34, v32, v33")
    block_sum(34, 10240, 36)
    E(f"v_mul_f32 v34, {INV512}, v34")
    E("v_sub_f32 v36, v32, v34"); E("v_mul_f32 v35, v36, v36")
    E("v_sub_f32 v36, v33, v34"); E("v_fmac_f32 v35, v36, v36")
    block_sum(35, 10240+16, 36)
    E(f"v_mul_f32 v35, {INV512}, v35")
    rbf(34); rbf(35)
    E(f"v_add_f32 v35, {EPS}, v35"); rbf(35)
    E("v_sqrt_f32 v35, v35"); E("s_nop 0"); rbf(35)
    E("v_rcp_f32 v36, v35"); E("s_nop 0")
    for i in range(2):
        E(f"v_sub_f32 v37, v{32+i}, v34"); rbf(37)
        fdiv(32+i, 37, 35, 36, 38); rbf(32+i)
    E("ds_write_b64 v3, v[32:33]")
    E("s_waitcnt lgkmcnt(0)"); E("s_barrier")
    E("s_lshl_b32 s28, s25, 6"); E("v_add_u32 v5, s28, v1")
    E("v_lshlrev_b32 v96, 2, v5")
    for j in range(2):
        E(f"ds_read_b32 v{100+j}, v96 offset:{128*j}")
    for k in range(8):
        E(f"v_mov_b32 v{80+k}, 0")
    E("s_waitcnt vmcnt(0) lgkmcnt(0)")
    for j in range(2):
        unpack8(88, 8+4*j)
        for k in range(8):
            E(f"v_fmac_f32 v{80+k}, v{100+j}, v{88+k}")
    red = 2048
    E("v_lshlrev_b32 v96, 8, v1"); E("v_lshl_add_u32 v96, v2, 5, v96")
    E(f"ds_write_b128 v96, v[80:83] offset:{red}")
    E(f"ds_write_b128 v96, v[84:87] offset:{red+16}")
    E("s_waitcnt lgkmcnt(0)"); E("s_barrier")
    E("v_readfirstlane_b32 s30, v0"); E("s_nop 3")
    E("s_cmp_ge_u32 s30, 64"); E("s_cbranch_scc1 K4_END")
    E("v_lshlrev_b32 v96, 2, v0")
    for r in range(32):
        E(f"ds_read_b32 v{104+r}, v96 offset:{red + 256*r}")
    E("s_waitcnt lgkmcnt(0)")
    for r in range(1, 32):
        E(f"v_add_f32 v104, v104, v{104+r}")
    E("s_mul_i32 s28, s25, 1792*4"); E("s_lshl_b32 s29, s24, 8"); E("s_add_u32 s28, s28, s29")
    E(f"s_add_u32 s28, s28, {F1}")
    E("buffer_store_dword v104, v96, s[20:23], s28 offen")
    L("K4_END"); E("s_endpgm")

def k5():
    n = "k5_ffn2_kernel"; kernels.append((n, 224, 2048 + 8192))
    header(n)
    E("s_cmp_ge_u32 s2, 224"); E("s_cbranch_scc1 K5_END")
    E("s_load_dwordx2 s[4:5], s[0:1], 56")
    E("s_load_dwordx2 s[6:7], s[0:1], 64")
    E("s_load_dwordx2 s[8:9], s[0:1], 96")
    E("s_waitcnt lgkmcnt(0)")
    srd(12, 4, 1792*2); srd(16, 6, 1792*512*2); srd(20, 8, WSN)
    E("s_lshr_b32 s24, s2, 3")
    E("s_and_b32 s25, s2, 7")
    E("v_and_b32 v4, 63, v0"); E("v_lshlrev_b32 v5, 2, v4")
    E("s_lshl_b32 s26, s24, 8"); E(f"s_add_u32 s26, s26, {F1}")
    for p in range(8):
        if p:
            E(f"s_add_u32 s26, s26, {1792*4}")
        E(f"buffer_load_dword v{32+p}, v5, s[20:23], s26 offen")
    E("v_lshlrev_b32 v6, 1, v4")
    E("s_lshl_b32 s27, s24, 7")
    E("buffer_load_ushort v40, v6, s[12:15], s27 offen")
    E("v_lshrrev_b32 v1, 3, v0"); E("v_and_b32 v2, 7, v0")
    E("v_lshlrev_b32 v3, 10, v1"); E("v_lshl_add_u32 v3, v2, 4, v3")
    E("s_lshl_b32 s28, s24, 16"); E("s_lshl_b32 s29, s25, 7"); E("s_add_u32 s28, s28, s29")
    E("s_add_u32 s29, s28, 32768")
    E("buffer_load_dwordx4 v[8:11], v3, s[16:19], s28 offen")
    E("buffer_load_dwordx4 v[12:15], v3, s[16:19], s29 offen")
    E("s_waitcnt vmcnt(2)")
    for p in range(1, 8):
        E(f"v_add_f32 v32, v32, v{32+p}")
    rbf(32)
    E("v_lshlrev_b32 v40, 16, v40")
    E("v_add_f32 v32, v32, v40"); rbf(32)
    E("v_mul_f32 v33, v32, v32")
    E("v_mul_f32 v33, v33, v32")
    E("s_mov_b32 s31, 0x3d372713")
    E("v_fma_f32 v33, v33, s31, v32")
    E("v_mul_f32 v33, 0x40135761, v33")
    E("v_exp_f32 v33, v33"); E("s_nop 0")
    E("v_add_f32 v33, 1.0, v33")
    E("v_rcp_f32 v33, v33"); E("s_nop 0")
    E("v_fma_f32 v33, v33, -2.0, 1.0")
    E("v_add_f32 v33, 1.0, v33")
    E("v_mul_f32 v33, v33, v32"); E("v_mul_f32 v33, 0.5, v33")
    rbf(33)
    E("ds_write_b32 v5, v33")
    E("s_waitcnt lgkmcnt(0)")
    E("v_lshlrev_b32 v96, 2, v1")
    for j in range(2):
        E(f"ds_read_b32 v{100+j}, v96 offset:{128*j}")
    for k in range(8):
        E(f"v_mov_b32 v{80+k}, 0")
    E("s_waitcnt vmcnt(0) lgkmcnt(0)")
    for j in range(2):
        unpack8(88, 8+4*j)
        for k in range(8):
            E(f"v_fmac_f32 v{80+k}, v{100+j}, v{88+k}")
    red = 2048
    E("v_lshlrev_b32 v96, 8, v1"); E("v_lshl_add_u32 v96, v2, 5, v96")
    E(f"ds_write_b128 v96, v[80:83] offset:{red}")
    E(f"ds_write_b128 v96, v[84:87] offset:{red+16}")
    E("s_waitcnt lgkmcnt(0)"); E("s_barrier")
    E("v_readfirstlane_b32 s30, v0"); E("s_nop 3")
    E("s_cmp_ge_u32 s30, 64"); E("s_cbranch_scc1 K5_END")
    E("v_lshlrev_b32 v96, 2, v0")
    for r in range(32):
        E(f"ds_read_b32 v{104+r}, v96 offset:{red + 256*r}")
    E("s_waitcnt lgkmcnt(0)")
    for r in range(1, 32):
        E(f"v_add_f32 v104, v104, v{104+r}")
    E("s_lshl_b32 s28, s24, 11"); E("s_lshl_b32 s29, s25, 8"); E("s_add_u32 s28, s28, s29")
    E(f"s_add_u32 s28, s28, {F2}")
    E("buffer_store_dword v104, v96, s[20:23], s28 offen")
    L("K5_END"); E("s_endpgm")

def k6():
    n = NAME + "_kernel"; kernels.append((n, 2, 0))
    header(n)
    E("s_cmp_ge_u32 s2, 2"); E("s_cbranch_scc1 K6_END")
    E("s_load_dwordx2 s[4:5], s[0:1], 72")
    E("s_load_dwordx2 s[6:7], s[0:1], 80")
    E("s_load_dwordx2 s[8:9], s[0:1], 96")
    E("s_waitcnt lgkmcnt(0)")
    srd(12, 4, 1024); srd(16, 6, 1024); srd(20, 8, WSN)
    E("s_lshl_b32 s24, s2, 8"); E("v_add_u32 v1, s24, v0")
    E("v_lshlrev_b32 v2, 2, v1"); E("v_lshlrev_b32 v3, 1, v1")
    E(f"s_mov_b32 s26, {F2}")
    for k in range(28):
        if k:
            E("s_add_u32 s26, s26, 2048")
        E(f"buffer_load_dword v{8+k}, v2, s[20:23], s26 offen")
    E(f"s_mov_b32 s27, {HH}")
    E("buffer_load_dword v40, v2, s[20:23], s27 offen")
    E("buffer_load_ushort v41, v3, s[12:15], 0 offen")
    E("s_waitcnt vmcnt(0)")
    for k in range(1, 28):
        E(f"v_add_f32 v8, v8, v{8+k}")
    rbf(8)
    E("v_lshlrev_b32 v41, 16, v41")
    E("v_add_f32 v8, v8, v41"); rbf(8)
    E("v_add_f32 v8, v8, v40")
    E("v_cvt_pk_bf16_f32 v8, v8, v8")
    E("buffer_store_short v8, v3, s[16:19], 0 offen")
    L("K6_END"); E("s_endpgm")

k1(); k2(); k3(); k4(); k5(); k6()

hdr = open(f"cdna_kernels/{NAME}.s.ref").read().split("; Override")[0]
res = [hdr.rstrip("\n")]
for (n, g, lds) in kernels:
    res.append(f"; @launch kernel={n} grid=({g},1,1) block=(256,1,1) lds={lds}")
res.append('.amdgcn_target "amdgcn-amd-amdhsa--gfx950"')
res.append(".text")
res += out
res.append('.section .rodata,"a"')
for (n, g, lds) in kernels:
    res.append(".p2align 6")
    res.append(f""".amdhsa_kernel {n}
  .amdhsa_next_free_vgpr 256
  .amdhsa_next_free_sgpr 102
  .amdhsa_accum_offset 256
  .amdhsa_group_segment_fixed_size 0
  .amdhsa_kernarg_size 104
  .amdhsa_user_sgpr_count 2
  .amdhsa_user_sgpr_kernarg_segment_ptr 1
  .amdhsa_system_sgpr_workgroup_id_x 1
.end_amdhsa_kernel""")
path = sys.argv[1] if len(sys.argv) > 1 else f"cdna_kernels/{NAME}.s"
open(path, "w").write("\n".join(res) + "\n")
```

```python
import sys
NAME = "sequential_preLN__sliding_block_cached__dense_activation_gelu__decode"
out = []
def E(s): out.append("    " + s)
def L(s): out.append(s + ":")

Q   = 0
APO = 16384
APM = APO + 524288
OP  = APM + 8192
HH  = OP + 65536
H1  = HH + 2048
WSN = 1 << 20
LOG2E = 0x3fb8aa3b; SCALE = 0x3db504f3; EPS = 0x3727c5ac; INV512 = 0x3b000000
SC = 8192

def srd(d, b, n):
    E(f"s_mov_b32 s{d}, s{b}"); E(f"s_and_b32 s{d+1}, s{b+1}, 0xffff")
    E(f"s_mov_b32 s{d+2}, {n}"); E(f"s_mov_b32 s{d+3}, 0x00020000")
def rbf(v):
    E(f"v_cvt_pk_bf16_f32 v{v}, v{v}, v{v}"); E(f"v_lshlrev_b32 v{v}, 16, v{v}")
def wave_reduce(op, v, st=90):
    for mode in ["quad_perm:[1,0,3,2]", "quad_perm:[2,3,0,1]", "row_half_mirror", "row_mirror"]:
        E("s_nop 1"); E(f"{op}_dpp v{v}, v{v}, v{v} {mode} row_mask:0xf bank_mask:0xf")
    E("s_nop 1")
    for i in range(4): E(f"v_readlane_b32 s{st+i}, v{v}, {16*i}")
    E("s_nop 1"); E(f"v_mov_b32 v{v}, s{st}")
    for i in range(1, 4): E(f"{op} v{v}, s{st+i}, v{v}")
def unpack8(dst, src):
    for i in range(4):
        E(f"v_lshlrev_b32 v{dst+2*i}, 16, v{src+i}"); E(f"v_and_b32 v{dst+2*i+1}, 0xffff0000, v{src+i}")
def fdiv(dst, num, den, rcp, t):
    E(f"v_mul_f32 v{dst}, v{num}, v{rcp}"); E(f"v_fma_f32 v{t}, -v{dst}, v{den}, v{num}"); E(f"v_fma_f32 v{dst}, v{t}, v{rcp}, v{dst}")
def bar():
    E("s_waitcnt lgkmcnt(0)"); E("s_barrier")

pollcnt = [0]
def poll(base_sgpr_expr, count, val):
    pollcnt[0] += 1; n = pollcnt[0]
    E("s_cmp_lg_u32 s60, 0"); E(f"s_cbranch_scc1 PD{n}")
    E("s_mov_b32 s71, 0")
    if count <= 64:
        E(f"v_min_u32 v250, {count-1}, v1"); E("v_add_u32 v250, s70, v250")
        L(f"PL{n}")
        E("buffer_load_ubyte v251, v250, s[44:47], 0 offen sc1")
        E("s_waitcnt vmcnt(0)")
        E(f"v_cmp_le_u32 vcc, {val}, v251")
    else:
        nd = count // 4
        E(f"v_min_u32 v250, {nd-1}, v1"); E("v_lshlrev_b32 v250, 2, v250")
        L(f"PL{n}")
        E("buffer_load_dword v251, v250, s[44:47], 0 offen sc1")
        E("s_waitcnt vmcnt(0)")
        E("v_bfe_u32 v252, v251, 0, 8"); E("v_bfe_u32 v253, v251, 8, 8"); E("v_min_u32 v252, v252, v253")
        E("v_bfe_u32 v253, v251, 16, 8"); E("v_min_u32 v252, v252, v253")
        E("v_lshrrev_b32 v253, 24, v251"); E("v_min_u32 v252, v252, v253")
        E(f"v_cmp_le_u32 vcc, {val}, v252")
    E("s_nop 4")
    E("s_cmp_eq_u64 vcc, exec"); E(f"s_cbranch_scc1 PD{n}")
    E("s_add_u32 s71, s71, 1"); E("s_cmp_lt_u32 s71, 0x40000"); E(f"s_cbranch_scc1 PL{n}")
    L(f"PD{n}")
    E("s_barrier")
def publish(val, all_waves=True):
    pollcnt[0] += 1; n = pollcnt[0]
    E("s_waitcnt vmcnt(0)")
    if all_waves: E("s_barrier")
    E("s_cmp_lg_u32 s60, 0"); E(f"s_cbranch_scc1 PB{n}")
    E(f"v_mov_b32 v250, s2"); E(f"v_mov_b32 v251, {val}")
    E("v_cmp_eq_u32 vcc, 0, v1"); E("s_and_saveexec_b64 s[72:73], vcc")
    E("buffer_store_byte v251, v250, s[44:47], 0 offen sc1")
    E("s_mov_b64 exec, s[72:73]")
    L(f"PB{n}")

def prefetch():
    E("v_lshlrev_b32 v144, 5, v4"); E("v_add_u32 v144, v144, v2"); E("v_lshlrev_b32 v144, 8, v144")
    E("v_lshl_add_u32 v144, v3, 4, v144"); E("v_add_u32 v145, 4096, v144")
    for t in range(2):
        for b in range(4):
            r = 24 + 16*t + 4*b
            E(f"buffer_load_dwordx4 v[{r}:{r+3}], v{144+t}, s[16:19], s64 offen offset:{64*b}")
    E("v_lshlrev_b32 v146, 5, v4"); E("v_add_u32 v146, v146, v3"); E("v_lshlrev_b32 v146, 8, v146")
    E("v_lshl_add_u32 v146, v2, 4, v146"); E("v_add_u32 v147, 4096, v146")
    for i in range(8):
        r = 56 + 4*i
        E(f"buffer_load_dwordx4 v[{r}:{r+3}], v{146 + i//4}, s[20:23], s64 offen offset:{1024*(i%4)}")
    E("v_lshrrev_b32 v148, 3, v0"); E("v_and_b32 v149, 7, v0")
    E("v_lshlrev_b32 v148, 10, v148"); E("v_lshl_add_u32 v148, v149, 4, v148")
    for j in range(4):
        E(f"buffer_load_dwordx4 v[{88+4*j}:{91+4*j}], v148, s[28:31], s{65+j} offen")
    E("s_movk_i32 s69, 3584"); E("v_mul_lo_u32 v148, v0, s69"); E("v_add_u32 v149, 256*3584, v148")
    E("s_lshl_b32 s69, s2, 4")
    E("buffer_load_dwordx4 v[104:107], v148, s[32:35], s69 offen")
    E("buffer_load_dwordx4 v[108:111], v149, s[32:35], s69 offen")
    E("v_lshlrev_b32 v148, 10, v0")
    for j in range(7):
        E(f"s_add_u32 s74, s69, {j*262144}")
        E(f"buffer_load_dwordx4 v[{112+4*j}:{115+4*j}], v148, s[36:39], s74 offen")
    E("v_and_b32 v148, 7, v0"); E("v_lshlrev_b32 v148, 1, v148")
    E("buffer_load_ushort v140, v148, s[48:51], s69 offen")
    E("buffer_load_ushort v141, v148, s[52:55], s69 offen")
    E("v_lshlrev_b32 v148, 2, v0")
    E("buffer_load_dword v142, v148, s[12:15], 0 offen")

def reduce8(final):
    E("v_lshlrev_b32 v150, 5, v0")
    E(f"ds_write_b128 v150, v[160:163] offset:{SC}"); E(f"ds_write_b128 v150, v[164:167] offset:{SC+16}")
    bar()
    E("v_and_b32 v150, 7, v0"); E("v_lshrrev_b32 v151, 3, v0")
    E("v_lshlrev_b32 v152, 8, v151"); E("v_lshl_add_u32 v152, v150, 2, v152")
    for r in range(8): E(f"ds_read_b32 v{168+r}, v152 offset:{SC+32*r}")
    E("s_waitcnt lgkmcnt(0)")
    for r in range(1, 8): E(f"v_add_f32 v168, v168, v{168+r}")
    E("v_lshlrev_b32 v152, 2, v0")
    E(f"ds_write_b32 v152, v168 offset:{SC+8192}")
    bar()
    E("v_lshlrev_b32 v152, 2, v150")
    for r in range(32): E(f"ds_read_b32 v{176+r}, v152 offset:{SC+8192+32*r}")
    E("s_waitcnt lgkmcnt(0)")
    for r in range(1, 32): E(f"v_add_f32 v176, v176, v{176+r}")

n = NAME + "_kernel"
out.append(f".globl {n}"); out.append(".p2align 8"); out.append(f".type {n},@function"); L(n)
E("s_cmp_ge_u32 s2, 256"); E("s_cbranch_scc1 END")
E("s_load_dwordx16 s[64:79], s[0:1], 0")
E("s_load_dwordx8 s[80:87], s[0:1], 64")
E("s_load_dwordx2 s[88:89], s[0:1], 96")
E("s_waitcnt lgkmcnt(0)")
srd(12, 64, 1024); srd(16, 66, 0x8000000); srd(20, 68, 0x8000000); srd(24, 70, 512*4096*2); srd(28, 72, 4096*512*2)
srd(32, 76, 512*1792*2); srd(36, 80, 1792*512*2); srd(40, 88, WSN); srd(44, 86, 256); srd(48, 78, 3584); srd(52, 82, 1024); srd(56, 84, 1024)
E("v_and_b32 v1, 63, v0"); E("v_and_b32 v2, 15, v1"); E("v_lshrrev_b32 v3, 4, v1"); E("v_lshrrev_b32 v4, 6, v0")
E("s_nop 0"); E("v_readfirstlane_b32 s60, v4")
E("s_lshr_b32 s61, s2, 5"); E("s_and_b32 s62, s2, 31")
E("v_lshlrev_b32 v144, 4, v1")
E("buffer_load_dwordx4 v[156:159], v144, s[12:15], 0 offen")
E("v_lshrrev_b32 v5, 1, v0"); E("v_and_b32 v6, 1, v0")
E("v_lshlrev_b32 v145, 13, v5"); E("v_lshl_add_u32 v145, v6, 4, v145")
E("s_lshl_b32 s63, s2, 5")
for j in range(4):
    E(f"s_add_u32 s64, s63, {j*128*8192}")
    E(f"buffer_load_dwordx4 v[{8+4*j}:{11+4*j}], v145, s[24:27], s64 offen")
E("s_lshl_b32 s64, s61, 24"); E("s_lshl_b32 s65, s62, 15"); E("s_add_u32 s64, s64, s65"); E(f"s_add_u32 s64, s64, {61440*256}")
E("s_lshr_b32 s65, s2, 3"); E("s_lshl_b32 s65, s65, 17"); E("s_and_b32 s66, s2, 7"); E("s_lshl_b32 s66, s66, 7"); E("s_add_u32 s65, s65, s66")
for j in range(1, 4): E(f"s_add_u32 s{65+j}, s65, {j*32768}")
E("s_cmp_eq_u32 s60, 0"); E("s_cbranch_scc1 NOPF")
prefetch()
L("NOPF")
E("s_waitcnt vmcnt(0)" ) if False else None
E("s_cmp_eq_u32 s60, 0"); E("s_cbranch_scc1 W0X")
E("s_waitcnt vmcnt(36)"); E("s_branch W1X")
L("W0X"); E("s_waitcnt vmcnt(4)")
L("W1X")
unpack8(160, 156)
t = 170
E(f"v_add_f32 v{t}, v160, v161")
for i in range(2, 8): E(f"v_add_f32 v{t}, v{t}, v{160+i}")
wave_reduce("v_add_f32", t)
E(f"v_mul_f32 v{t}, {INV512}, v{t}"); E(f"v_mov_b32 v{t+1}, 0")
for i in range(8):
    E(f"v_sub_f32 v{t+2}, v{160+i}, v{t}"); E(f"v_fmac_f32 v{t+1}, v{t+2}, v{t+2}")
wave_reduce("v_add_f32", t+1)
E(f"v_mul_f32 v{t+1}, {INV512}, v{t+1}")
rbf(t); rbf(t+1); E(f"v_add_f32 v{t+1}, {EPS}, v{t+1}"); rbf(t+1)
E(f"v_sqrt_f32 v{t+1}, v{t+1}"); E("s_nop 0"); rbf(t+1); E(f"v_rcp_f32 v{t+2}, v{t+1}"); E("s_nop 0")
for i in range(8):
    E(f"v_sub_f32 v{t+3}, v{160+i}, v{t}"); rbf(t+3); fdiv(160+i, t+3, t+1, t+2, t+4); rbf(160+i)
E("v_lshlrev_b32 v144, 5, v1")
E("ds_write_b128 v144, v[160:163]"); E("ds_write_b128 v144, v[164:167] offset:16")
E("s_waitcnt lgkmcnt(0)")
E("v_lshlrev_b32 v144, 2, v5")
for j in range(4): E(f"ds_read_b32 v{176+j}, v144 offset:{512*j}")
for k in range(8): E(f"v_mov_b32 v{160+k}, 0")
E("s_cmp_eq_u32 s60, 0"); E("s_cbranch_scc1 W0Y")
E("s_waitcnt vmcnt(32) lgkmcnt(0)"); E("s_branch W1Y")
L("W0Y"); E("s_waitcnt vmcnt(0) lgkmcnt(0)")
L("W1Y")
for j in range(4):
    unpack8(168, 8+4*j)
    for k in range(8): E(f"v_fmac_f32 v{160+k}, v{176+j}, v{168+k}")
E("v_lshlrev_b32 v144, 6, v5"); E("v_lshl_add_u32 v144, v6, 5, v144")
E(f"ds_write_b128 v144, v[160:163] offset:{SC}"); E(f"ds_write_b128 v144, v[164:167] offset:{SC+16}")
bar()
E("v_and_b32 v145, 15, v0"); E("v_lshrrev_b32 v146, 4, v0")
E("v_lshlrev_b32 v144, 9, v146"); E("v_lshl_add_u32 v144, v145, 2, v144")
for r in range(8): E(f"ds_read_b32 v{168+r}, v144 offset:{SC+64*r}")
E("s_waitcnt lgkmcnt(0)")
for r in range(1, 8): E(f"v_add_f32 v168, v168, v{168+r}")
E("v_lshlrev_b32 v144, 2, v0"); E(f"ds_write_b32 v144, v168 offset:{SC+8192}")
bar()
E("s_cmp_lg_u32 s60, 0"); E("s_cbranch_scc1 P1D")
E("v_lshlrev_b32 v144, 2, v145")
for r in range(16): E(f"ds_read_b32 v{176+r}, v144 offset:{SC+8192+64*r}")
E("s_waitcnt lgkmcnt(0)")
for r in range(1, 16): E(f"v_add_f32 v176, v176, v{176+r}")
E("s_lshl_b32 s69, s2, 6")
E("buffer_store_dword v176, v144, s[40:43], s69 offen sc1")
publish(1, all_waves=False)
prefetch()
L("P1D")
E("s_lshl_b32 s70, s61, 5")
poll(None, 32, 1)
E("v_lshlrev_b32 v144, 3, v0"); E("s_lshl_b32 s69, s61, 11")
E("buffer_load_dwordx2 v[160:161], v144, s[40:43], s69 offen sc1")
E("s_waitcnt vmcnt(0)")
E("v_cvt_pk_bf16_f32 v160, v160, v161"); E("v_lshlrev_b32 v144, 2, v0"); E("ds_write_b32 v144, v160")
bar()
E("v_and_b32 v7, 3, v1"); E("v_lshlrev_b32 v144, 8, v7"); E("v_lshl_add_u32 v144, v3, 4, v144")
for b in range(4): E(f"ds_read_b128 v[{160+4*b}:{163+4*b}], v144 offset:{64*b}")
for k in range(8): E(f"v_mov_b32 v{176+k}, 0")
E("s_waitcnt lgkmcnt(0)")
for tt in range(2):
    for b in range(4):
        r = 24 + 16*tt + 4*b
        E(f"v_mfma_f32_16x16x32_bf16 v[{176+4*tt}:{179+4*tt}], v[{r}:{r+3}], v[{160+4*b}:{163+4*b}], v[{176+4*tt}:{179+4*tt}]")
E("s_nop 7"); E("s_nop 1")
E(f"s_mov_b32 s76, {SCALE}"); E(f"s_mov_b32 s77, {LOG2E}")
for k in range(8):
    rbf(176+k); E(f"v_mul_f32 v{176+k}, s76, v{176+k}"); rbf(176+k)
E("v_lshlrev_b32 v144, 5, v4"); E("v_lshl_add_u32 v144, v3, 2, v144"); E("v_lshlrev_b32 v144, 4, v144"); E("v_lshl_add_u32 v144, v7, 2, v144")
for tt in range(2):
    for i in range(4): E(f"ds_write_b32 v144, v{176+4*tt+i} offset:{1024 + tt*256 + i*16}")
bar()
E("v_lshlrev_b32 v144, 4, v1")
E("ds_read_b128 v[176:179], v144 offset:1024"); E("ds_read_b128 v[180:183], v144 offset:2048")
E("s_waitcnt lgkmcnt(0)")
for h in range(4): E(f"v_max_f32 v{176+h}, v{176+h}, v{180+h}")
for h in range(4): wave_reduce("v_max_f32", 176+h)
for h in range(4): E(f"v_mul_f32 v{180+h}, s77, v{176+h}")
E("v_lshlrev_b32 v144, 5, v4"); E("v_add_u32 v144, v144, v3"); E("v_lshlrev_b32 v144, 4, v144")
for i in range(8): E(f"ds_read_b128 v[{192+4*i}:{195+4*i}], v144 offset:{1024 + 64*i}")
for k in range(32): E(f"v_mov_b32 v{224+k}, 0")
for h in range(4): E(f"v_mov_b32 v{184+h}, 0")
E("s_waitcnt lgkmcnt(0)")
for i in range(8):
    unpack8(160, 56+4*i)
    for h in range(4): E(f"v_fma_f32 v{188+h}, v{192+4*i+h}, s77, -v{180+h}")
    for h in range(4): E(f"v_exp_f32 v{188+h}, v{188+h}")
    E("s_nop 0")
    for h in range(4):
        E(f"v_add_f32 v{184+h}, v{184+h}, v{188+h}")
        for j in range(8): E(f"v_fmac_f32 v{224+8*h+j}, v{188+h}, v{160+j}")
R0 = SC; LR = SC + 32768
E("v_lshl_add_u32 v145, v4, 2, v3"); E("v_lshlrev_b32 v144, 11, v145"); E("v_lshl_add_u32 v144, v2, 5, v144")
for h in range(4):
    E(f"ds_write_b128 v144, v[{224+8*h}:{227+8*h}] offset:{R0 + 512*h}")
    E(f"ds_write_b128 v144, v[{228+8*h}:{231+8*h}] offset:{R0 + 512*h + 16}")
E("v_lshlrev_b32 v144, 4, v145"); E(f"ds_write_b128 v144, v[184:187] offset:{LR}")
E("v_mov_b32 v144, 0"); E(f"ds_write_b128 v144, v[176:179] offset:{LR+256}")
bar()
E("v_lshlrev_b32 v144, 3, v0")
for r in range(16): E(f"ds_read_b64 v[{192+2*r}:{193+2*r}], v144 offset:{R0 + 2048*r}")
E("v_and_b32 v145, 3, v0"); E("v_lshlrev_b32 v145, 2, v145")
for r in range(16): E(f"ds_read_b32 v{224+r}, v145 offset:{LR+16*r}")
E(f"ds_read_b32 v240, v145 offset:{LR+256}")
E("s_waitcnt lgkmcnt(0)")
for r in range(1, 16):
    E(f"v_add_f32 v192, v192, v{192+2*r}"); E(f"v_add_f32 v193, v193, v{193+2*r}"); E(f"v_add_f32 v224, v224, v{224+r}")
E("v_mov_b32 v241, v224")
E("v_lshlrev_b32 v144, 14, v4"); E("v_lshl_add_u32 v144, v1, 3, v144")
E("s_lshl_b32 s68, s61, 16"); E("s_lshl_b32 s69, s62, 9"); E("s_add_u32 s68, s68, s69"); E(f"s_add_u32 s68, s68, {APO}")
E("buffer_store_dwordx2 v[192:193], v144, s[40:43], s68 offen sc1")
E("v_lshlrev_b32 v144, 6, v145")
E("s_lshl_b32 s68, s61, 10"); E("s_lshl_b32 s69, s62, 3"); E("s_add_u32 s68, s68, s69"); E(f"s_add_u32 s68, s68, {APM}")
E("buffer_store_dwordx2 v[240:241], v144, s[40:43], s68 offen sc1")
publish(2)
poll(None, 32, 2)
E("s_lshr_b32 s68, s2, 3")
E("v_and_b32 v144, 31, v1"); E("v_lshlrev_b32 v144, 3, v144")
E("s_lshl_b32 s69, s68, 8"); E(f"s_add_u32 s69, s69, {APM}")
E("buffer_load_dwordx2 v[160:161], v144, s[40:43], s69 offen sc1")
E("v_lshrrev_b32 v145, 7, v0"); E("v_and_b32 v146, 127, v0")
E("v_lshlrev_b32 v147, 13, v145"); E("v_lshl_add_u32 v147, v146, 2, v147"); E("v_add_u32 v148, 4096, v147")
E("s_lshl_b32 s69, s68, 14"); E(f"s_add_u32 s69, s69, {APO}")
for s in range(16): E(f"buffer_load_dword v{192+s}, v{147 if s < 8 else 148}, s[40:43], s69 offen offset:{512*(s%8)} sc1")
E("s_waitcnt vmcnt(16)")
E("v_mov_b32 v162, v160"); wave_reduce("v_max_f32", 162)
E("v_sub_f32 v163, v160, v162"); E("v_mul_f32 v163, s77, v163"); E("v_exp_f32 v163, v163"); E("s_nop 0")
E("v_mul_f32 v162, v163, v161"); wave_reduce("v_add_f32", 162)
E("v_mul_f32 v162, 0.5, v162"); E("v_rcp_f32 v164, v162"); E("s_nop 0")
fdiv(165, 163, 162, 164, 166)
E("v_lshrrev_b32 v144, 1, v144"); E("ds_write_b32 v144, v165 offset:1024"); E("s_waitcnt lgkmcnt(0)")
E("v_lshlrev_b32 v144, 6, v145")
for q in range(4): E(f"ds_read_b128 v[{208+4*q}:{211+4*q}], v144 offset:{1024+16*q}")
E("s_waitcnt vmcnt(0) lgkmcnt(0)")
E("v_mul_f32 v168, v192, v208")
for s in range(1, 16): E(f"v_fmac_f32 v168, v{192+s}, v{208+s}")
E("v_lshlrev_b32 v144, 2, v0"); E("ds_write_b32 v144, v168")
bar()
E("v_lshrrev_b32 v5, 3, v0"); E("v_and_b32 v6, 7, v0")
E("v_lshlrev_b32 v144, 2, v5")
for j in range(4):
    E(f"ds_read_b32 v{176+j}, v144 offset:{128*j}"); E(f"ds_read_b32 v{180+j}, v144 offset:{512+128*j}")
for k in range(8): E(f"v_mov_b32 v{160+k}, 0")
E("s_waitcnt lgkmcnt(0)")
for j in range(4):
    E(f"v_add_f32 v{176+j}, v{176+j}, v{180+j}"); rbf(176+j)
for j in range(4):
    unpack8(168, 88+4*j)
    for k in range(8): E(f"v_fmac_f32 v{160+k}, v{176+j}, v{168+k}")
E("v_lshlrev_b32 v144, 8, v5"); E("v_lshl_add_u32 v144, v6, 5, v144")
E(f"ds_write_b128 v144, v[160:163] offset:{SC}"); E(f"ds_write_b128 v144, v[164:167] offset:{SC+16}")
bar()
E("v_lshlrev_b32 v144, 11, v4"); E("v_lshl_add_u32 v144, v1, 2, v144")
for r in range(8): E(f"ds_read_b32 v{168+r}, v144 offset:{SC+256*r}")
E("s_waitcnt lgkmcnt(0)")
for r in range(1, 8): E(f"v_add_f32 v168, v168, v{168+r}")
E("v_lshlrev_b32 v144, 2, v0"); E(f"ds_write_b32 v144, v168 offset:{SC+8192}")
bar()
E("s_cmp_lg_u32 s60, 0"); E("s_cbranch_scc1 P3D")
for r in range(4): E(f"ds_read_b32 v{176+r}, v144 offset:{SC+8192+256*r}")
E("s_waitcnt lgkmcnt(0)")
for r in range(1, 4): E(f"v_add_f32 v176, v176, v{176+r}")
E("s_lshl_b32 s69, s2, 8"); E(f"s_add_u32 s69, s69, {OP}")
E("buffer_store_dword v176, v144, s[40:43], s69 offen sc1")
publish(3, all_waves=False)
L("P3D")
E("s_cmp_ge_u32 s2, 224"); E("s_cbranch_scc1 END")
poll(None, 256, 3)
E("v_lshlrev_b32 v144, 3, v0"); E("v_add_u32 v145, 4096, v144")
for r in range(32):
    if r % 4 == 0: E(f"s_mov_b32 s69, {OP + (r//4)*8192}")
    E(f"buffer_load_dwordx2 v[{192+2*r}:{193+2*r}], v{144 if (r%4) < 2 else 145}, s[40:43], s69 offen offset:{2048*(r%2)} sc1")
E("s_waitcnt vmcnt(0)")
for r in range(1, 32):
    E(f"v_add_f32 v192, v192, v{192+2*r}"); E(f"v_add_f32 v193, v193, v{193+2*r}")
rbf(192); rbf(193)
E("v_lshlrev_b32 v146, 16, v142"); E("v_and_b32 v147, 0xffff0000, v142")
E("v_add_f32 v192, v192, v146"); E("v_add_f32 v193, v193, v147"); rbf(192); rbf(193)
E("s_cmp_lg_u32 s2, 0"); E("s_cbranch_scc1 NOH")
E(f"s_mov_b32 s69, {HH}"); E("buffer_store_dwordx2 v[192:193], v144, s[40:43], s69 offen sc1")
L("NOH")
def block_sum(v, off):
    wave_reduce("v_add_f32", v)
    E("v_lshlrev_b32 v146, 2, v4"); E(f"ds_write_b32 v146, v{v} offset:{off}")
    bar()
    E("v_mov_b32 v146, 0"); E(f"ds_read_b128 v[148:151], v146 offset:{off}"); E("s_waitcnt lgkmcnt(0)")
    E(f"v_add_f32 v{v}, v148, v149"); E(f"v_add_f32 v{v}, v{v}, v150"); E(f"v_add_f32 v{v}, v{v}, v151")
E("v_add_f32 v194, v192, v193"); block_sum(194, SC)
E(f"v_mul_f32 v194, {INV512}, v194")
E("v_sub_f32 v196, v192, v194"); E("v_mul_f32 v195, v196, v196"); E("v_sub_f32 v196, v193, v194"); E("v_fmac_f32 v195, v196, v196")
block_sum(195, SC+16)
E(f"v_mul_f32 v195, {INV512}, v195"); rbf(194); rbf(195)
E(f"v_add_f32 v195, {EPS}, v195"); rbf(195); E("v_sqrt_f32 v195, v195"); E("s_nop 0"); rbf(195)
E("v_rcp_f32 v196, v195"); E("s_nop 0")
for i in range(2):
    E(f"v_sub_f32 v197, v{192+i}, v194"); rbf(197); fdiv(192+i, 197, 195, 196, 198); rbf(192+i)
E("ds_write_b64 v144, v[192:193]")
bar()
E("v_lshlrev_b32 v144, 2, v0")
E("ds_read_b32 v176, v144"); E("ds_read_b32 v177, v144 offset:1024")
for k in range(8): E(f"v_mov_b32 v{160+k}, 0")
E("s_waitcnt lgkmcnt(0)")
for j in range(2):
    unpack8(168, 104+4*j)
    for k in range(8): E(f"v_fmac_f32 v{160+k}, v{176+j}, v{168+k}")
reduce8(None)
E("s_cmp_lg_u32 s60, 0"); E("s_cbranch_scc1 P4D")
rbf(176); E("v_lshlrev_b32 v140, 16, v140"); E("v_add_f32 v176, v176, v140"); rbf(176)
E("v_mul_f32 v177, v176, v176"); E("v_mul_f32 v177, v177, v176"); E("s_mov_b32 s69, 0x3d372713"); E("v_fma_f32 v177, v177, s69, v176")
E("v_mul_f32 v177, 0x40135761, v177"); E("v_exp_f32 v177, v177"); E("s_nop 0"); E("v_add_f32 v177, 1.0, v177")
E("v_rcp_f32 v177, v177"); E("s_nop 0"); E("v_fma_f32 v177, v177, -2.0, 1.0"); E("v_add_f32 v177, 1.0, v177")
E("v_mul_f32 v177, v177, v176"); E("v_mul_f32 v177, 0.5, v177"); rbf(177)
E("s_lshl_b32 s69, s2, 5"); E(f"s_add_u32 s69, s69, {H1}")
E("buffer_store_dword v177, v152, s[40:43], s69 offen sc1")
L("P4D")
publish(4)
E("s_cmp_ge_u32 s2, 64"); E("s_cbranch_scc1 END")
poll(None, 224, 4)
E("v_lshlrev_b32 v144, 2, v0"); E(f"s_mov_b32 s69, {H1}")
for j in range(7):
    E(f"buffer_load_dword v{176+j}, v144, s[40:43], s69 offen offset:{1024*(j%4)} sc1")
    if j == 3: E("s_add_u32 s69, s69, 4096")
E("v_and_b32 v150, 7, v0"); E("v_lshlrev_b32 v145, 2, v150"); E("s_lshl_b32 s69, s2, 5"); E(f"s_add_u32 s69, s69, {HH}")
E("buffer_load_dword v143, v145, s[40:43], s69 offen sc1")
for k in range(8): E(f"v_mov_b32 v{160+k}, 0")
E("s_waitcnt vmcnt(0)")
for j in range(7):
    unpack8(168, 112+4*j)
    for k in range(8): E(f"v_fmac_f32 v{160+k}, v{176+j}, v{168+k}")
reduce8(None)
E("s_cmp_lg_u32 s60, 0"); E("s_cbranch_scc1 END")
rbf(176); E("v_lshlrev_b32 v141, 16, v141"); E("v_add_f32 v176, v176, v141"); rbf(176)
E("v_add_f32 v176, v176, v143"); E("v_cvt_pk_bf16_f32 v176, v176, v176")
E("v_lshlrev_b32 v145, 1, v150"); E("s_lshl_b32 s69, s2, 4")
E("buffer_store_short v176, v145, s[56:59], s69 offen")
L("END"); E("s_endpgm")

hdr = open(f"cdna_kernels/{NAME}.s.ref").read().split("; Override")[0]
res = [hdr.rstrip("\n"), f"; @launch grid=(256,1,1) block=(256,1,1) lds={SC+32768+512}",
       '.amdgcn_target "amdgcn-amd-amdhsa--gfx950"', ".text"] + out
res.append(f""".section .rodata,"a"
.p2align 6
.amdhsa_kernel {n}
  .amdhsa_next_free_vgpr 256
  .amdhsa_next_free_sgpr 102
  .amdhsa_accum_offset 256
  .amdhsa_group_segment_fixed_size 0
  .amdhsa_kernarg_size 104
  .amdhsa_user_sgpr_count 2
  .amdhsa_user_sgpr_kernarg_segment_ptr 1
  .amdhsa_system_sgpr_workgroup_id_x 1
.end_amdhsa_kernel""")
path = sys.argv[1] if len(sys.argv) > 1 else f"cdna_kernels/{NAME}.s"
open(path, "w").write("\n".join(res) + "\n")
```

```python
import sys
NAME = "sequential_preLN__sliding_block_cached__dense_activation_gelu__decode"
out = []
def E(s): out.append("    " + s)
def L(s): out.append(s + ":")

Q   = 0
APO = 32768
APM = APO + 1048576
OP  = APM + 16384
HH  = OP + 131072
H1  = HH + 4096
WSN = 1 << 22
LOG2E = 0x3fb8aa3b; SCALE = 0x3db504f3; EPS = 0x3727c5ac; INV512 = 0x3b000000
SC = 8192

def srd(d, b, n):
    E(f"s_mov_b32 s{d}, s{b}"); E(f"s_and_b32 s{d+1}, s{b+1}, 0xffff")
    E(f"s_mov_b32 s{d+2}, {n}"); E(f"s_mov_b32 s{d+3}, 0x00020000")
def rbf(v):
    E(f"v_cvt_pk_bf16_f32 v{v}, v{v}, v{v}"); E(f"v_lshlrev_b32 v{v}, 16, v{v}")
def wave_reduce(op, v, st=90):
    for mode in ["quad_perm:[1,0,3,2]", "quad_perm:[2,3,0,1]", "row_half_mirror", "row_mirror"]:
        E("s_nop 1"); E(f"{op}_dpp v{v}, v{v}, v{v} {mode} row_mask:0xf bank_mask:0xf")
    E("s_nop 1")
    for i in range(4): E(f"v_readlane_b32 s{st+i}, v{v}, {16*i}")
    E("s_nop 1"); E(f"v_mov_b32 v{v}, s{st}")
    for i in range(1, 4): E(f"{op} v{v}, s{st+i}, v{v}")
def unpack8(dst, src):
    for i in range(4):
        E(f"v_lshlrev_b32 v{dst+2*i}, 16, v{src+i}"); E(f"v_and_b32 v{dst+2*i+1}, 0xffff0000, v{src+i}")
def fdiv(dst, num, den, rcp, t):
    E(f"v_mul_f32 v{dst}, v{num}, v{rcp}"); E(f"v_fma_f32 v{t}, -v{dst}, v{den}, v{num}"); E(f"v_fma_f32 v{dst}, v{t}, v{rcp}, v{dst}")
def bar():
    E("s_waitcnt lgkmcnt(0)"); E("s_barrier")

STAMP = len(sys.argv) > 2
stampn = [0]
def stamp():
    if not STAMP: return
    k = stampn[0]; stampn[0] += 1
    E("s_cmp_lg_u32 s60, 0"); E(f"s_cbranch_scc1 ST{k}")
    E("s_memrealtime s[94:95]"); E("s_waitcnt lgkmcnt(0)")
    E("v_mov_b32 v254, s94"); E("s_lshl_b32 s96, s2, 6"); E(f"s_add_u32 s96, s96, {3145728 + 4*k}")
    E("v_mov_b32 v255, 0")
    E("buffer_store_dword v254, v255, s[40:43], s96 offen")
    L(f"ST{k}")
pollcnt = [0]
def poll(base_sgpr_expr, count, val):
    pollcnt[0] += 1; n = pollcnt[0]
    E("s_cmp_lg_u32 s60, 0"); E(f"s_cbranch_scc1 PD{n}")
    E("s_mov_b32 s71, 0")
    if count <= 64:
        E(f"v_min_u32 v250, {count-1}, v1"); E("v_add_u32 v250, s70, v250")
        L(f"PL{n}")
        E("buffer_load_ubyte v251, v250, s[44:47], 0 offen sc1")
        E("s_waitcnt vmcnt(0)")
        E(f"v_cmp_le_u32 vcc, {val}, v251")
    else:
        nd = count // 4
        E(f"v_min_u32 v250, {nd-1}, v1"); E("v_lshlrev_b32 v250, 2, v250")
        L(f"PL{n}")
        E("buffer_load_dword v251, v250, s[44:47], 0 offen sc1")
        E("s_waitcnt vmcnt(0)")
        E("v_bfe_u32 v252, v251, 0, 8"); E("v_bfe_u32 v253, v251, 8, 8"); E("v_min_u32 v252, v252, v253")
        E("v_bfe_u32 v253, v251, 16, 8"); E("v_min_u32 v252, v252, v253")
        E("v_lshrrev_b32 v253, 24, v251"); E("v_min_u32 v252, v252, v253")
        E(f"v_cmp_le_u32 vcc, {val}, v252")
    E("s_nop 4")
    E("s_cmp_eq_u64 vcc, exec"); E(f"s_cbranch_scc1 PD{n}")
    E("s_add_u32 s71, s71, 1"); E("s_cmp_lt_u32 s71, 0x40000"); E(f"s_cbranch_scc1 PL{n}")
    L(f"PD{n}")
    E("s_barrier")
    stamp()
def publish(val, all_waves=True):
    pollcnt[0] += 1; n = pollcnt[0]
    E("s_waitcnt vmcnt(0)")
    if all_waves: E("s_barrier")
    E("s_cmp_lg_u32 s60, 0"); E(f"s_cbranch_scc1 PB{n}")
    E(f"v_mov_b32 v250, s2"); E(f"v_mov_b32 v251, {val}")
    E("v_cmp_eq_u32 vcc, 0, v1"); E("s_and_saveexec_b64 s[72:73], vcc")
    E("buffer_store_byte v251, v250, s[44:47], 0 offen sc1")
    E("s_mov_b64 exec, s[72:73]")
    L(f"PB{n}")
    stamp()

def get_nonce():
    pollcnt[0] += 1; n = pollcnt[0]
    E("s_mov_b32 s71, 0"); E("v_mov_b32 v250, 0")
    L(f"NL{n}")
    E("buffer_load_dword v251, v250, s[44:47], 0 offen sc1"); E("s_waitcnt vmcnt(0)")
    E("v_readfirstlane_b32 s97, v251"); E("s_nop 3")
    E("s_cmp_lg_u32 s97, 0"); E(f"s_cbranch_scc1 ND{n}")
    E("s_add_u32 s71, s71, 1"); E("s_cmp_lt_u32 s71, 0x40000"); E(f"s_cbranch_scc1 NL{n}")
    L(f"ND{n}")
def gather(loads, tags):
    pollcnt[0] += 1; n = pollcnt[0]
    E("s_mov_b32 s71, 0")
    L(f"GL{n}")
    for l in loads: E(l)
    E("s_waitcnt vmcnt(0)")
    E(f"v_xor_b32 v250, s97, v{tags[0]}")
    for t_ in tags[1:]:
        E(f"v_xor_b32 v251, s97, v{t_}"); E("v_or_b32 v250, v250, v251")
    E("v_cmp_eq_u32 vcc, 0, v250"); E("s_nop 4")
    E("s_cmp_eq_u64 vcc, exec"); E(f"s_cbranch_scc1 GD{n}")
    E("s_add_u32 s71, s71, 1"); E("s_cmp_lt_u32 s71, 0x20000"); E(f"s_cbranch_scc1 GL{n}")
    L(f"GD{n}")
    stamp()
def prefetch():
    E("v_lshlrev_b32 v144, 5, v4"); E("v_add_u32 v144, v144, v2"); E("v_lshlrev_b32 v144, 8, v144")
    E("v_lshl_add_u32 v144, v3, 4, v144"); E("v_add_u32 v145, 4096, v144")
    for t in range(2):
        for b in range(4):
            r = 24 + 16*t + 4*b
            E(f"buffer_load_dwordx4 v[{r}:{r+3}], v{144+t}, s[16:19], s64 offen offset:{64*b}")
    E("v_lshlrev_b32 v146, 5, v4"); E("v_add_u32 v146, v146, v3"); E("v_lshlrev_b32 v146, 8, v146")
    E("v_lshl_add_u32 v146, v2, 4, v146"); E("v_add_u32 v147, 4096, v146")
    for i in range(8):
        r = 56 + 4*i
        E(f"buffer_load_dwordx4 v[{r}:{r+3}], v{146 + i//4}, s[20:23], s64 offen offset:{1024*(i%4)}")
    E("v_lshrrev_b32 v148, 3, v0"); E("v_and_b32 v149, 7, v0")
    E("v_lshlrev_b32 v148, 10, v148"); E("v_lshl_add_u32 v148, v149, 4, v148")
    for j in range(4):
        E(f"buffer_load_dwordx4 v[{88+4*j}:{91+4*j}], v148, s[28:31], s{65+j} offen")
    E("s_movk_i32 s69, 3584"); E("v_mul_lo_u32 v148, v0, s69"); E("v_add_u32 v149, 256*3584, v148")
    E("s_lshl_b32 s69, s2, 4")
    E("buffer_load_dwordx4 v[104:107], v148, s[32:35], s69 offen")
    E("buffer_load_dwordx4 v[108:111], v149, s[32:35], s69 offen")
    E("v_lshlrev_b32 v148, 10, v0")
    for j in range(7):
        E(f"s_add_u32 s74, s69, {j*262144}")
        E(f"buffer_load_dwordx4 v[{112+4*j}:{115+4*j}], v148, s[36:39], s74 offen")
    E("v_and_b32 v148, 7, v0"); E("v_lshlrev_b32 v148, 1, v148")
    E("buffer_load_ushort v140, v148, s[48:51], s69 offen")
    E("buffer_load_ushort v141, v148, s[52:55], s69 offen")
    E("v_lshlrev_b32 v148, 2, v0")
    E("buffer_load_dword v142, v148, s[12:15], 0 offen")

def reduce8(final):
    E("v_lshlrev_b32 v150, 5, v0")
    E(f"ds_write_b128 v150, v[160:163] offset:{SC}"); E(f"ds_write_b128 v150, v[164:167] offset:{SC+16}")
    bar()
    E("v_and_b32 v150, 7, v0"); E("v_lshrrev_b32 v151, 3, v0")
    E("v_lshlrev_b32 v152, 8, v151"); E("v_lshl_add_u32 v152, v150, 2, v152")
    for r in range(8): E(f"ds_read_b32 v{168+r}, v152 offset:{SC+32*r}")
    E("s_waitcnt lgkmcnt(0)")
    for r in range(1, 8): E(f"v_add_f32 v168, v168, v{168+r}")
    E("v_lshlrev_b32 v152, 2, v0")
    E(f"ds_write_b32 v152, v168 offset:{SC+8192}")
    bar()
    E("v_lshlrev_b32 v152, 2, v150")
    for r in range(32): E(f"ds_read_b32 v{176+r}, v152 offset:{SC+8192+32*r}")
    E("s_waitcnt lgkmcnt(0)")
    for r in range(1, 32): E(f"v_add_f32 v176, v176, v{176+r}")

n = NAME + "_kernel"
out.append(f".globl {n}"); out.append(".p2align 8"); out.append(f".type {n},@function"); L(n)
E("s_cmp_ge_u32 s2, 256"); E("s_cbranch_scc1 END")
E("s_load_dwordx16 s[64:79], s[0:1], 0")
E("s_load_dwordx8 s[80:87], s[0:1], 64")
E("s_load_dwordx2 s[88:89], s[0:1], 96")
E("s_waitcnt lgkmcnt(0)")
srd(12, 64, 1024); srd(16, 66, 0x8000000); srd(20, 68, 0x8000000); srd(24, 70, 512*4096*2); srd(28, 72, 4096*512*2)
srd(32, 76, 512*1792*2); srd(36, 80, 1792*512*2); srd(40, 88, WSN); srd(44, 86, 256); srd(48, 78, 3584); srd(52, 82, 1024); srd(56, 84, 1024)
E("v_and_b32 v1, 63, v0"); E("v_and_b32 v2, 15, v1"); E("v_lshrrev_b32 v3, 4, v1"); E("v_lshrrev_b32 v4, 6, v0")
E("s_nop 0"); E("v_readfirstlane_b32 s60, v4")
E("s_lshr_b32 s61, s2, 5"); E("s_and_b32 s62, s2, 31")
E("s_or_b32 s63, s2, s60"); E("s_cmp_lg_u32 s63, 0"); E("s_cbranch_scc1 NON")
E("s_memrealtime s[94:95]"); E("s_waitcnt lgkmcnt(0)"); E("s_or_b32 s94, s94, 1")
E("v_mov_b32 v250, 0"); E("v_mov_b32 v251, s94"); E("buffer_store_dword v251, v250, s[44:47], 0 offen sc1")
L("NON")
stamp()
E("v_lshlrev_b32 v144, 4, v1")
E("buffer_load_dwordx4 v[156:159], v144, s[12:15], 0 offen")
E("v_lshrrev_b32 v5, 1, v0"); E("v_and_b32 v6, 1, v0")
E("v_lshlrev_b32 v145, 13, v5"); E("v_lshl_add_u32 v145, v6, 4, v145")
E("s_lshl_b32 s63, s2, 5")
for j in range(4):
    E(f"s_add_u32 s64, s63, {j*128*8192}")
    E(f"buffer_load_dwordx4 v[{8+4*j}:{11+4*j}], v145, s[24:27], s64 offen")
E("s_lshl_b32 s64, s61, 24"); E("s_lshl_b32 s65, s62, 15"); E("s_add_u32 s64, s64, s65"); E(f"s_add_u32 s64, s64, {61440*256}")
E("s_lshr_b32 s65, s2, 3"); E("s_lshl_b32 s65, s65, 17"); E("s_and_b32 s66, s2, 7"); E("s_lshl_b32 s66, s66, 7"); E("s_add_u32 s65, s65, s66")
for j in range(1, 4): E(f"s_add_u32 s{65+j}, s65, {j*32768}")
E("s_waitcnt vmcnt(0)" ) if False else None
E("s_waitcnt vmcnt(4)")
stamp()
unpack8(160, 156)
t = 170
E(f"v_add_f32 v{t}, v160, v161")
for i in range(2, 8): E(f"v_add_f32 v{t}, v{t}, v{160+i}")
wave_reduce("v_add_f32", t)
E(f"v_mul_f32 v{t}, {INV512}, v{t}"); E(f"v_mov_b32 v{t+1}, 0")
for i in range(8):
    E(f"v_sub_f32 v{t+2}, v{160+i}, v{t}"); E(f"v_fmac_f32 v{t+1}, v{t+2}, v{t+2}")
wave_reduce("v_add_f32", t+1)
E(f"v_mul_f32 v{t+1}, {INV512}, v{t+1}")
rbf(t); rbf(t+1); E(f"v_add_f32 v{t+1}, {EPS}, v{t+1}"); rbf(t+1)
E(f"v_sqrt_f32 v{t+1}, v{t+1}"); E("s_nop 0"); rbf(t+1); E(f"v_rcp_f32 v{t+2}, v{t+1}"); E("s_nop 0")
for i in range(8):
    E(f"v_sub_f32 v{t+3}, v{160+i}, v{t}"); rbf(t+3); fdiv(160+i, t+3, t+1, t+2, t+4); rbf(160+i)
E("v_lshlrev_b32 v144, 5, v1")
E("ds_write_b128 v144, v[160:163]"); E("ds_write_b128 v144, v[164:167] offset:16")
E("s_waitcnt lgkmcnt(0)")
E("v_lshlrev_b32 v144, 2, v5")
for j in range(4): E(f"ds_read_b32 v{176+j}, v144 offset:{512*j}")
for k in range(8): E(f"v_mov_b32 v{160+k}, 0")
E("s_waitcnt vmcnt(0) lgkmcnt(0)")
stamp()

for j in range(4):
    unpack8(168, 8+4*j)
    for k in range(8): E(f"v_fmac_f32 v{160+k}, v{176+j}, v{168+k}")
E("v_lshlrev_b32 v144, 6, v5"); E("v_lshl_add_u32 v144, v6, 5, v144")
E(f"ds_write_b128 v144, v[160:163] offset:{SC}"); E(f"ds_write_b128 v144, v[164:167] offset:{SC+16}")
bar()
E("v_and_b32 v145, 15, v0"); E("v_lshrrev_b32 v146, 4, v0")
E("v_lshlrev_b32 v144, 9, v146"); E("v_lshl_add_u32 v144, v145, 2, v144")
for r in range(8): E(f"ds_read_b32 v{168+r}, v144 offset:{SC+64*r}")
E("s_waitcnt lgkmcnt(0)")
for r in range(1, 8): E(f"v_add_f32 v168, v168, v{168+r}")
E("v_lshlrev_b32 v144, 2, v0"); E(f"ds_write_b32 v144, v168 offset:{SC+8192}")
bar()
E("s_cmp_lg_u32 s60, 0"); E("s_cbranch_scc1 P1D")
E("v_lshlrev_b32 v144, 2, v145")
for r in range(16): E(f"ds_read_b32 v{176+r}, v144 offset:{SC+8192+64*r}")
E("s_waitcnt lgkmcnt(0)")
for r in range(1, 16): E(f"v_add_f32 v176, v176, v{176+r}")
get_nonce()
E("s_lshl_b32 s69, s2, 7"); E("v_lshlrev_b32 v144, 1, v144"); E("v_mov_b32 v177, s97")
E("buffer_store_dwordx2 v[176:177], v144, s[40:43], s69 offen sc1")
stamp()
prefetch()
E("s_branch P1E")
L("P1D")
prefetch()
get_nonce()
L("P1E")
E("v_lshlrev_b32 v144, 4, v0"); E("s_lshl_b32 s69, s61, 12")
gather(["buffer_load_dwordx4 v[160:163], v144, s[40:43], s69 offen sc1"], [161, 163])
E("v_cvt_pk_bf16_f32 v160, v160, v162"); E("v_lshlrev_b32 v144, 2, v0"); E("ds_write_b32 v144, v160")
bar()
E("v_and_b32 v7, 3, v1"); E("v_lshlrev_b32 v144, 8, v7"); E("v_lshl_add_u32 v144, v3, 4, v144")
for b in range(4): E(f"ds_read_b128 v[{160+4*b}:{163+4*b}], v144 offset:{64*b}")
for k in range(8): E(f"v_mov_b32 v{176+k}, 0")
E("s_waitcnt lgkmcnt(0)")
for tt in range(2):
    for b in range(4):
        r = 24 + 16*tt + 4*b
        E(f"v_mfma_f32_16x16x32_bf16 v[{176+4*tt}:{179+4*tt}], v[{r}:{r+3}], v[{160+4*b}:{163+4*b}], v[{176+4*tt}:{179+4*tt}]")
E("s_nop 7"); E("s_nop 1")
E(f"s_mov_b32 s76, {SCALE}"); E(f"s_mov_b32 s77, {LOG2E}")
for k in range(8):
    rbf(176+k); E(f"v_mul_f32 v{176+k}, s76, v{176+k}"); rbf(176+k)
E("v_lshlrev_b32 v144, 5, v4"); E("v_lshl_add_u32 v144, v3, 2, v144"); E("v_lshlrev_b32 v144, 4, v144"); E("v_lshl_add_u32 v144, v7, 2, v144")
for tt in range(2):
    for i in range(4): E(f"ds_write_b32 v144, v{176+4*tt+i} offset:{1024 + tt*256 + i*16}")
bar()
E("v_lshlrev_b32 v144, 4, v1")
E("ds_read_b128 v[176:179], v144 offset:1024"); E("ds_read_b128 v[180:183], v144 offset:2048")
E("s_waitcnt lgkmcnt(0)")
for h in range(4): E(f"v_max_f32 v{176+h}, v{176+h}, v{180+h}")
for h in range(4): wave_reduce("v_max_f32", 176+h)
for h in range(4): E(f"v_mul_f32 v{180+h}, s77, v{176+h}")
E("v_lshlrev_b32 v144, 5, v4"); E("v_add_u32 v144, v144, v3"); E("v_lshlrev_b32 v144, 4, v144")
for i in range(8): E(f"ds_read_b128 v[{192+4*i}:{195+4*i}], v144 offset:{1024 + 64*i}")
for k in range(32): E(f"v_mov_b32 v{224+k}, 0")
for h in range(4): E(f"v_mov_b32 v{184+h}, 0")
E("s_waitcnt lgkmcnt(0)")
for i in range(8):
    unpack8(160, 56+4*i)
    for h in range(4): E(f"v_fma_f32 v{188+h}, v{192+4*i+h}, s77, -v{180+h}")
    for h in range(4): E(f"v_exp_f32 v{188+h}, v{188+h}")
    E("s_nop 0")
    for h in range(4):
        E(f"v_add_f32 v{184+h}, v{184+h}, v{188+h}")
        for j in range(8): E(f"v_fmac_f32 v{224+8*h+j}, v{188+h}, v{160+j}")
R0 = SC; LR = SC + 32768
E("v_lshl_add_u32 v145, v4, 2, v3"); E("v_lshlrev_b32 v144, 11, v145"); E("v_lshl_add_u32 v144, v2, 5, v144")
for h in range(4):
    E(f"ds_write_b128 v144, v[{224+8*h}:{227+8*h}] offset:{R0 + 512*h}")
    E(f"ds_write_b128 v144, v[{228+8*h}:{231+8*h}] offset:{R0 + 512*h + 16}")
E("v_lshlrev_b32 v144, 4, v145"); E(f"ds_write_b128 v144, v[184:187] offset:{LR}")
E("v_mov_b32 v144, 0"); E(f"ds_write_b128 v144, v[176:179] offset:{LR+256}")
bar()
E("v_lshlrev_b32 v144, 3, v0")
for r in range(16): E(f"ds_read_b64 v[{192+2*r}:{193+2*r}], v144 offset:{R0 + 2048*r}")
E("v_and_b32 v145, 3, v0"); E("v_lshlrev_b32 v145, 2, v145")
for r in range(16): E(f"ds_read_b32 v{224+r}, v145 offset:{LR+16*r}")
E(f"ds_read_b32 v240, v145 offset:{LR+256}")
E("s_waitcnt lgkmcnt(0)")
for r in range(1, 16):
    E(f"v_add_f32 v192, v192, v{192+2*r}"); E(f"v_add_f32 v193, v193, v{193+2*r}"); E(f"v_add_f32 v224, v224, v{224+r}")
E("v_mov_b32 v242, v224"); E("v_mov_b32 v241, s97"); E("v_mov_b32 v243, s97")
E("v_mov_b32 v194, v193"); E("v_mov_b32 v193, s97"); E("v_mov_b32 v195, s97")
E("v_lshlrev_b32 v144, 15, v4"); E("v_lshl_add_u32 v144, v1, 4, v144")
E("s_lshl_b32 s68, s61, 17"); E("s_lshl_b32 s69, s62, 10"); E("s_add_u32 s68, s68, s69"); E(f"s_add_u32 s68, s68, {APO}")
E("buffer_store_dwordx4 v[192:195], v144, s[40:43], s68 offen sc1")
E("v_lshlrev_b32 v144, 7, v145")
E("s_lshl_b32 s68, s61, 11"); E("s_lshl_b32 s69, s62, 4"); E("s_add_u32 s68, s68, s69"); E(f"s_add_u32 s68, s68, {APM}")
E("buffer_store_dwordx4 v[240:243], v144, s[40:43], s68 offen sc1")
stamp()
E("s_lshr_b32 s68, s2, 3")
E("v_and_b32 v144, 31, v1"); E("v_lshlrev_b32 v149, 4, v144"); E("v_lshlrev_b32 v144, 3, v144")
E("s_lshl_b32 s69, s68, 9"); E(f"s_add_u32 s69, s69, {APM}")
E("v_lshrrev_b32 v145, 7, v0"); E("v_and_b32 v146, 127, v0")
E("v_lshlrev_b32 v147, 14, v145"); E("v_lshl_add_u32 v147, v146, 3, v147")
for q in range(1, 4): E(f"v_add_u32 v{151+q}, {4096*q}, v147")
E("v_mov_b32 v151, v147")
E("s_lshl_b32 s70, s68, 15"); E(f"s_add_u32 s70, s70, {APO}")
lds_ = ["buffer_load_dwordx4 v[156:159], v149, s[40:43], s69 offen sc1"]
for s_ in range(16): lds_.append(f"buffer_load_dwordx2 v[{192+2*s_}:{193+2*s_}], v{151 + s_//4}, s[40:43], s70 offen offset:{1024*(s_%4)} sc1")
gather(lds_, [157, 159] + [193+2*s_ for s_ in range(16)])
E("v_mov_b32 v160, v156"); E("v_mov_b32 v161, v158")
E("v_mov_b32 v162, v160"); wave_reduce("v_max_f32", 162)
E("v_sub_f32 v163, v160, v162"); E("v_mul_f32 v163, s77, v163"); E("v_exp_f32 v163, v163"); E("s_nop 0")
E("v_mul_f32 v162, v163, v161"); wave_reduce("v_add_f32", 162)
E("v_mul_f32 v162, 0.5, v162"); E("v_rcp_f32 v164, v162"); E("s_nop 0")
fdiv(165, 163, 162, 164, 166)
E("v_lshrrev_b32 v144, 1, v144"); E("ds_write_b32 v144, v165 offset:1024"); E("s_waitcnt lgkmcnt(0)")
E("v_lshlrev_b32 v144, 6, v145")
for q in range(4): E(f"ds_read_b128 v[{228+4*q}:{231+4*q}], v144 offset:{1024+16*q}")
E("s_waitcnt vmcnt(0) lgkmcnt(0)")
E("v_mul_f32 v168, v192, v228")
for s in range(1, 16): E(f"v_fmac_f32 v168, v{192+2*s}, v{228+s}")
E("v_lshlrev_b32 v144, 2, v0"); E("ds_write_b32 v144, v168")
bar()
E("v_lshrrev_b32 v5, 3, v0"); E("v_and_b32 v6, 7, v0")
E("v_lshlrev_b32 v144, 2, v5")
for j in range(4):
    E(f"ds_read_b32 v{176+j}, v144 offset:{128*j}"); E(f"ds_read_b32 v{180+j}, v144 offset:{512+128*j}")
for k in range(8): E(f"v_mov_b32 v{160+k}, 0")
E("s_waitcnt lgkmcnt(0)")
for j in range(4):
    E(f"v_add_f32 v{176+j}, v{176+j}, v{180+j}"); rbf(176+j)
for j in range(4):
    unpack8(168, 88+4*j)
    for k in range(8): E(f"v_fmac_f32 v{160+k}, v{176+j}, v{168+k}")
E("v_lshlrev_b32 v144, 8, v5"); E("v_lshl_add_u32 v144, v6, 5, v144")
E(f"ds_write_b128 v144, v[160:163] offset:{SC}"); E(f"ds_write_b128 v144, v[164:167] offset:{SC+16}")
bar()
E("v_lshlrev_b32 v144, 11, v4"); E("v_lshl_add_u32 v144, v1, 2, v144")
for r in range(8): E(f"ds_read_b32 v{168+r}, v144 offset:{SC+256*r}")
E("s_waitcnt lgkmcnt(0)")
for r in range(1, 8): E(f"v_add_f32 v168, v168, v{168+r}")
E("v_lshlrev_b32 v144, 2, v0"); E(f"ds_write_b32 v144, v168 offset:{SC+8192}")
bar()
E("s_cmp_lg_u32 s60, 0"); E("s_cbranch_scc1 P3D")
for r in range(4): E(f"ds_read_b32 v{176+r}, v144 offset:{SC+8192+256*r}")
E("s_waitcnt lgkmcnt(0)")
for r in range(1, 4): E(f"v_add_f32 v176, v176, v{176+r}")
E("s_lshl_b32 s69, s2, 9"); E(f"s_add_u32 s69, s69, {OP}"); E("v_lshlrev_b32 v144, 1, v144"); E("v_mov_b32 v177, s97")
E("buffer_store_dwordx2 v[176:177], v144, s[40:43], s69 offen sc1")
stamp()
L("P3D")
E("s_cmp_ge_u32 s2, 224"); E("s_cbranch_scc1 END")
E("v_lshlrev_b32 v145, 4, v0")
E("v_mov_b32 v146, 0"); E("v_mov_b32 v147, 0")
for half in range(4):
    lds_ = []
    for r in range(8):
        lds_.append(f"s_mov_b32 s69, {OP + (8*half + r)*4096}")
        lds_.append(f"buffer_load_dwordx4 v[{192+4*r}:{195+4*r}], v145, s[40:43], s69 offen sc1")
    gather(lds_, [193+2*i for i in range(16)])
    for r in range(8):
        E(f"v_add_f32 v146, v146, v{192+4*r}"); E(f"v_add_f32 v147, v147, v{194+4*r}")
E("v_mov_b32 v192, v146"); E("v_mov_b32 v193, v147")
E("v_lshlrev_b32 v144, 3, v0")
rbf(192); rbf(193)
E("v_lshlrev_b32 v146, 16, v142"); E("v_and_b32 v147, 0xffff0000, v142")
E("v_add_f32 v192, v192, v146"); E("v_add_f32 v193, v193, v147"); rbf(192); rbf(193)
E("s_cmp_lg_u32 s2, 0"); E("s_cbranch_scc1 NOH")
E(f"s_mov_b32 s69, {HH}"); E("v_mov_b32 v196, v192"); E("v_mov_b32 v197, s97"); E("v_mov_b32 v198, v193"); E("v_mov_b32 v199, s97")
E("buffer_store_dwordx4 v[196:199], v145, s[40:43], s69 offen sc1"); E("s_nop 1")
L("NOH")
def block_sum(v, off):
    wave_reduce("v_add_f32", v)
    E("v_lshlrev_b32 v146, 2, v4"); E(f"ds_write_b32 v146, v{v} offset:{off}")
    bar()
    E("v_mov_b32 v146, 0"); E(f"ds_read_b128 v[148:151], v146 offset:{off}"); E("s_waitcnt lgkmcnt(0)")
    E(f"v_add_f32 v{v}, v148, v149"); E(f"v_add_f32 v{v}, v{v}, v150"); E(f"v_add_f32 v{v}, v{v}, v151")
E("v_add_f32 v194, v192, v193"); block_sum(194, SC)
E(f"v_mul_f32 v194, {INV512}, v194")
E("v_sub_f32 v196, v192, v194"); E("v_mul_f32 v195, v196, v196"); E("v_sub_f32 v196, v193, v194"); E("v_fmac_f32 v195, v196, v196")
block_sum(195, SC+16)
E(f"v_mul_f32 v195, {INV512}, v195"); rbf(194); rbf(195)
E(f"v_add_f32 v195, {EPS}, v195"); rbf(195); E("v_sqrt_f32 v195, v195"); E("s_nop 0"); rbf(195)
E("v_rcp_f32 v196, v195"); E("s_nop 0")
for i in range(2):
    E(f"v_sub_f32 v197, v{192+i}, v194"); rbf(197); fdiv(192+i, 197, 195, 196, 198); rbf(192+i)
E("ds_write_b64 v144, v[192:193]")
bar()
E("v_lshlrev_b32 v144, 2, v0")
E("ds_read_b32 v176, v144"); E("ds_read_b32 v177, v144 offset:1024")
for k in range(8): E(f"v_mov_b32 v{160+k}, 0")
E("s_waitcnt lgkmcnt(0)")
for j in range(2):
    unpack8(168, 104+4*j)
    for k in range(8): E(f"v_fmac_f32 v{160+k}, v{176+j}, v{168+k}")
reduce8(None)
E("s_cmp_lg_u32 s60, 0"); E("s_cbranch_scc1 P4D")
rbf(176); E("v_lshlrev_b32 v140, 16, v140"); E("v_add_f32 v176, v176, v140"); rbf(176)
E("v_mul_f32 v177, v176, v176"); E("v_mul_f32 v177, v177, v176"); E("s_mov_b32 s69, 0x3d372713"); E("v_fma_f32 v177, v177, s69, v176")
E("v_mul_f32 v177, 0x40135761, v177"); E("v_exp_f32 v177, v177"); E("s_nop 0"); E("v_add_f32 v177, 1.0, v177")
E("v_rcp_f32 v177, v177"); E("s_nop 0"); E("v_fma_f32 v177, v177, -2.0, 1.0"); E("v_add_f32 v177, 1.0, v177")
E("v_mul_f32 v177, v177, v176"); E("v_mul_f32 v177, 0.5, v177"); rbf(177)
E("s_lshl_b32 s69, s2, 6"); E(f"s_add_u32 s69, s69, {H1}"); E("v_mov_b32 v178, s97"); E("v_mov_b32 v176, v177"); E("v_mov_b32 v177, v178"); E("v_lshlrev_b32 v152, 1, v152")
E("buffer_store_dwordx2 v[176:177], v152, s[40:43], s69 offen sc1")
stamp()
L("P4D")
E("s_cmp_ge_u32 s2, 64"); E("s_cbranch_scc1 END")
E("v_lshlrev_b32 v144, 3, v0")
E("v_and_b32 v150, 7, v0"); E("v_lshlrev_b32 v145, 3, v150"); E("s_lshl_b32 s70, s2, 6"); E(f"s_add_u32 s70, s70, {HH}")
lds_ = ["buffer_load_dwordx2 v[194:195], v145, s[40:43], s70 offen sc1"]
for j in range(7):
    lds_.append(f"s_mov_b32 s69, {H1 + 2048*j}")
    lds_.append(f"buffer_load_dwordx2 v[{176+2*j}:{177+2*j}], v144, s[40:43], s69 offen sc1")
gather(lds_, [195] + [177+2*j for j in range(7)])
E("v_mov_b32 v143, v194")
for k in range(8): E(f"v_mov_b32 v{160+k}, 0")
for j in range(7):
    unpack8(168, 112+4*j)
    for k in range(8): E(f"v_fmac_f32 v{160+k}, v{176+2*j}, v{168+k}")
reduce8(None)
E("s_cmp_lg_u32 s60, 0"); E("s_cbranch_scc1 END")
rbf(176); E("v_lshlrev_b32 v141, 16, v141"); E("v_add_f32 v176, v176, v141"); rbf(176)
E("v_add_f32 v176, v176, v143"); E("v_cvt_pk_bf16_f32 v176, v176, v176")
E("v_lshlrev_b32 v145, 1, v150"); E("s_lshl_b32 s69, s2, 4")
E("buffer_store_short v176, v145, s[56:59], s69 offen")
stamp()
L("END"); E("s_endpgm")

hdr = open(f"cdna_kernels/{NAME}.s.ref").read().split("; Override")[0]
res = [hdr.rstrip("\n"), f"; @launch grid=(256,1,1) block=(256,1,1) lds={SC+32768+512}",
       '.amdgcn_target "amdgcn-amd-amdhsa--gfx950"', ".text"] + out
res.append(f""".section .rodata,"a"
.p2align 6
.amdhsa_kernel {n}
  .amdhsa_next_free_vgpr 256
  .amdhsa_next_free_sgpr 102
  .amdhsa_accum_offset 256
  .amdhsa_group_segment_fixed_size 0
  .amdhsa_kernarg_size 104
  .amdhsa_user_sgpr_count 2
  .amdhsa_user_sgpr_kernarg_segment_ptr 1
  .amdhsa_system_sgpr_workgroup_id_x 1
.end_amdhsa_kernel""")
path = sys.argv[1] if len(sys.argv) > 1 else f"cdna_kernels/{NAME}.s"
open(path, "w").write("\n".join(res) + "\n")
```

```python
import sys
NAME = "sequential_preLN__sliding_block_cached__dense_activation_gelu__decode"
out = []
def E(s): out.append("    " + s)
def L(s): out.append(s + ":")

Q   = 0
APO = 32768
APM = APO + 1048576
OP  = APM + 16384
HH  = OP + 131072
H1  = HH + 4096
WSN = 1 << 22
LOG2E = 0x3fb8aa3b; SCALE = 0x3db504f3; EPS = 0x3727c5ac; INV512 = 0x3b000000
SC = 8192

def srd(d, b, n):
    E(f"s_mov_b32 s{d}, s{b}"); E(f"s_and_b32 s{d+1}, s{b+1}, 0xffff")
    E(f"s_mov_b32 s{d+2}, {n}"); E(f"s_mov_b32 s{d+3}, 0x00020000")
def rbf(v):
    E(f"v_cvt_pk_bf16_f32 v{v}, v{v}, v{v}"); E(f"v_lshlrev_b32 v{v}, 16, v{v}")
def wave_reduce(op, v, st=90):
    for mode in ["quad_perm:[1,0,3,2]", "quad_perm:[2,3,0,1]", "row_half_mirror", "row_mirror"]:
        E("s_nop 1"); E(f"{op}_dpp v{v}, v{v}, v{v} {mode} row_mask:0xf bank_mask:0xf")
    E("s_nop 1")
    for i in range(4): E(f"v_readlane_b32 s{st+i}, v{v}, {16*i}")
    E("s_nop 1"); E(f"v_mov_b32 v{v}, s{st}")
    for i in range(1, 4): E(f"{op} v{v}, s{st+i}, v{v}")
def unpack8(dst, src):
    for i in range(4):
        E(f"v_lshlrev_b32 v{dst+2*i}, 16, v{src+i}"); E(f"v_and_b32 v{dst+2*i+1}, 0xffff0000, v{src+i}")
def fdiv(dst, num, den, rcp, t):
    E(f"v_mul_f32 v{dst}, v{num}, v{rcp}"); E(f"v_fma_f32 v{t}, -v{dst}, v{den}, v{num}"); E(f"v_fma_f32 v{dst}, v{t}, v{rcp}, v{dst}")
def bar():
    E("s_waitcnt lgkmcnt(0)"); E("s_barrier")

STAMP = len(sys.argv) > 2
stampn = [0]
def stamp():
    if not STAMP: return
    k = stampn[0]; stampn[0] += 1
    E("s_cmp_lg_u32 s60, 0"); E(f"s_cbranch_scc1 ST{k}")
    E("s_memrealtime s[94:95]"); E("s_waitcnt lgkmcnt(0)")
    E("v_mov_b32 v254, s94"); E("s_lshl_b32 s96, s2, 6"); E(f"s_add_u32 s96, s96, {3145728 + 4*k}")
    E("v_mov_b32 v255, 0")
    E("buffer_store_dword v254, v255, s[40:43], s96 offen")
    L(f"ST{k}")
pollcnt = [0]
def poll(base_sgpr_expr, count, val):
    pollcnt[0] += 1; n = pollcnt[0]
    E("s_cmp_lg_u32 s60, 0"); E(f"s_cbranch_scc1 PD{n}")
    E("s_mov_b32 s71, 0")
    if count <= 64:
        E(f"v_min_u32 v250, {count-1}, v1"); E("v_add_u32 v250, s70, v250")
        L(f"PL{n}")
        E("buffer_load_ubyte v251, v250, s[44:47], 0 offen sc1")
        E("s_waitcnt vmcnt(0)")
        E(f"v_cmp_le_u32 vcc, {val}, v251")
    else:
        nd = count // 4
        E(f"v_min_u32 v250, {nd-1}, v1"); E("v_lshlrev_b32 v250, 2, v250")
        L(f"PL{n}")
        E("buffer_load_dword v251, v250, s[44:47], 0 offen sc1")
        E("s_waitcnt vmcnt(0)")
        E("v_bfe_u32 v252, v251, 0, 8"); E("v_bfe_u32 v253, v251, 8, 8"); E("v_min_u32 v252, v252, v253")
        E("v_bfe_u32 v253, v251, 16, 8"); E("v_min_u32 v252, v252, v253")
        E("v_lshrrev_b32 v253, 24, v251"); E("v_min_u32 v252, v252, v253")
        E(f"v_cmp_le_u32 vcc, {val}, v252")
    E("s_nop 4")
    E("s_cmp_eq_u64 vcc, exec"); E(f"s_cbranch_scc1 PD{n}")
    E("s_add_u32 s71, s71, 1"); E("s_cmp_lt_u32 s71, 0x40000"); E(f"s_cbranch_scc1 PL{n}")
    L(f"PD{n}")
    E("s_barrier")
    stamp()
def publish(val, all_waves=True):
    pollcnt[0] += 1; n = pollcnt[0]
    E("s_waitcnt vmcnt(0)")
    if all_waves: E("s_barrier")
    E("s_cmp_lg_u32 s60, 0"); E(f"s_cbranch_scc1 PB{n}")
    E(f"v_mov_b32 v250, s2"); E(f"v_mov_b32 v251, {val}")
    E("v_cmp_eq_u32 vcc, 0, v1"); E("s_and_saveexec_b64 s[72:73], vcc")
    E("buffer_store_byte v251, v250, s[44:47], 0 offen sc1")
    E("s_mov_b64 exec, s[72:73]")
    L(f"PB{n}")
    stamp()

def get_nonce():
    pollcnt[0] += 1; n = pollcnt[0]
    E("s_mov_b32 s71, 0"); E("v_mov_b32 v250, 0")
    L(f"NL{n}")
    E("buffer_load_dword v251, v250, s[44:47], 0 offen sc1"); E("s_waitcnt vmcnt(0)")
    E("v_readfirstlane_b32 s97, v251"); E("s_nop 3")
    E("s_cmp_lg_u32 s97, 0"); E(f"s_cbranch_scc1 ND{n}")
    E("s_add_u32 s71, s71, 1"); E("s_cmp_lt_u32 s71, 0x40000"); E(f"s_cbranch_scc1 NL{n}")
    L(f"ND{n}")
def gather(loads, tags):
    pollcnt[0] += 1; n = pollcnt[0]
    E("s_mov_b32 s71, 0")
    L(f"GL{n}")
    for l in loads: E(l)
    E("s_waitcnt vmcnt(0)")
    E(f"v_xor_b32 v250, s97, v{tags[0]}")
    for t_ in tags[1:]:
        E(f"v_xor_b32 v251, s97, v{t_}"); E("v_or_b32 v250, v250, v251")
    E("v_cmp_eq_u32 vcc, 0, v250"); E("s_nop 4")
    E("s_cmp_eq_u64 vcc, exec"); E(f"s_cbranch_scc1 GD{n}")
    E("s_add_u32 s71, s71, 1"); E("s_cmp_lt_u32 s71, 0x20000"); E(f"s_cbranch_scc1 GL{n}")
    L(f"GD{n}")
    stamp()
def prefetch():
    E("v_lshlrev_b32 v144, 5, v4"); E("v_add_u32 v144, v144, v2"); E("v_lshlrev_b32 v144, 8, v144")
    E("v_lshl_add_u32 v144, v3, 4, v144"); E("v_add_u32 v145, 4096, v144")
    for t in range(2):
        for b in range(4):
            r = 24 + 16*t + 4*b
            E(f"buffer_load_dwordx4 v[{r}:{r+3}], v{144+t}, s[16:19], s64 offen offset:{64*b}")
    E("v_lshlrev_b32 v146, 5, v4"); E("v_add_u32 v146, v146, v3"); E("v_lshlrev_b32 v146, 8, v146")
    E("v_lshl_add_u32 v146, v2, 4, v146"); E("v_add_u32 v147, 4096, v146")
    for i in range(8):
        r = 56 + 4*i
        E(f"buffer_load_dwordx4 v[{r}:{r+3}], v{146 + i//4}, s[20:23], s64 offen offset:{1024*(i%4)}")
def prefetch2():
    E("s_lshr_b32 s65, s2, 3"); E("s_lshl_b32 s65, s65, 17"); E("s_and_b32 s66, s2, 7"); E("s_lshl_b32 s66, s66, 7"); E("s_add_u32 s65, s65, s66")
    for j in range(1, 4): E(f"s_add_u32 s{65+j}, s65, {j*32768}")
    E("v_lshrrev_b32 v148, 3, v0"); E("v_and_b32 v149, 7, v0")
    E("v_lshlrev_b32 v148, 10, v148"); E("v_lshl_add_u32 v148, v149, 4, v148")
    for j in range(4):
        E(f"buffer_load_dwordx4 v[{88+4*j}:{91+4*j}], v148, s[28:31], s{65+j} offen")
    E("s_movk_i32 s69, 3584"); E("v_mul_lo_u32 v148, v0, s69"); E("v_add_u32 v149, 256*3584, v148")
    E("s_lshl_b32 s69, s2, 4")
    E("buffer_load_dwordx4 v[104:107], v148, s[32:35], s69 offen")
    E("buffer_load_dwordx4 v[108:111], v149, s[32:35], s69 offen")
    E("v_lshlrev_b32 v148, 10, v0")
    for j in range(7):
        E(f"s_add_u32 s74, s69, {j*262144}")
        E(f"buffer_load_dwordx4 v[{112+4*j}:{115+4*j}], v148, s[36:39], s74 offen")
    E("v_and_b32 v148, 7, v0"); E("v_lshlrev_b32 v148, 1, v148")
    E("buffer_load_ushort v140, v148, s[48:51], s69 offen")
    E("buffer_load_ushort v141, v148, s[52:55], s69 offen")
    E("v_lshlrev_b32 v148, 2, v0")
    E("buffer_load_dword v142, v148, s[12:15], 0 offen")

def reduce8(final):
    E("v_lshlrev_b32 v150, 5, v0")
    E(f"ds_write_b128 v150, v[160:163] offset:{SC}"); E(f"ds_write_b128 v150, v[164:167] offset:{SC+16}")
    bar()
    E("v_and_b32 v150, 7, v0"); E("v_lshrrev_b32 v151, 3, v0")
    E("v_lshlrev_b32 v152, 8, v151"); E("v_lshl_add_u32 v152, v150, 2, v152")
    for r in range(8): E(f"ds_read_b32 v{168+r}, v152 offset:{SC+32*r}")
    E("s_waitcnt lgkmcnt(0)")
    for r in range(1, 8): E(f"v_add_f32 v168, v168, v{168+r}")
    E("v_lshlrev_b32 v152, 2, v0")
    E(f"ds_write_b32 v152, v168 offset:{SC+8192}")
    bar()
    E("v_lshlrev_b32 v152, 2, v150")
    for r in range(32): E(f"ds_read_b32 v{176+r}, v152 offset:{SC+8192+32*r}")
    E("s_waitcnt lgkmcnt(0)")
    for r in range(1, 32): E(f"v_add_f32 v176, v176, v{176+r}")

n = NAME + "_kernel"
out.append(f".globl {n}"); out.append(".p2align 8"); out.append(f".type {n},@function"); L(n)
E("s_cmp_ge_u32 s2, 256"); E("s_cbranch_scc1 END")
E("s_load_dwordx16 s[64:79], s[0:1], 0")
E("s_load_dwordx8 s[80:87], s[0:1], 64")
E("s_load_dwordx2 s[88:89], s[0:1], 96")
E("s_waitcnt lgkmcnt(0)")
srd(12, 64, 1024); srd(16, 66, 0x8000000); srd(20, 68, 0x8000000); srd(24, 70, 512*4096*2); srd(28, 72, 4096*512*2)
srd(32, 76, 512*1792*2); srd(36, 80, 1792*512*2); srd(40, 88, WSN); srd(44, 86, 256); srd(48, 78, 3584); srd(52, 82, 1024); srd(56, 84, 1024)
E("v_and_b32 v1, 63, v0"); E("v_and_b32 v2, 15, v1"); E("v_lshrrev_b32 v3, 4, v1"); E("v_lshrrev_b32 v4, 6, v0")
E("s_nop 0"); E("v_readfirstlane_b32 s60, v4")
E("s_lshr_b32 s61, s2, 5"); E("s_and_b32 s62, s2, 31")
E("s_or_b32 s63, s2, s60"); E("s_cmp_lg_u32 s63, 0"); E("s_cbranch_scc1 NON")
E("s_memrealtime s[94:95]"); E("s_waitcnt lgkmcnt(0)"); E("s_or_b32 s94, s94, 1")
E("v_mov_b32 v250, 0"); E("v_mov_b32 v251, s94"); E("buffer_store_dword v251, v250, s[44:47], 0 offen sc1")
L("NON")
stamp()
E("v_lshlrev_b32 v144, 4, v1")
E("buffer_load_dwordx4 v[156:159], v144, s[12:15], 0 offen")
E("v_lshrrev_b32 v5, 1, v0"); E("v_and_b32 v6, 1, v0")
E("v_lshlrev_b32 v145, 13, v5"); E("v_lshl_add_u32 v145, v6, 4, v145")
E("s_lshl_b32 s63, s2, 5")
for j in range(4):
    E(f"s_add_u32 s64, s63, {j*128*8192}")
    E(f"buffer_load_dwordx4 v[{8+4*j}:{11+4*j}], v145, s[24:27], s64 offen")
E("s_lshl_b32 s64, s61, 24"); E("s_lshl_b32 s65, s62, 15"); E("s_add_u32 s64, s64, s65"); E(f"s_add_u32 s64, s64, {61440*256}")
E("s_lshr_b32 s65, s2, 3"); E("s_lshl_b32 s65, s65, 17"); E("s_and_b32 s66, s2, 7"); E("s_lshl_b32 s66, s66, 7"); E("s_add_u32 s65, s65, s66")
for j in range(1, 4): E(f"s_add_u32 s{65+j}, s65, {j*32768}")
prefetch()
E("s_waitcnt vmcnt(0)" ) if False else None
E("s_waitcnt vmcnt(20)")
stamp()
unpack8(160, 156)
t = 170
E(f"v_add_f32 v{t}, v160, v161")
for i in range(2, 8): E(f"v_add_f32 v{t}, v{t}, v{160+i}")
wave_reduce("v_add_f32", t)
E(f"v_mul_f32 v{t}, {INV512}, v{t}"); E(f"v_mov_b32 v{t+1}, 0")
for i in range(8):
    E(f"v_sub_f32 v{t+2}, v{160+i}, v{t}"); E(f"v_fmac_f32 v{t+1}, v{t+2}, v{t+2}")
wave_reduce("v_add_f32", t+1)
E(f"v_mul_f32 v{t+1}, {INV512}, v{t+1}")
rbf(t); rbf(t+1); E(f"v_add_f32 v{t+1}, {EPS}, v{t+1}"); rbf(t+1)
E(f"v_sqrt_f32 v{t+1}, v{t+1}"); E("s_nop 0"); rbf(t+1); E(f"v_rcp_f32 v{t+2}, v{t+1}"); E("s_nop 0")
for i in range(8):
    E(f"v_sub_f32 v{t+3}, v{160+i}, v{t}"); rbf(t+3); fdiv(160+i, t+3, t+1, t+2, t+4); rbf(160+i)
E("v_lshlrev_b32 v144, 5, v1")
E("ds_write_b128 v144, v[160:163]"); E("ds_write_b128 v144, v[164:167] offset:16")
E("s_waitcnt lgkmcnt(0)")
E("v_lshlrev_b32 v144, 2, v5")
for j in range(4): E(f"ds_read_b32 v{176+j}, v144 offset:{512*j}")
for k in range(8): E(f"v_mov_b32 v{160+k}, 0")
E("s_waitcnt vmcnt(16) lgkmcnt(0)")
stamp()

for j in range(4):
    unpack8(168, 8+4*j)
    for k in range(8): E(f"v_fmac_f32 v{160+k}, v{176+j}, v{168+k}")
E("v_lshlrev_b32 v144, 6, v5"); E("v_lshl_add_u32 v144, v6, 5, v144")
E(f"ds_write_b128 v144, v[160:163] offset:{SC}"); E(f"ds_write_b128 v144, v[164:167] offset:{SC+16}")
bar()
E("v_and_b32 v145, 15, v0"); E("v_lshrrev_b32 v146, 4, v0")
E("v_lshlrev_b32 v144, 9, v146"); E("v_lshl_add_u32 v144, v145, 2, v144")
for r in range(8): E(f"ds_read_b32 v{168+r}, v144 offset:{SC+64*r}")
E("s_waitcnt lgkmcnt(0)")
for r in range(1, 8): E(f"v_add_f32 v168, v168, v{168+r}")
E("v_lshlrev_b32 v144, 2, v0"); E(f"ds_write_b32 v144, v168 offset:{SC+8192}")
get_nonce()
bar()
E("s_cmp_lg_u32 s60, 0"); E("s_cbranch_scc1 P1D")
E("v_lshlrev_b32 v144, 2, v145")
for r in range(16): E(f"ds_read_b32 v{176+r}, v144 offset:{SC+8192+64*r}")
E("s_waitcnt lgkmcnt(0)")
for r in range(1, 16): E(f"v_add_f32 v176, v176, v{176+r}")
E("s_lshl_b32 s69, s2, 7"); E("v_lshlrev_b32 v144, 1, v144"); E("v_mov_b32 v177, s97")
E("buffer_store_dwordx2 v[176:177], v144, s[40:43], s69 offen sc1")
stamp()
L("P1D")
E("v_lshlrev_b32 v144, 4, v0"); E("s_lshl_b32 s69, s61, 12")
gather(["buffer_load_dwordx4 v[160:163], v144, s[40:43], s69 offen sc1"], [161, 163])
E("v_cvt_pk_bf16_f32 v160, v160, v162"); E("v_lshlrev_b32 v144, 2, v0"); E("ds_write_b32 v144, v160")
bar()
E("v_and_b32 v7, 3, v1"); E("v_lshlrev_b32 v144, 8, v7"); E("v_lshl_add_u32 v144, v3, 4, v144")
for b in range(4): E(f"ds_read_b128 v[{160+4*b}:{163+4*b}], v144 offset:{64*b}")
for k in range(8): E(f"v_mov_b32 v{176+k}, 0")
E("s_waitcnt lgkmcnt(0)")
for tt in range(2):
    for b in range(4):
        r = 24 + 16*tt + 4*b
        E(f"v_mfma_f32_16x16x32_bf16 v[{176+4*tt}:{179+4*tt}], v[{r}:{r+3}], v[{160+4*b}:{163+4*b}], v[{176+4*tt}:{179+4*tt}]")
E("s_nop 7"); E("s_nop 1")
E(f"s_mov_b32 s76, {SCALE}"); E(f"s_mov_b32 s77, {LOG2E}")
for k in range(8):
    rbf(176+k); E(f"v_mul_f32 v{176+k}, s76, v{176+k}"); rbf(176+k)
E("v_lshlrev_b32 v144, 5, v4"); E("v_lshl_add_u32 v144, v3, 2, v144"); E("v_lshlrev_b32 v144, 4, v144"); E("v_lshl_add_u32 v144, v7, 2, v144")
for tt in range(2):
    for i in range(4): E(f"ds_write_b32 v144, v{176+4*tt+i} offset:{1024 + tt*256 + i*16}")
bar()
E("v_lshlrev_b32 v144, 4, v1")
E("ds_read_b128 v[176:179], v144 offset:1024"); E("ds_read_b128 v[180:183], v144 offset:2048")
E("s_waitcnt lgkmcnt(0)")
for h in range(4): E(f"v_max_f32 v{176+h}, v{176+h}, v{180+h}")
for h in range(4): wave_reduce("v_max_f32", 176+h)
for h in range(4): E(f"v_mul_f32 v{180+h}, s77, v{176+h}")
E("v_lshlrev_b32 v144, 5, v4"); E("v_add_u32 v144, v144, v3"); E("v_lshlrev_b32 v144, 4, v144")
for i in range(8): E(f"ds_read_b128 v[{192+4*i}:{195+4*i}], v144 offset:{1024 + 64*i}")
for k in range(32): E(f"v_mov_b32 v{224+k}, 0")
for h in range(4): E(f"v_mov_b32 v{184+h}, 0")
E("s_waitcnt lgkmcnt(0)")
for i in range(8):
    unpack8(160, 56+4*i)
    for h in range(4): E(f"v_fma_f32 v{188+h}, v{192+4*i+h}, s77, -v{180+h}")
    for h in range(4): E(f"v_exp_f32 v{188+h}, v{188+h}")
    E("s_nop 0")
    for h in range(4):
        E(f"v_add_f32 v{184+h}, v{184+h}, v{188+h}")
        for j in range(8): E(f"v_fmac_f32 v{224+8*h+j}, v{188+h}, v{160+j}")
R0 = SC; LR = SC + 32768
E("v_lshl_add_u32 v145, v4, 2, v3"); E("v_lshlrev_b32 v144, 11, v145"); E("v_lshl_add_u32 v144, v2, 5, v144")
for h in range(4):
    E(f"ds_write_b128 v144, v[{224+8*h}:{227+8*h}] offset:{R0 + 512*h}")
    E(f"ds_write_b128 v144, v[{228+8*h}:{231+8*h}] offset:{R0 + 512*h + 16}")
E("v_lshlrev_b32 v144, 4, v145"); E(f"ds_write_b128 v144, v[184:187] offset:{LR}")
E("v_mov_b32 v144, 0"); E(f"ds_write_b128 v144, v[176:179] offset:{LR+256}")
bar()
E("v_lshlrev_b32 v144, 3, v0")
for r in range(16): E(f"ds_read_b64 v[{192+2*r}:{193+2*r}], v144 offset:{R0 + 2048*r}")
E("v_and_b32 v145, 3, v0"); E("v_lshlrev_b32 v145, 2, v145")
for r in range(16): E(f"ds_read_b32 v{224+r}, v145 offset:{LR+16*r}")
E(f"ds_read_b32 v240, v145 offset:{LR+256}")
E("s_waitcnt lgkmcnt(0)")
for r in range(1, 16):
    E(f"v_add_f32 v192, v192, v{192+2*r}"); E(f"v_add_f32 v193, v193, v{193+2*r}"); E(f"v_add_f32 v224, v224, v{224+r}")
E("v_mov_b32 v242, v224"); E("v_mov_b32 v241, s97"); E("v_mov_b32 v243, s97")
E("v_mov_b32 v194, v193"); E("v_mov_b32 v193, s97"); E("v_mov_b32 v195, s97")
E("v_lshlrev_b32 v144, 15, v4"); E("v_lshl_add_u32 v144, v1, 4, v144")
E("s_lshl_b32 s68, s61, 17"); E("s_lshl_b32 s69, s62, 10"); E("s_add_u32 s68, s68, s69"); E(f"s_add_u32 s68, s68, {APO}")
E("buffer_store_dwordx4 v[192:195], v144, s[40:43], s68 offen sc1")
E("v_lshlrev_b32 v144, 7, v145")
E("s_lshl_b32 s68, s61, 11"); E("s_lshl_b32 s69, s62, 4"); E("s_add_u32 s68, s68, s69"); E(f"s_add_u32 s68, s68, {APM}")
E("buffer_store_dwordx4 v[240:243], v144, s[40:43], s68 offen sc1")
prefetch2()
stamp()
E("s_lshr_b32 s68, s2, 3")
E("v_and_b32 v144, 31, v1"); E("v_lshlrev_b32 v149, 4, v144"); E("v_lshlrev_b32 v144, 3, v144")
E("s_lshl_b32 s69, s68, 9"); E(f"s_add_u32 s69, s69, {APM}")
E("v_lshrrev_b32 v145, 7, v0"); E("v_and_b32 v146, 127, v0")
E("v_lshlrev_b32 v147, 14, v145"); E("v_lshl_add_u32 v147, v146, 3, v147")
for q in range(1, 4): E(f"v_add_u32 v{151+q}, {4096*q}, v147")
E("v_mov_b32 v151, v147")
E("s_lshl_b32 s70, s68, 15"); E(f"s_add_u32 s70, s70, {APO}")
lds_ = ["buffer_load_dwordx4 v[156:159], v149, s[40:43], s69 offen sc1"]
for s_ in range(16): lds_.append(f"buffer_load_dwordx2 v[{192+2*s_}:{193+2*s_}], v{151 + s_//4}, s[40:43], s70 offen offset:{1024*(s_%4)} sc1")
gather(lds_, [157, 159] + [193+2*s_ for s_ in range(16)])
E("v_mov_b32 v160, v156"); E("v_mov_b32 v161, v158")
E("v_mov_b32 v162, v160"); wave_reduce("v_max_f32", 162)
E("v_sub_f32 v163, v160, v162"); E("v_mul_f32 v163, s77, v163"); E("v_exp_f32 v163, v163"); E("s_nop 0")
E("v_mul_f32 v162, v163, v161"); wave_reduce("v_add_f32", 162)
E("v_mul_f32 v162, 0.5, v162"); E("v_rcp_f32 v164, v162"); E("s_nop 0")
fdiv(165, 163, 162, 164, 166)
E("v_lshrrev_b32 v144, 1, v144"); E("ds_write_b32 v144, v165 offset:1024"); E("s_waitcnt lgkmcnt(0)")
E("v_lshlrev_b32 v144, 6, v145")
for q in range(4): E(f"ds_read_b128 v[{228+4*q}:{231+4*q}], v144 offset:{1024+16*q}")
E("s_waitcnt vmcnt(0) lgkmcnt(0)")
E("v_mul_f32 v168, v192, v228")
for s in range(1, 16): E(f"v_fmac_f32 v168, v{192+2*s}, v{228+s}")
E("v_lshlrev_b32 v144, 2, v0"); E("ds_write_b32 v144, v168")
bar()
E("v_lshrrev_b32 v5, 3, v0"); E("v_and_b32 v6, 7, v0")
E("v_lshlrev_b32 v144, 2, v5")
for j in range(4):
    E(f"ds_read_b32 v{176+j}, v144 offset:{128*j}"); E(f"ds_read_b32 v{180+j}, v144 offset:{512+128*j}")
for k in range(8): E(f"v_mov_b32 v{160+k}, 0")
E("s_waitcnt lgkmcnt(0)")
for j in range(4):
    E(f"v_add_f32 v{176+j}, v{176+j}, v{180+j}"); rbf(176+j)
for j in range(4):
    unpack8(168, 88+4*j)
    for k in range(8): E(f"v_fmac_f32 v{160+k}, v{176+j}, v{168+k}")
E("v_lshlrev_b32 v144, 8, v5"); E("v_lshl_add_u32 v144, v6, 5, v144")
E(f"ds_write_b128 v144, v[160:163] offset:{SC}"); E(f"ds_write_b128 v144, v[164:167] offset:{SC+16}")
bar()
E("v_lshlrev_b32 v144, 11, v4"); E("v_lshl_add_u32 v144, v1, 2, v144")
for r in range(8): E(f"ds_read_b32 v{168+r}, v144 offset:{SC+256*r}")
E("s_waitcnt lgkmcnt(0)")
for r in range(1, 8): E(f"v_add_f32 v168, v168, v{168+r}")
E("v_lshlrev_b32 v144, 2, v0"); E(f"ds_write_b32 v144, v168 offset:{SC+8192}")
bar()
E("s_cmp_lg_u32 s60, 0"); E("s_cbranch_scc1 P3D")
for r in range(4): E(f"ds_read_b32 v{176+r}, v144 offset:{SC+8192+256*r}")
E("s_waitcnt lgkmcnt(0)")
for r in range(1, 4): E(f"v_add_f32 v176, v176, v{176+r}")
E("s_lshl_b32 s69, s2, 9"); E(f"s_add_u32 s69, s69, {OP}"); E("v_lshlrev_b32 v144, 1, v144"); E("v_mov_b32 v177, s97")
E("buffer_store_dwordx2 v[176:177], v144, s[40:43], s69 offen sc1")
stamp()
L("P3D")
E("s_cmp_ge_u32 s2, 224"); E("s_cbranch_scc1 END")
E("v_lshlrev_b32 v145, 4, v0")
E("v_mov_b32 v146, 0"); E("v_mov_b32 v147, 0")
for half in range(4):
    lds_ = []
    for r in range(8):
        lds_.append(f"s_mov_b32 s69, {OP + (8*half + r)*4096}")
        lds_.append(f"buffer_load_dwordx4 v[{192+4*r}:{195+4*r}], v145, s[40:43], s69 offen sc1")
    gather(lds_, [193+2*i for i in range(16)])
    for r in range(8):
        E(f"v_add_f32 v146, v146, v{192+4*r}"); E(f"v_add_f32 v147, v147, v{194+4*r}")
E("v_mov_b32 v192, v146"); E("v_mov_b32 v193, v147")
E("v_lshlrev_b32 v144, 3, v0")
rbf(192); rbf(193)
E("v_lshlrev_b32 v146, 16, v142"); E("v_and_b32 v147, 0xffff0000, v142")
E("v_add_f32 v192, v192, v146"); E("v_add_f32 v193, v193, v147"); rbf(192); rbf(193)
E("s_cmp_lg_u32 s2, 0"); E("s_cbranch_scc1 NOH")
E(f"s_mov_b32 s69, {HH}"); E("v_mov_b32 v196, v192"); E("v_mov_b32 v197, s97"); E("v_mov_b32 v198, v193"); E("v_mov_b32 v199, s97")
E("buffer_store_dwordx4 v[196:199], v145, s[40:43], s69 offen sc1"); E("s_nop 1")
L("NOH")
def block_sum(v, off):
    wave_reduce("v_add_f32", v)
    E("v_lshlrev_b32 v146, 2, v4"); E(f"ds_write_b32 v146, v{v} offset:{off}")
    bar()
    E("v_mov_b32 v146, 0"); E(f"ds_read_b128 v[148:151], v146 offset:{off}"); E("s_waitcnt lgkmcnt(0)")
    E(f"v_add_f32 v{v}, v148, v149"); E(f"v_add_f32 v{v}, v{v}, v150"); E(f"v_add_f32 v{v}, v{v}, v151")
E("v_add_f32 v194, v192, v193"); block_sum(194, SC)
E(f"v_mul_f32 v194, {INV512}, v194")
E("v_sub_f32 v196, v192, v194"); E("v_mul_f32 v195, v196, v196"); E("v_sub_f32 v196, v193, v194"); E("v_fmac_f32 v195, v196, v196")
block_sum(195, SC+16)
E(f"v_mul_f32 v195, {INV512}, v195"); rbf(194); rbf(195)
E(f"v_add_f32 v195, {EPS}, v195"); rbf(195); E("v_sqrt_f32 v195, v195"); E("s_nop 0"); rbf(195)
E("v_rcp_f32 v196, v195"); E("s_nop 0")
for i in range(2):
    E(f"v_sub_f32 v197, v{192+i}, v194"); rbf(197); fdiv(192+i, 197, 195, 196, 198); rbf(192+i)
E("ds_write_b64 v144, v[192:193]")
bar()
E("v_lshlrev_b32 v144, 2, v0")
E("ds_read_b32 v176, v144"); E("ds_read_b32 v177, v144 offset:1024")
for k in range(8): E(f"v_mov_b32 v{160+k}, 0")
E("s_waitcnt lgkmcnt(0)")
for j in range(2):
    unpack8(168, 104+4*j)
    for k in range(8): E(f"v_fmac_f32 v{160+k}, v{176+j}, v{168+k}")
reduce8(None)
E("s_cmp_lg_u32 s60, 0"); E("s_cbranch_scc1 P4D")
rbf(176); E("v_lshlrev_b32 v140, 16, v140"); E("v_add_f32 v176, v176, v140"); rbf(176)
E("v_mul_f32 v177, v176, v176"); E("v_mul_f32 v177, v177, v176"); E("s_mov_b32 s69, 0x3d372713"); E("v_fma_f32 v177, v177, s69, v176")
E("v_mul_f32 v177, 0x40135761, v177"); E("v_exp_f32 v177, v177"); E("s_nop 0"); E("v_add_f32 v177, 1.0, v177")
E("v_rcp_f32 v177, v177"); E("s_nop 0"); E("v_fma_f32 v177, v177, -2.0, 1.0"); E("v_add_f32 v177, 1.0, v177")
E("v_mul_f32 v177, v177, v176"); E("v_mul_f32 v177, 0.5, v177"); rbf(177)
E("s_lshl_b32 s69, s2, 6"); E(f"s_add_u32 s69, s69, {H1}"); E("v_mov_b32 v178, s97"); E("v_mov_b32 v176, v177"); E("v_mov_b32 v177, v178"); E("v_lshlrev_b32 v152, 1, v152")
E("buffer_store_dwordx2 v[176:177], v152, s[40:43], s69 offen sc1")
stamp()
L("P4D")
E("s_cmp_ge_u32 s2, 64"); E("s_cbranch_scc1 END")
E("v_lshlrev_b32 v144, 3, v0")
E("v_and_b32 v150, 7, v0"); E("v_lshlrev_b32 v145, 3, v150"); E("s_lshl_b32 s70, s2, 6"); E(f"s_add_u32 s70, s70, {HH}")
lds_ = ["buffer_load_dwordx2 v[194:195], v145, s[40:43], s70 offen sc1"]
for j in range(7):
    lds_.append(f"s_mov_b32 s69, {H1 + 2048*j}")
    lds_.append(f"buffer_load_dwordx2 v[{176+2*j}:{177+2*j}], v144, s[40:43], s69 offen sc1")
gather(lds_, [195] + [177+2*j for j in range(7)])
E("v_mov_b32 v143, v194")
for k in range(8): E(f"v_mov_b32 v{160+k}, 0")
for j in range(7):
    unpack8(168, 112+4*j)
    for k in range(8): E(f"v_fmac_f32 v{160+k}, v{176+2*j}, v{168+k}")
reduce8(None)
E("s_cmp_lg_u32 s60, 0"); E("s_cbranch_scc1 END")
rbf(176); E("v_lshlrev_b32 v141, 16, v141"); E("v_add_f32 v176, v176, v141"); rbf(176)
E("v_add_f32 v176, v176, v143"); E("v_cvt_pk_bf16_f32 v176, v176, v176")
E("v_lshlrev_b32 v145, 1, v150"); E("s_lshl_b32 s69, s2, 4")
E("buffer_store_short v176, v145, s[56:59], s69 offen")
stamp()
L("END"); E("s_endpgm")

hdr = open(f"cdna_kernels/{NAME}.s.ref").read().split("; Override")[0]
res = [hdr.rstrip("\n"), f"; @launch grid=(256,1,1) block=(256,1,1) lds={SC+32768+512}",
       '.amdgcn_target "amdgcn-amd-amdhsa--gfx950"', ".text"] + out
res.append(f""".section .rodata,"a"
.p2align 6
.amdhsa_kernel {n}
  .amdhsa_next_free_vgpr 256
  .amdhsa_next_free_sgpr 102
  .amdhsa_accum_offset 256
  .amdhsa_group_segment_fixed_size 0
  .amdhsa_kernarg_size 104
  .amdhsa_user_sgpr_count 2
  .amdhsa_user_sgpr_kernarg_segment_ptr 1
  .amdhsa_system_sgpr_workgroup_id_x 1
.end_amdhsa_kernel""")
path = sys.argv[1] if len(sys.argv) > 1 else f"cdna_kernels/{NAME}.s"
open(path, "w").write("\n".join(res) + "\n")
```

```python
import sys
NAME = "sequential_preLN__sliding_block_cached__dense_activation_gelu__decode"
out = []
def E(s): out.append("    " + s)
def L(s): out.append(s + ":")

Q   = 0
APO = 32768
APM = APO + 1048576
OP  = APM + 16384
HH  = OP + 131072
H1  = HH + 4096
F2  = H1 + 8*1792*8
WSN = 1 << 22
LOG2E = 0x3fb8aa3b; SCALE = 0x3db504f3; EPS = 0x3727c5ac; INV512 = 0x3b000000
SC = 8192

def srd(d, b, n):
    E(f"s_mov_b32 s{d}, s{b}"); E(f"s_and_b32 s{d+1}, s{b+1}, 0xffff")
    E(f"s_mov_b32 s{d+2}, {n}"); E(f"s_mov_b32 s{d+3}, 0x00020000")
def rbf(v):
    E(f"v_cvt_pk_bf16_f32 v{v}, v{v}, v{v}"); E(f"v_lshlrev_b32 v{v}, 16, v{v}")
def wave_reduce(op, v, st=90):
    for mode in ["quad_perm:[1,0,3,2]", "quad_perm:[2,3,0,1]", "row_half_mirror", "row_mirror"]:
        E("s_nop 1"); E(f"{op}_dpp v{v}, v{v}, v{v} {mode} row_mask:0xf bank_mask:0xf")
    E("s_nop 1")
    for i in range(4): E(f"v_readlane_b32 s{st+i}, v{v}, {16*i}")
    E("s_nop 1"); E(f"v_mov_b32 v{v}, s{st}")
    for i in range(1, 4): E(f"{op} v{v}, s{st+i}, v{v}")
def unpack8(dst, src):
    for i in range(4):
        E(f"v_lshlrev_b32 v{dst+2*i}, 16, v{src+i}"); E(f"v_and_b32 v{dst+2*i+1}, 0xffff0000, v{src+i}")
def fdiv(dst, num, den, rcp, t):
    E(f"v_mul_f32 v{dst}, v{num}, v{rcp}"); E(f"v_fma_f32 v{t}, -v{dst}, v{den}, v{num}"); E(f"v_fma_f32 v{dst}, v{t}, v{rcp}, v{dst}")
def bar():
    E("s_waitcnt lgkmcnt(0)"); E("s_barrier")

STAMP = len(sys.argv) > 2
stampn = [0]
def stamp():
    if not STAMP: return
    k = stampn[0]; stampn[0] += 1
    E("s_cmp_lg_u32 s60, 0"); E(f"s_cbranch_scc1 ST{k}")
    E("s_memrealtime s[94:95]"); E("s_waitcnt lgkmcnt(0)")
    E("v_mov_b32 v254, s94"); E("s_lshl_b32 s96, s2, 6"); E(f"s_add_u32 s96, s96, {3145728 + 4*k}")
    E("v_mov_b32 v255, 0")
    E("buffer_store_dword v254, v255, s[40:43], s96 offen")
    L(f"ST{k}")
pollcnt = [0]
def poll(base_sgpr_expr, count, val):
    pollcnt[0] += 1; n = pollcnt[0]
    E("s_cmp_lg_u32 s60, 0"); E(f"s_cbranch_scc1 PD{n}")
    E("s_mov_b32 s71, 0")
    if count <= 64:
        E(f"v_min_u32 v250, {count-1}, v1"); E("v_add_u32 v250, s70, v250")
        L(f"PL{n}")
        E("buffer_load_ubyte v251, v250, s[44:47], 0 offen sc1")
        E("s_waitcnt vmcnt(0)")
        E(f"v_cmp_le_u32 vcc, {val}, v251")
    else:
        nd = count // 4
        E(f"v_min_u32 v250, {nd-1}, v1"); E("v_lshlrev_b32 v250, 2, v250")
        L(f"PL{n}")
        E("buffer_load_dword v251, v250, s[44:47], 0 offen sc1")
        E("s_waitcnt vmcnt(0)")
        E("v_bfe_u32 v252, v251, 0, 8"); E("v_bfe_u32 v253, v251, 8, 8"); E("v_min_u32 v252, v252, v253")
        E("v_bfe_u32 v253, v251, 16, 8"); E("v_min_u32 v252, v252, v253")
        E("v_lshrrev_b32 v253, 24, v251"); E("v_min_u32 v252, v252, v253")
        E(f"v_cmp_le_u32 vcc, {val}, v252")
    E("s_nop 4")
    E("s_cmp_eq_u64 vcc, exec"); E(f"s_cbranch_scc1 PD{n}")
    E("s_add_u32 s71, s71, 1"); E("s_cmp_lt_u32 s71, 0x40000"); E(f"s_cbranch_scc1 PL{n}")
    L(f"PD{n}")
    E("s_barrier")
    stamp()
def publish(val, all_waves=True):
    pollcnt[0] += 1; n = pollcnt[0]
    E("s_waitcnt vmcnt(0)")
    if all_waves: E("s_barrier")
    E("s_cmp_lg_u32 s60, 0"); E(f"s_cbranch_scc1 PB{n}")
    E(f"v_mov_b32 v250, s2"); E(f"v_mov_b32 v251, {val}")
    E("v_cmp_eq_u32 vcc, 0, v1"); E("s_and_saveexec_b64 s[72:73], vcc")
    E("buffer_store_byte v251, v250, s[44:47], 0 offen sc1")
    E("s_mov_b64 exec, s[72:73]")
    L(f"PB{n}")
    stamp()

def get_nonce():
    pollcnt[0] += 1; n = pollcnt[0]
    E("s_mov_b32 s71, 0"); E("v_mov_b32 v250, 0")
    L(f"NL{n}")
    E("buffer_load_dword v251, v250, s[44:47], 0 offen sc1"); E("s_waitcnt vmcnt(0)")
    E("v_readfirstlane_b32 s97, v251"); E("s_nop 3")
    E("s_cmp_lg_u32 s97, 0"); E(f"s_cbranch_scc1 ND{n}")
    E("s_add_u32 s71, s71, 1"); E("s_cmp_lt_u32 s71, 0x40000"); E(f"s_cbranch_scc1 NL{n}")
    L(f"ND{n}")
def gather(loads, tags):
    pollcnt[0] += 1; n = pollcnt[0]
    E("s_mov_b32 s71, 0")
    L(f"GL{n}")
    for l in loads: E(l)
    E("s_waitcnt vmcnt(0)")
    E(f"v_xor_b32 v250, s97, v{tags[0]}")
    for t_ in tags[1:]:
        E(f"v_xor_b32 v251, s97, v{t_}"); E("v_or_b32 v250, v250, v251")
    E("v_cmp_eq_u32 vcc, 0, v250"); E("s_nop 4")
    E("s_cmp_eq_u64 vcc, exec"); E(f"s_cbranch_scc1 GD{n}")
    E("s_add_u32 s71, s71, 1"); E("s_cmp_lt_u32 s71, 0x20000"); E(f"s_cbranch_scc1 GL{n}")
    L(f"GD{n}")
    stamp()
def prefetch():
    E("v_lshlrev_b32 v144, 5, v4"); E("v_add_u32 v144, v144, v2"); E("v_lshlrev_b32 v144, 8, v144")
    E("v_lshl_add_u32 v144, v3, 4, v144"); E("v_add_u32 v145, 4096, v144")
    for t in range(2):
        for b in range(4):
            r = 24 + 16*t + 4*b
            E(f"buffer_load_dwordx4 v[{r}:{r+3}], v{144+t}, s[16:19], s64 offen offset:{64*b}")
    E("v_lshlrev_b32 v146, 5, v4"); E("v_add_u32 v146, v146, v3"); E("v_lshlrev_b32 v146, 8, v146")
    E("v_lshl_add_u32 v146, v2, 4, v146"); E("v_add_u32 v147, 4096, v146")
    for i in range(8):
        r = 56 + 4*i
        E(f"buffer_load_dwordx4 v[{r}:{r+3}], v{146 + i//4}, s[20:23], s64 offen offset:{1024*(i%4)}")
def prefetch2():
    E("s_lshr_b32 s65, s2, 3"); E("s_lshl_b32 s65, s65, 17"); E("s_and_b32 s66, s2, 7"); E("s_lshl_b32 s66, s66, 7"); E("s_add_u32 s65, s65, s66")
    for j in range(1, 4): E(f"s_add_u32 s{65+j}, s65, {j*32768}")
    E("v_lshrrev_b32 v148, 3, v0"); E("v_and_b32 v149, 7, v0")
    E("v_lshlrev_b32 v148, 10, v148"); E("v_lshl_add_u32 v148, v149, 4, v148")
    for j in range(4):
        E(f"buffer_load_dwordx4 v[{88+4*j}:{91+4*j}], v148, s[28:31], s{65+j} offen")
    E("v_lshrrev_b32 v148, 3, v0"); E("v_and_b32 v149, 7, v0")
    E("s_movk_i32 s69, 3584"); E("v_mul_lo_u32 v150, v148, s69"); E("v_lshl_add_u32 v150, v149, 4, v150")
    E("s_and_b32 s69, s2, 7"); E("s_mul_i32 s69, s69, 64*3584"); E("s_lshr_b32 s74, s2, 3"); E("s_lshl_b32 s74, s74, 7"); E("s_add_u32 s69, s69, s74")
    E("s_add_u32 s74, s69, 32*3584")
    E("buffer_load_dwordx4 v[104:107], v150, s[32:35], s69 offen")
    E("buffer_load_dwordx4 v[108:111], v150, s[32:35], s74 offen")
    E("v_lshlrev_b32 v150, 10, v148"); E("v_lshl_add_u32 v150, v149, 4, v150")
    E("s_lshr_b32 s69, s2, 3"); E("s_lshl_b32 s69, s69, 16"); E("s_and_b32 s74, s2, 7"); E("s_lshl_b32 s74, s74, 7"); E("s_add_u32 s69, s69, s74")
    E("s_add_u32 s74, s69, 32768")
    E("buffer_load_dwordx4 v[112:115], v150, s[36:39], s69 offen")
    E("buffer_load_dwordx4 v[116:119], v150, s[36:39], s74 offen")
    E("v_lshlrev_b32 v148, 1, v1")
    E("s_lshr_b32 s69, s2, 3"); E("s_lshl_b32 s69, s69, 7")
    E("buffer_load_ushort v140, v148, s[48:51], s69 offen")
    E("s_lshl_b32 s69, s2, 7")
    E("buffer_load_ushort v141, v148, s[52:55], s69 offen")
    E("v_lshlrev_b32 v148, 2, v0")
    E("buffer_load_dword v142, v148, s[12:15], 0 offen")

def reduce64():
    E("v_lshlrev_b32 v144, 8, v5"); E("v_lshl_add_u32 v144, v6, 5, v144")
    E(f"ds_write_b128 v144, v[160:163] offset:{SC}"); E(f"ds_write_b128 v144, v[164:167] offset:{SC+16}")
    bar()
    E("v_lshlrev_b32 v144, 11, v4"); E("v_lshl_add_u32 v144, v1, 2, v144")
    for r in range(8): E(f"ds_read_b32 v{168+r}, v144 offset:{SC+256*r}")
    E("s_waitcnt lgkmcnt(0)")
    for r in range(1, 8): E(f"v_add_f32 v168, v168, v{168+r}")
    E("v_lshlrev_b32 v144, 2, v0"); E(f"ds_write_b32 v144, v168 offset:{SC+8192}")
    bar()
    E("v_lshlrev_b32 v144, 2, v1")
    for r in range(4): E(f"ds_read_b32 v{176+r}, v144 offset:{SC+8192+256*r}")
    E("s_waitcnt lgkmcnt(0)")
    for r in range(1, 4): E(f"v_add_f32 v176, v176, v{176+r}")

def reduce8(final):
    E("v_lshlrev_b32 v150, 5, v0")
    E(f"ds_write_b128 v150, v[160:163] offset:{SC}"); E(f"ds_write_b128 v150, v[164:167] offset:{SC+16}")
    bar()
    E("v_and_b32 v150, 7, v0"); E("v_lshrrev_b32 v151, 3, v0")
    E("v_lshlrev_b32 v152, 8, v151"); E("v_lshl_add_u32 v152, v150, 2, v152")
    for r in range(8): E(f"ds_read_b32 v{168+r}, v152 offset:{SC+32*r}")
    E("s_waitcnt lgkmcnt(0)")
    for r in range(1, 8): E(f"v_add_f32 v168, v168, v{168+r}")
    E("v_lshlrev_b32 v152, 2, v0")
    E(f"ds_write_b32 v152, v168 offset:{SC+8192}")
    bar()
    E("v_lshlrev_b32 v152, 2, v150")
    for r in range(32): E(f"ds_read_b32 v{176+r}, v152 offset:{SC+8192+32*r}")
    E("s_waitcnt lgkmcnt(0)")
    for r in range(1, 32): E(f"v_add_f32 v176, v176, v{176+r}")

n = NAME + "_kernel"
out.append(f".globl {n}"); out.append(".p2align 8"); out.append(f".type {n},@function"); L(n)
E("s_cmp_ge_u32 s2, 256"); E("s_cbranch_scc1 END")
E("s_load_dwordx16 s[64:79], s[0:1], 0")
E("s_load_dwordx8 s[80:87], s[0:1], 64")
E("s_load_dwordx2 s[88:89], s[0:1], 96")
E("s_waitcnt lgkmcnt(0)")
srd(12, 64, 1024); srd(16, 66, 0x8000000); srd(20, 68, 0x8000000); srd(24, 70, 512*4096*2); srd(28, 72, 4096*512*2)
srd(32, 76, 512*1792*2); srd(36, 80, 1792*512*2); srd(40, 88, WSN); srd(44, 86, 256); srd(48, 78, 3584); srd(52, 82, 1024); srd(56, 84, 1024)
E("v_and_b32 v1, 63, v0"); E("v_and_b32 v2, 15, v1"); E("v_lshrrev_b32 v3, 4, v1"); E("v_lshrrev_b32 v4, 6, v0")
E("s_nop 0"); E("v_readfirstlane_b32 s60, v4")
E("s_lshr_b32 s61, s2, 5"); E("s_and_b32 s62, s2, 31")
E("s_or_b32 s63, s2, s60"); E("s_cmp_lg_u32 s63, 0"); E("s_cbranch_scc1 NON")
E("s_memrealtime s[94:95]"); E("s_waitcnt lgkmcnt(0)"); E("s_or_b32 s94, s94, 1")
E("v_mov_b32 v250, 0"); E("v_mov_b32 v251, s94"); E("buffer_store_dword v251, v250, s[44:47], 0 offen sc1")
L("NON")
stamp()
E("v_lshlrev_b32 v144, 4, v1")
E("buffer_load_dwordx4 v[156:159], v144, s[12:15], 0 offen")
E("v_lshrrev_b32 v5, 1, v0"); E("v_and_b32 v6, 1, v0")
E("v_lshlrev_b32 v145, 13, v5"); E("v_lshl_add_u32 v145, v6, 4, v145")
E("s_lshl_b32 s63, s2, 5")
for j in range(4):
    E(f"s_add_u32 s64, s63, {j*128*8192}")
    E(f"buffer_load_dwordx4 v[{8+4*j}:{11+4*j}], v145, s[24:27], s64 offen")
E("s_lshl_b32 s64, s61, 24"); E("s_lshl_b32 s65, s62, 15"); E("s_add_u32 s64, s64, s65"); E(f"s_add_u32 s64, s64, {61440*256}")
E("s_lshr_b32 s65, s2, 3"); E("s_lshl_b32 s65, s65, 17"); E("s_and_b32 s66, s2, 7"); E("s_lshl_b32 s66, s66, 7"); E("s_add_u32 s65, s65, s66")
for j in range(1, 4): E(f"s_add_u32 s{65+j}, s65, {j*32768}")
prefetch()
E("s_waitcnt vmcnt(0)" ) if False else None
E("s_waitcnt vmcnt(20)")
stamp()
unpack8(160, 156)
t = 170
E(f"v_add_f32 v{t}, v160, v161")
for i in range(2, 8): E(f"v_add_f32 v{t}, v{t}, v{160+i}")
wave_reduce("v_add_f32", t)
E(f"v_mul_f32 v{t}, {INV512}, v{t}"); E(f"v_mov_b32 v{t+1}, 0")
for i in range(8):
    E(f"v_sub_f32 v{t+2}, v{160+i}, v{t}"); E(f"v_fmac_f32 v{t+1}, v{t+2}, v{t+2}")
wave_reduce("v_add_f32", t+1)
E(f"v_mul_f32 v{t+1}, {INV512}, v{t+1}")
rbf(t); rbf(t+1); E(f"v_add_f32 v{t+1}, {EPS}, v{t+1}"); rbf(t+1)
E(f"v_sqrt_f32 v{t+1}, v{t+1}"); E("s_nop 0"); rbf(t+1); E(f"v_rcp_f32 v{t+2}, v{t+1}"); E("s_nop 0")
for i in range(8):
    E(f"v_sub_f32 v{t+3}, v{160+i}, v{t}"); rbf(t+3); fdiv(160+i, t+3, t+1, t+2, t+4); rbf(160+i)
E("v_lshlrev_b32 v144, 5, v1")
E("ds_write_b128 v144, v[160:163]"); E("ds_write_b128 v144, v[164:167] offset:16")
E("s_waitcnt lgkmcnt(0)")
E("v_lshlrev_b32 v144, 2, v5")
for j in range(4): E(f"ds_read_b32 v{176+j}, v144 offset:{512*j}")
for k in range(8): E(f"v_mov_b32 v{160+k}, 0")
E("s_waitcnt vmcnt(16) lgkmcnt(0)")
stamp()

for j in range(4):
    unpack8(168, 8+4*j)
    for k in range(8): E(f"v_fmac_f32 v{160+k}, v{176+j}, v{168+k}")
E("v_lshlrev_b32 v144, 6, v5"); E("v_lshl_add_u32 v144, v6, 5, v144")
E(f"ds_write_b128 v144, v[160:163] offset:{SC}"); E(f"ds_write_b128 v144, v[164:167] offset:{SC+16}")
bar()
E("v_and_b32 v145, 15, v0"); E("v_lshrrev_b32 v146, 4, v0")
E("v_lshlrev_b32 v144, 9, v146"); E("v_lshl_add_u32 v144, v145, 2, v144")
for r in range(8): E(f"ds_read_b32 v{168+r}, v144 offset:{SC+64*r}")
E("s_waitcnt lgkmcnt(0)")
for r in range(1, 8): E(f"v_add_f32 v168, v168, v{168+r}")
E("v_lshlrev_b32 v144, 2, v0"); E(f"ds_write_b32 v144, v168 offset:{SC+8192}")
get_nonce()
bar()
E("s_cmp_lg_u32 s60, 0"); E("s_cbranch_scc1 P1D")
E("v_lshlrev_b32 v144, 2, v145")
for r in range(16): E(f"ds_read_b32 v{176+r}, v144 offset:{SC+8192+64*r}")
E("s_waitcnt lgkmcnt(0)")
for r in range(1, 16): E(f"v_add_f32 v176, v176, v{176+r}")
E("s_lshl_b32 s69, s2, 7"); E("v_lshlrev_b32 v144, 1, v144"); E("v_mov_b32 v177, s97")
E("buffer_store_dwordx2 v[176:177], v144, s[40:43], s69 offen sc1")
stamp()
L("P1D")
E("v_lshlrev_b32 v144, 4, v0"); E("s_lshl_b32 s69, s61, 12")
gather(["buffer_load_dwordx4 v[160:163], v144, s[40:43], s69 offen sc1"], [161, 163])
E("v_cvt_pk_bf16_f32 v160, v160, v162"); E("v_lshlrev_b32 v144, 2, v0"); E("ds_write_b32 v144, v160")
bar()
E("v_and_b32 v7, 3, v1"); E("v_lshlrev_b32 v144, 8, v7"); E("v_lshl_add_u32 v144, v3, 4, v144")
for b in range(4): E(f"ds_read_b128 v[{160+4*b}:{163+4*b}], v144 offset:{64*b}")
for k in range(8): E(f"v_mov_b32 v{176+k}, 0")
E("s_waitcnt lgkmcnt(0)")
for tt in range(2):
    for b in range(4):
        r = 24 + 16*tt + 4*b
        E(f"v_mfma_f32_16x16x32_bf16 v[{176+4*tt}:{179+4*tt}], v[{r}:{r+3}], v[{160+4*b}:{163+4*b}], v[{176+4*tt}:{179+4*tt}]")
E("s_nop 7"); E("s_nop 1")
E(f"s_mov_b32 s76, {SCALE}"); E(f"s_mov_b32 s77, {LOG2E}")
for k in range(8):
    rbf(176+k); E(f"v_mul_f32 v{176+k}, s76, v{176+k}"); rbf(176+k)
E("v_lshlrev_b32 v144, 5, v4"); E("v_lshl_add_u32 v144, v3, 2, v144"); E("v_lshlrev_b32 v144, 4, v144"); E("v_lshl_add_u32 v144, v7, 2, v144")
for tt in range(2):
    for i in range(4): E(f"ds_write_b32 v144, v{176+4*tt+i} offset:{1024 + tt*256 + i*16}")
bar()
E("v_lshlrev_b32 v144, 4, v1")
E("ds_read_b128 v[176:179], v144 offset:1024"); E("ds_read_b128 v[180:183], v144 offset:2048")
E("s_waitcnt lgkmcnt(0)")
for h in range(4): E(f"v_max_f32 v{176+h}, v{176+h}, v{180+h}")
for h in range(4): wave_reduce("v_max_f32", 176+h)
for h in range(4): E(f"v_mul_f32 v{180+h}, s77, v{176+h}")
E("v_lshlrev_b32 v144, 5, v4"); E("v_add_u32 v144, v144, v3"); E("v_lshlrev_b32 v144, 4, v144")
for i in range(8): E(f"ds_read_b128 v[{192+4*i}:{195+4*i}], v144 offset:{1024 + 64*i}")
for k in range(32): E(f"v_mov_b32 v{224+k}, 0")
for h in range(4): E(f"v_mov_b32 v{184+h}, 0")
E("s_waitcnt lgkmcnt(0)")
for i in range(8):
    unpack8(160, 56+4*i)
    for h in range(4): E(f"v_fma_f32 v{188+h}, v{192+4*i+h}, s77, -v{180+h}")
    for h in range(4): E(f"v_exp_f32 v{188+h}, v{188+h}")
    E("s_nop 0")
    for h in range(4):
        E(f"v_add_f32 v{184+h}, v{184+h}, v{188+h}")
        for j in range(8): E(f"v_fmac_f32 v{224+8*h+j}, v{188+h}, v{160+j}")
R0 = SC; LR = SC + 32768
E("v_lshl_add_u32 v145, v4, 2, v3"); E("v_lshlrev_b32 v144, 11, v145"); E("v_lshl_add_u32 v144, v2, 5, v144")
for h in range(4):
    E(f"ds_write_b128 v144, v[{224+8*h}:{227+8*h}] offset:{R0 + 512*h}")
    E(f"ds_write_b128 v144, v[{228+8*h}:{231+8*h}] offset:{R0 + 512*h + 16}")
E("v_lshlrev_b32 v144, 4, v145"); E(f"ds_write_b128 v144, v[184:187] offset:{LR}")
E("v_mov_b32 v144, 0"); E(f"ds_write_b128 v144, v[176:179] offset:{LR+256}")
bar()
E("v_lshlrev_b32 v144, 3, v0")
for r in range(16): E(f"ds_read_b64 v[{192+2*r}:{193+2*r}], v144 offset:{R0 + 2048*r}")
E("v_and_b32 v145, 3, v0"); E("v_lshlrev_b32 v145, 2, v145")
for r in range(16): E(f"ds_read_b32 v{224+r}, v145 offset:{LR+16*r}")
E(f"ds_read_b32 v240, v145 offset:{LR+256}")
E("s_waitcnt lgkmcnt(0)")
for r in range(1, 16):
    E(f"v_add_f32 v192, v192, v{192+2*r}"); E(f"v_add_f32 v193, v193, v{193+2*r}"); E(f"v_add_f32 v224, v224, v{224+r}")
E("v_mov_b32 v242, v224"); E("v_mov_b32 v241, s97"); E("v_mov_b32 v243, s97")
E("v_mov_b32 v194, v193"); E("v_mov_b32 v193, s97"); E("v_mov_b32 v195, s97")
E("v_lshlrev_b32 v144, 15, v4"); E("v_lshl_add_u32 v144, v1, 4, v144")
E("s_lshl_b32 s68, s61, 17"); E("s_lshl_b32 s69, s62, 10"); E("s_add_u32 s68, s68, s69"); E(f"s_add_u32 s68, s68, {APO}")
E("buffer_store_dwordx4 v[192:195], v144, s[40:43], s68 offen sc1")
E("v_lshlrev_b32 v144, 7, v145")
E("s_lshl_b32 s68, s61, 11"); E("s_lshl_b32 s69, s62, 4"); E("s_add_u32 s68, s68, s69"); E(f"s_add_u32 s68, s68, {APM}")
E("buffer_store_dwordx4 v[240:243], v144, s[40:43], s68 offen sc1")
prefetch2()
stamp()
E("s_lshr_b32 s68, s2, 3")
E("v_and_b32 v144, 31, v1"); E("v_lshlrev_b32 v149, 4, v144"); E("v_lshlrev_b32 v144, 3, v144")
E("s_lshl_b32 s69, s68, 9"); E(f"s_add_u32 s69, s69, {APM}")
E("v_lshrrev_b32 v145, 7, v0"); E("v_and_b32 v146, 127, v0")
E("v_lshlrev_b32 v147, 14, v145"); E("v_lshl_add_u32 v147, v146, 3, v147")
for q in range(1, 4): E(f"v_add_u32 v{151+q}, {4096*q}, v147")
E("v_mov_b32 v151, v147")
E("s_lshl_b32 s70, s68, 15"); E(f"s_add_u32 s70, s70, {APO}")
lds_ = ["buffer_load_dwordx4 v[156:159], v149, s[40:43], s69 offen sc1"]
for s_ in range(16): lds_.append(f"buffer_load_dwordx2 v[{192+2*s_}:{193+2*s_}], v{151 + s_//4}, s[40:43], s70 offen offset:{1024*(s_%4)} sc1")
gather(lds_, [157, 159] + [193+2*s_ for s_ in range(16)])
E("v_mov_b32 v160, v156"); E("v_mov_b32 v161, v158")
E("v_mov_b32 v162, v160"); wave_reduce("v_max_f32", 162)
E("v_sub_f32 v163, v160, v162"); E("v_mul_f32 v163, s77, v163"); E("v_exp_f32 v163, v163"); E("s_nop 0")
E("v_mul_f32 v162, v163, v161"); wave_reduce("v_add_f32", 162)
E("v_mul_f32 v162, 0.5, v162"); E("v_rcp_f32 v164, v162"); E("s_nop 0")
fdiv(165, 163, 162, 164, 166)
E("v_lshrrev_b32 v144, 1, v144"); E("ds_write_b32 v144, v165 offset:1024"); E("s_waitcnt lgkmcnt(0)")
E("v_lshlrev_b32 v144, 6, v145")
for q in range(4): E(f"ds_read_b128 v[{228+4*q}:{231+4*q}], v144 offset:{1024+16*q}")
E("s_waitcnt vmcnt(0) lgkmcnt(0)")
E("v_mul_f32 v168, v192, v228")
for s in range(1, 16): E(f"v_fmac_f32 v168, v{192+2*s}, v{228+s}")
E("v_lshlrev_b32 v144, 2, v0"); E("ds_write_b32 v144, v168")
bar()
E("v_lshrrev_b32 v5, 3, v0"); E("v_and_b32 v6, 7, v0")
E("v_lshlrev_b32 v144, 2, v5")
for j in range(4):
    E(f"ds_read_b32 v{176+j}, v144 offset:{128*j}"); E(f"ds_read_b32 v{180+j}, v144 offset:{512+128*j}")
for k in range(8): E(f"v_mov_b32 v{160+k}, 0")
E("s_waitcnt lgkmcnt(0)")
for j in range(4):
    E(f"v_add_f32 v{176+j}, v{176+j}, v{180+j}"); rbf(176+j)
for j in range(4):
    unpack8(168, 88+4*j)
    for k in range(8): E(f"v_fmac_f32 v{160+k}, v{176+j}, v{168+k}")
E("v_lshlrev_b32 v144, 8, v5"); E("v_lshl_add_u32 v144, v6, 5, v144")
E(f"ds_write_b128 v144, v[160:163] offset:{SC}"); E(f"ds_write_b128 v144, v[164:167] offset:{SC+16}")
bar()
E("v_lshlrev_b32 v144, 11, v4"); E("v_lshl_add_u32 v144, v1, 2, v144")
for r in range(8): E(f"ds_read_b32 v{168+r}, v144 offset:{SC+256*r}")
E("s_waitcnt lgkmcnt(0)")
for r in range(1, 8): E(f"v_add_f32 v168, v168, v{168+r}")
E("v_lshlrev_b32 v144, 2, v0"); E(f"ds_write_b32 v144, v168 offset:{SC+8192}")
bar()
E("s_cmp_lg_u32 s60, 0"); E("s_cbranch_scc1 P3D")
for r in range(4): E(f"ds_read_b32 v{176+r}, v144 offset:{SC+8192+256*r}")
E("s_waitcnt lgkmcnt(0)")
for r in range(1, 4): E(f"v_add_f32 v176, v176, v{176+r}")
E("s_lshl_b32 s69, s2, 9"); E(f"s_add_u32 s69, s69, {OP}"); E("v_lshlrev_b32 v144, 1, v144"); E("v_mov_b32 v177, s97")
E("buffer_store_dwordx2 v[176:177], v144, s[40:43], s69 offen sc1")
stamp()
L("P3D")
E("s_cmp_ge_u32 s2, 224"); E("s_cbranch_scc1 END")
E("v_lshlrev_b32 v145, 4, v0")
E("v_mov_b32 v146, 0"); E("v_mov_b32 v147, 0")
for half in range(4):
    lds_ = []
    for r in range(8):
        lds_.append(f"s_mov_b32 s69, {OP + (8*half + r)*4096}")
        lds_.append(f"buffer_load_dwordx4 v[{192+4*r}:{195+4*r}], v145, s[40:43], s69 offen sc1")
    gather(lds_, [193+2*i for i in range(16)])
    for r in range(8):
        E(f"v_add_f32 v146, v146, v{192+4*r}"); E(f"v_add_f32 v147, v147, v{194+4*r}")
E("v_mov_b32 v192, v146"); E("v_mov_b32 v193, v147")
E("v_lshlrev_b32 v144, 3, v0")
rbf(192); rbf(193)
E("v_lshlrev_b32 v146, 16, v142"); E("v_and_b32 v147, 0xffff0000, v142")
E("v_add_f32 v192, v192, v146"); E("v_add_f32 v193, v193, v147"); rbf(192); rbf(193)
E("s_cmp_lg_u32 s2, 0"); E("s_cbranch_scc1 NOH")
E(f"s_mov_b32 s69, {HH}"); E("v_mov_b32 v196, v192"); E("v_mov_b32 v197, s97"); E("v_mov_b32 v198, v193"); E("v_mov_b32 v199, s97")
E("buffer_store_dwordx4 v[196:199], v145, s[40:43], s69 offen sc1"); E("s_nop 1")
L("NOH")
def block_sum(v, off):
    wave_reduce("v_add_f32", v)
    E("v_lshlrev_b32 v146, 2, v4"); E(f"ds_write_b32 v146, v{v} offset:{off}")
    bar()
    E("v_mov_b32 v146, 0"); E(f"ds_read_b128 v[148:151], v146 offset:{off}"); E("s_waitcnt lgkmcnt(0)")
    E(f"v_add_f32 v{v}, v148, v149"); E(f"v_add_f32 v{v}, v{v}, v150"); E(f"v_add_f32 v{v}, v{v}, v151")
E("v_add_f32 v194, v192, v193"); block_sum(194, SC)
E(f"v_mul_f32 v194, {INV512}, v194")
E("v_sub_f32 v196, v192, v194"); E("v_mul_f32 v195, v196, v196"); E("v_sub_f32 v196, v193, v194"); E("v_fmac_f32 v195, v196, v196")
block_sum(195, SC+16)
E(f"v_mul_f32 v195, {INV512}, v195"); rbf(194); rbf(195)
E(f"v_add_f32 v195, {EPS}, v195"); rbf(195); E("v_sqrt_f32 v195, v195"); E("s_nop 0"); rbf(195)
E("v_rcp_f32 v196, v195"); E("s_nop 0")
for i in range(2):
    E(f"v_sub_f32 v197, v{192+i}, v194"); rbf(197); fdiv(192+i, 197, 195, 196, 198); rbf(192+i)
E("ds_write_b64 v144, v[192:193]")
bar()
E("s_and_b32 s69, s2, 7"); E("s_lshl_b32 s69, s69, 6"); E("v_add_u32 v144, s69, v5"); E("v_lshlrev_b32 v144, 2, v144")
E("ds_read_b32 v176, v144"); E("ds_read_b32 v177, v144 offset:128")
for k in range(8): E(f"v_mov_b32 v{160+k}, 0")
E("s_waitcnt lgkmcnt(0)")
for j in range(2):
    unpack8(168, 104+4*j)
    for k in range(8): E(f"v_fmac_f32 v{160+k}, v{176+j}, v{168+k}")
reduce64()
E("s_cmp_lg_u32 s60, 0"); E("s_cbranch_scc1 P4D")
E("s_and_b32 s69, s2, 7"); E("s_mul_i32 s69, s69, 1792*8"); E("s_lshr_b32 s74, s2, 3"); E("s_lshl_b32 s74, s74, 9"); E("s_add_u32 s69, s69, s74"); E(f"s_add_u32 s69, s69, {H1}")
E("v_mov_b32 v177, s97"); E("v_lshlrev_b32 v144, 1, v144")
E("buffer_store_dwordx2 v[176:177], v144, s[40:43], s69 offen sc1")
stamp()
L("P4D")
E("v_lshlrev_b32 v144, 3, v1"); E("s_lshr_b32 s70, s2, 3"); E("s_lshl_b32 s70, s70, 9"); E(f"s_add_u32 s70, s70, {H1}")
lds_ = []
for p in range(8):
    lds_.append(f"s_add_u32 s69, s70, {p*1792*8}")
    lds_.append(f"buffer_load_dwordx2 v[{192+2*p}:{193+2*p}], v144, s[40:43], s69 offen sc1")
gather(lds_, [193+2*p for p in range(8)])
for p in range(1, 8): E(f"v_add_f32 v192, v192, v{192+2*p}")
E("v_mov_b32 v176, v192")
rbf(176); E("v_lshlrev_b32 v140, 16, v140"); E("v_add_f32 v176, v176, v140"); rbf(176)
E("v_mul_f32 v177, v176, v176"); E("v_mul_f32 v177, v177, v176"); E("s_mov_b32 s69, 0x3d372713"); E("v_fma_f32 v177, v177, s69, v176")
E("v_mul_f32 v177, 0x40135761, v177"); E("v_exp_f32 v177, v177"); E("s_nop 0"); E("v_add_f32 v177, 1.0, v177")
E("v_rcp_f32 v177, v177"); E("s_nop 0"); E("v_fma_f32 v177, v177, -2.0, 1.0"); E("v_add_f32 v177, 1.0, v177")
E("v_mul_f32 v177, v177, v176"); E("v_mul_f32 v177, 0.5, v177"); rbf(177)
E("v_lshlrev_b32 v144, 2, v1"); E("ds_write_b32 v144, v177 offset:4096"); E("s_waitcnt lgkmcnt(0)")
E("v_lshlrev_b32 v144, 2, v5")
E("ds_read_b32 v176, v144 offset:4096"); E("ds_read_b32 v177, v144 offset:4224")
for k in range(8): E(f"v_mov_b32 v{160+k}, 0")
E("s_waitcnt lgkmcnt(0)")
for j in range(2):
    unpack8(168, 112+4*j)
    for k in range(8): E(f"v_fmac_f32 v{160+k}, v{176+j}, v{168+k}")
reduce64()
E("s_cmp_lg_u32 s60, 0"); E("s_cbranch_scc1 END")
E("s_lshl_b32 s69, s2, 9"); E(f"s_add_u32 s69, s69, {F2}")
E("v_mov_b32 v177, s97"); E("v_lshlrev_b32 v144, 1, v144")
E("buffer_store_dwordx2 v[176:177], v144, s[40:43], s69 offen sc1")
stamp()
E("s_cmp_ge_u32 s2, 8"); E("s_cbranch_scc1 END")
E("s_lshl_b32 s70, s2, 9")
lds_ = [f"s_add_u32 s69, s70, {HH}", "buffer_load_dwordx2 v[248:249], v144, s[40:43], s69 offen sc1"]
for k in range(28):
    lds_.append(f"s_add_u32 s69, s70, {F2 + 4096*k}")
    lds_.append(f"buffer_load_dwordx2 v[{192+2*k}:{193+2*k}], v144, s[40:43], s69 offen sc1")
gather(lds_, [249] + [193+2*k for k in range(28)])
for k in range(1, 28): E(f"v_add_f32 v192, v192, v{192+2*k}")
rbf(192); E("v_lshlrev_b32 v141, 16, v141"); E("v_add_f32 v192, v192, v141"); rbf(192)
E("v_add_f32 v192, v192, v248"); E("v_cvt_pk_bf16_f32 v192, v192, v192")
E("v_lshlrev_b32 v145, 1, v1"); E("s_lshl_b32 s69, s2, 7")
E("buffer_store_short v192, v145, s[56:59], s69 offen")
stamp()
L("END"); E("s_endpgm")

hdr = open(f"cdna_kernels/{NAME}.s.ref").read().split("; Override")[0]
res = [hdr.rstrip("\n"), f"; @launch grid=(256,1,1) block=(256,1,1) lds={SC+32768+512}",
       '.amdgcn_target "amdgcn-amd-amdhsa--gfx950"', ".text"] + out
res.append(f""".section .rodata,"a"
.p2align 6
.amdhsa_kernel {n}
  .amdhsa_next_free_vgpr 256
  .amdhsa_next_free_sgpr 102
  .amdhsa_accum_offset 256
  .amdhsa_group_segment_fixed_size 0
  .amdhsa_kernarg_size 104
  .amdhsa_user_sgpr_count 2
  .amdhsa_user_sgpr_kernarg_segment_ptr 1
  .amdhsa_system_sgpr_workgroup_id_x 1
.end_amdhsa_kernel""")
path = sys.argv[1] if len(sys.argv) > 1 else f"cdna_kernels/{NAME}.s"
open(path, "w").write("\n".join(res) + "\n")
```

```python
import sys
NAME = "sequential_preLN__sliding_block_cached__dense_activation_gelu__decode"
out = []
def E(s): out.append("    " + s)
def L(s): out.append(s + ":")

Q   = 0
APO = 32768
APM = APO + 1048576
OP  = APM + 16384
HH  = OP + 131072
H1  = HH + 4096
F2  = H1 + 8*1792*8
WSN = 1 << 22
LOG2E = 0x3fb8aa3b; SCALE = 0x3db504f3; EPS = 0x3727c5ac; INV512 = 0x3b000000
SC = 8192

def srd(d, b, n):
    E(f"s_mov_b32 s{d}, s{b}"); E(f"s_and_b32 s{d+1}, s{b+1}, 0xffff")
    E(f"s_mov_b32 s{d+2}, {n}"); E(f"s_mov_b32 s{d+3}, 0x00020000")
def rbf(v):
    E(f"v_cvt_pk_bf16_f32 v{v}, v{v}, v{v}"); E(f"v_lshlrev_b32 v{v}, 16, v{v}")
def wave_reduce(op, v, st=90):
    for mode in ["quad_perm:[1,0,3,2]", "quad_perm:[2,3,0,1]", "row_half_mirror", "row_mirror"]:
        E("s_nop 1"); E(f"{op}_dpp v{v}, v{v}, v{v} {mode} row_mask:0xf bank_mask:0xf")
    E("s_nop 1")
    for i in range(4): E(f"v_readlane_b32 s{st+i}, v{v}, {16*i}")
    E("s_nop 1"); E(f"v_mov_b32 v{v}, s{st}")
    for i in range(1, 4): E(f"{op} v{v}, s{st+i}, v{v}")
def unpack8(dst, src):
    for i in range(4):
        E(f"v_lshlrev_b32 v{dst+2*i}, 16, v{src+i}"); E(f"v_and_b32 v{dst+2*i+1}, 0xffff0000, v{src+i}")
def fdiv(dst, num, den, rcp, t):
    E(f"v_mul_f32 v{dst}, v{num}, v{rcp}"); E(f"v_fma_f32 v{t}, -v{dst}, v{den}, v{num}"); E(f"v_fma_f32 v{dst}, v{t}, v{rcp}, v{dst}")
def bar():
    E("s_waitcnt lgkmcnt(0)"); E("s_barrier")

STAMP = len(sys.argv) > 2
stampn = [0]
def stamp():
    if not STAMP: return
    k = stampn[0]; stampn[0] += 1
    E("s_cmp_lg_u32 s60, 0"); E(f"s_cbranch_scc1 ST{k}")
    E("s_memrealtime s[94:95]"); E("s_waitcnt lgkmcnt(0)")
    E("v_mov_b32 v254, s94"); E("s_lshl_b32 s96, s2, 6"); E(f"s_add_u32 s96, s96, {3145728 + 4*k}")
    E("v_mov_b32 v255, 0")
    E("buffer_store_dword v254, v255, s[40:43], s96 offen")
    L(f"ST{k}")
pollcnt = [0]
def poll(base_sgpr_expr, count, val):
    pollcnt[0] += 1; n = pollcnt[0]
    E("s_cmp_lg_u32 s60, 0"); E(f"s_cbranch_scc1 PD{n}")
    E("s_mov_b32 s71, 0")
    if count <= 64:
        E(f"v_min_u32 v250, {count-1}, v1"); E("v_add_u32 v250, s70, v250")
        L(f"PL{n}")
        E("buffer_load_ubyte v251, v250, s[44:47], 0 offen sc1")
        E("s_waitcnt vmcnt(0)")
        E(f"v_cmp_le_u32 vcc, {val}, v251")
    else:
        nd = count // 4
        E(f"v_min_u32 v250, {nd-1}, v1"); E("v_lshlrev_b32 v250, 2, v250")
        L(f"PL{n}")
        E("buffer_load_dword v251, v250, s[44:47], 0 offen sc1")
        E("s_waitcnt vmcnt(0)")
        E("v_bfe_u32 v252, v251, 0, 8"); E("v_bfe_u32 v253, v251, 8, 8"); E("v_min_u32 v252, v252, v253")
        E("v_bfe_u32 v253, v251, 16, 8"); E("v_min_u32 v252, v252, v253")
        E("v_lshrrev_b32 v253, 24, v251"); E("v_min_u32 v252, v252, v253")
        E(f"v_cmp_le_u32 vcc, {val}, v252")
    E("s_nop 4")
    E("s_cmp_eq_u64 vcc, exec"); E(f"s_cbranch_scc1 PD{n}")
    E("s_add_u32 s71, s71, 1"); E("s_cmp_lt_u32 s71, 0x40000"); E(f"s_cbranch_scc1 PL{n}")
    L(f"PD{n}")
    E("s_barrier")
    stamp()
def publish(val, all_waves=True):
    pollcnt[0] += 1; n = pollcnt[0]
    E("s_waitcnt vmcnt(0)")
    if all_waves: E("s_barrier")
    E("s_cmp_lg_u32 s60, 0"); E(f"s_cbranch_scc1 PB{n}")
    E(f"v_mov_b32 v250, s2"); E(f"v_mov_b32 v251, {val}")
    E("v_cmp_eq_u32 vcc, 0, v1"); E("s_and_saveexec_b64 s[72:73], vcc")
    E("buffer_store_byte v251, v250, s[44:47], 0 offen sc1")
    E("s_mov_b64 exec, s[72:73]")
    L(f"PB{n}")
    stamp()

def get_nonce():
    pollcnt[0] += 1; n = pollcnt[0]
    E("s_mov_b32 s71, 0"); E("v_mov_b32 v250, 0")
    L(f"NL{n}")
    E("buffer_load_dword v251, v250, s[44:47], 0 offen sc1"); E("s_waitcnt vmcnt(0)")
    E("v_readfirstlane_b32 s97, v251"); E("s_nop 3")
    E("s_cmp_lg_u32 s97, 0"); E(f"s_cbranch_scc1 ND{n}")
    E("s_add_u32 s71, s71, 1"); E("s_cmp_lt_u32 s71, 0x40000"); E(f"s_cbranch_scc1 NL{n}")
    L(f"ND{n}")
def gather(loads, tags):
    pollcnt[0] += 1; n = pollcnt[0]
    E("s_mov_b32 s71, 0")
    L(f"GL{n}")
    for l in loads: E(l)
    E("s_waitcnt vmcnt(0)")
    E(f"v_xor_b32 v250, s97, v{tags[0]}")
    for t_ in tags[1:]:
        E(f"v_xor_b32 v251, s97, v{t_}"); E("v_or_b32 v250, v250, v251")
    E("v_cmp_eq_u32 vcc, 0, v250"); E("s_nop 4")
    E("s_cmp_eq_u64 vcc, exec"); E(f"s_cbranch_scc1 GD{n}")
    E("s_add_u32 s71, s71, 1"); E("s_cmp_lt_u32 s71, 0x20000"); E(f"s_cbranch_scc1 GL{n}")
    L(f"GD{n}")
    stamp()
def prefetch():
    E("v_lshlrev_b32 v144, 5, v4"); E("v_add_u32 v144, v144, v2"); E("v_lshlrev_b32 v144, 8, v144")
    E("v_lshl_add_u32 v144, v3, 4, v144"); E("v_add_u32 v145, 4096, v144")
    for t in range(2):
        for b in range(4):
            r = 24 + 16*t + 4*b
            E(f"buffer_load_dwordx4 v[{r}:{r+3}], v{144+t}, s[16:19], s64 offen offset:{64*b}")
    E("v_lshlrev_b32 v146, 5, v4"); E("v_add_u32 v146, v146, v3"); E("v_lshlrev_b32 v146, 8, v146")
    E("v_lshl_add_u32 v146, v2, 4, v146"); E("v_add_u32 v147, 4096, v146")
    for i in range(8):
        r = 56 + 4*i
        E(f"buffer_load_dwordx4 v[{r}:{r+3}], v{146 + i//4}, s[20:23], s64 offen offset:{1024*(i%4)}")
def prefetch2():
    E("s_lshr_b32 s65, s2, 3"); E("s_lshl_b32 s65, s65, 17"); E("s_and_b32 s66, s2, 7"); E("s_lshl_b32 s66, s66, 7"); E("s_add_u32 s65, s65, s66")
    for j in range(1, 4): E(f"s_add_u32 s{65+j}, s65, {j*32768}")
    E("v_lshrrev_b32 v148, 3, v0"); E("v_and_b32 v149, 7, v0")
    E("v_lshlrev_b32 v148, 10, v148"); E("v_lshl_add_u32 v148, v149, 4, v148")
    for j in range(4):
        E(f"buffer_load_dwordx4 v[{88+4*j}:{91+4*j}], v148, s[28:31], s{65+j} offen")
    E("v_lshrrev_b32 v148, 3, v0"); E("v_and_b32 v149, 7, v0")
    E("s_movk_i32 s69, 3584"); E("v_mul_lo_u32 v150, v148, s69"); E("v_lshl_add_u32 v150, v149, 4, v150")
    E("s_and_b32 s69, s2, 7"); E("s_mul_i32 s69, s69, 64*3584"); E("s_lshr_b32 s74, s2, 3"); E("s_lshl_b32 s74, s74, 7"); E("s_add_u32 s69, s69, s74")
    E("s_add_u32 s74, s69, 32*3584")
    E("buffer_load_dwordx4 v[104:107], v150, s[32:35], s69 offen")
    E("buffer_load_dwordx4 v[108:111], v150, s[32:35], s74 offen")
    E("v_lshlrev_b32 v150, 10, v148"); E("v_lshl_add_u32 v150, v149, 4, v150")
    E("s_lshr_b32 s69, s2, 3"); E("s_lshl_b32 s69, s69, 16"); E("s_and_b32 s74, s2, 7"); E("s_lshl_b32 s74, s74, 7"); E("s_add_u32 s69, s69, s74")
    E("s_add_u32 s74, s69, 32768")
    E("buffer_load_dwordx4 v[112:115], v150, s[36:39], s69 offen")
    E("buffer_load_dwordx4 v[116:119], v150, s[36:39], s74 offen")
    E("v_lshlrev_b32 v148, 1, v1")
    E("s_lshr_b32 s69, s2, 3"); E("s_lshl_b32 s69, s69, 7")
    E("buffer_load_ushort v140, v148, s[48:51], s69 offen")
    E("s_lshl_b32 s69, s2, 7")
    E("buffer_load_ushort v141, v148, s[52:55], s69 offen")
    E("v_lshlrev_b32 v148, 2, v0")
    E("buffer_load_dword v142, v148, s[12:15], 0 offen")

def reduce64():
    E("v_lshlrev_b32 v144, 8, v5"); E("v_lshl_add_u32 v144, v6, 5, v144")
    E(f"ds_write_b128 v144, v[160:163] offset:{SC}"); E(f"ds_write_b128 v144, v[164:167] offset:{SC+16}")
    bar()
    E("v_lshlrev_b32 v144, 11, v4"); E("v_lshl_add_u32 v144, v1, 2, v144")
    for r in range(8): E(f"ds_read_b32 v{168+r}, v144 offset:{SC+256*r}")
    E("s_waitcnt lgkmcnt(0)")
    for r in range(1, 8): E(f"v_add_f32 v168, v168, v{168+r}")
    E("v_lshlrev_b32 v144, 2, v0"); E(f"ds_write_b32 v144, v168 offset:{SC+8192}")
    bar()
    E("v_lshlrev_b32 v144, 2, v1")
    for r in range(4): E(f"ds_read_b32 v{176+r}, v144 offset:{SC+8192+256*r}")
    E("s_waitcnt lgkmcnt(0)")
    for r in range(1, 4): E(f"v_add_f32 v176, v176, v{176+r}")

def reduce8(final):
    E("v_lshlrev_b32 v150, 5, v0")
    E(f"ds_write_b128 v150, v[160:163] offset:{SC}"); E(f"ds_write_b128 v150, v[164:167] offset:{SC+16}")
    bar()
    E("v_and_b32 v150, 7, v0"); E("v_lshrrev_b32 v151, 3, v0")
    E("v_lshlrev_b32 v152, 8, v151"); E("v_lshl_add_u32 v152, v150, 2, v152")
    for r in range(8): E(f"ds_read_b32 v{168+r}, v152 offset:{SC+32*r}")
    E("s_waitcnt lgkmcnt(0)")
    for r in range(1, 8): E(f"v_add_f32 v168, v168, v{168+r}")
    E("v_lshlrev_b32 v152, 2, v0")
    E(f"ds_write_b32 v152, v168 offset:{SC+8192}")
    bar()
    E("v_lshlrev_b32 v152, 2, v150")
    for r in range(32): E(f"ds_read_b32 v{176+r}, v152 offset:{SC+8192+32*r}")
    E("s_waitcnt lgkmcnt(0)")
    for r in range(1, 32): E(f"v_add_f32 v176, v176, v{176+r}")

n = NAME + "_kernel"
out.append(f".globl {n}"); out.append(".p2align 8"); out.append(f".type {n},@function"); L(n)
E("s_cmp_ge_u32 s2, 256"); E("s_cbranch_scc1 END")
E("s_load_dwordx16 s[64:79], s[0:1], 0")
E("s_load_dwordx8 s[80:87], s[0:1], 64")
E("s_load_dwordx2 s[88:89], s[0:1], 96")
E("s_waitcnt lgkmcnt(0)")
srd(12, 64, 1024); srd(16, 66, 0x8000000); srd(20, 68, 0x8000000); srd(24, 70, 512*4096*2); srd(28, 72, 4096*512*2)
srd(32, 76, 512*1792*2); srd(36, 80, 1792*512*2); srd(40, 88, WSN); srd(44, 86, 256); srd(48, 78, 3584); srd(52, 82, 1024); srd(56, 84, 1024)
E("v_and_b32 v1, 63, v0"); E("v_and_b32 v2, 15, v1"); E("v_lshrrev_b32 v3, 4, v1"); E("v_lshrrev_b32 v4, 6, v0")
E("s_nop 0"); E("v_readfirstlane_b32 s60, v4")
E("s_lshr_b32 s61, s2, 5"); E("s_and_b32 s62, s2, 31")
E("s_or_b32 s63, s2, s60"); E("s_cmp_lg_u32 s63, 0"); E("s_cbranch_scc1 NON")
E("s_memrealtime s[94:95]"); E("s_waitcnt lgkmcnt(0)"); E("s_or_b32 s94, s94, 1")
E("v_mov_b32 v250, 0"); E("v_mov_b32 v251, s94"); E("buffer_store_dword v251, v250, s[44:47], 0 offen sc1")
L("NON")
stamp()
E("v_lshlrev_b32 v144, 4, v1")
E("buffer_load_dwordx4 v[156:159], v144, s[12:15], 0 offen")
E("v_lshrrev_b32 v5, 1, v0"); E("v_and_b32 v6, 1, v0")
E("v_lshlrev_b32 v145, 13, v5"); E("v_lshl_add_u32 v145, v6, 4, v145")
E("s_lshl_b32 s63, s2, 5")
for j in range(4):
    E(f"s_add_u32 s64, s63, {j*128*8192}")
    E(f"buffer_load_dwordx4 v[{8+4*j}:{11+4*j}], v145, s[24:27], s64 offen")
E("s_lshl_b32 s64, s61, 24"); E("s_lshl_b32 s65, s62, 15"); E("s_add_u32 s64, s64, s65"); E(f"s_add_u32 s64, s64, {61440*256}")
E("s_lshr_b32 s65, s2, 3"); E("s_lshl_b32 s65, s65, 17"); E("s_and_b32 s66, s2, 7"); E("s_lshl_b32 s66, s66, 7"); E("s_add_u32 s65, s65, s66")
for j in range(1, 4): E(f"s_add_u32 s{65+j}, s65, {j*32768}")
E("s_waitcnt vmcnt(0)" ) if False else None
E("s_waitcnt vmcnt(4)")
stamp()
unpack8(160, 156)
t = 170
E(f"v_add_f32 v{t}, v160, v161")
for i in range(2, 8): E(f"v_add_f32 v{t}, v{t}, v{160+i}")
wave_reduce("v_add_f32", t)
E(f"v_mul_f32 v{t}, {INV512}, v{t}"); E(f"v_mov_b32 v{t+1}, 0")
for i in range(8):
    E(f"v_sub_f32 v{t+2}, v{160+i}, v{t}"); E(f"v_fmac_f32 v{t+1}, v{t+2}, v{t+2}")
wave_reduce("v_add_f32", t+1)
E(f"v_mul_f32 v{t+1}, {INV512}, v{t+1}")
rbf(t); rbf(t+1); E(f"v_add_f32 v{t+1}, {EPS}, v{t+1}"); rbf(t+1)
E(f"v_sqrt_f32 v{t+1}, v{t+1}"); E("s_nop 0"); rbf(t+1); E(f"v_rcp_f32 v{t+2}, v{t+1}"); E("s_nop 0")
for i in range(8):
    E(f"v_sub_f32 v{t+3}, v{160+i}, v{t}"); rbf(t+3); fdiv(160+i, t+3, t+1, t+2, t+4); rbf(160+i)
E("v_lshlrev_b32 v144, 5, v1")
E("ds_write_b128 v144, v[160:163]"); E("ds_write_b128 v144, v[164:167] offset:16")
E("s_waitcnt lgkmcnt(0)")
E("v_lshlrev_b32 v144, 2, v5")
for j in range(4): E(f"ds_read_b32 v{176+j}, v144 offset:{512*j}")
for k in range(8): E(f"v_mov_b32 v{160+k}, 0")
get_nonce()
E("s_waitcnt vmcnt(0) lgkmcnt(0)")
stamp()
E("s_cmp_eq_u32 s60, 0"); E("s_cbranch_scc1 NOPF")
prefetch()
L("NOPF")

for j in range(4):
    unpack8(168, 8+4*j)
    for k in range(8): E(f"v_fmac_f32 v{160+k}, v{176+j}, v{168+k}")
E("v_lshlrev_b32 v144, 6, v5"); E("v_lshl_add_u32 v144, v6, 5, v144")
E(f"ds_write_b128 v144, v[160:163] offset:{SC}"); E(f"ds_write_b128 v144, v[164:167] offset:{SC+16}")
bar()
E("v_and_b32 v145, 15, v0"); E("v_lshrrev_b32 v146, 4, v0")
E("v_lshlrev_b32 v144, 9, v146"); E("v_lshl_add_u32 v144, v145, 2, v144")
for r in range(8): E(f"ds_read_b32 v{168+r}, v144 offset:{SC+64*r}")
E("s_waitcnt lgkmcnt(0)")
for r in range(1, 8): E(f"v_add_f32 v168, v168, v{168+r}")
E("v_lshlrev_b32 v144, 2, v0"); E(f"ds_write_b32 v144, v168 offset:{SC+8192}")
bar()
E("s_cmp_lg_u32 s60, 0"); E("s_cbranch_scc1 P1D")
E("v_lshlrev_b32 v144, 2, v145")
for r in range(16): E(f"ds_read_b32 v{176+r}, v144 offset:{SC+8192+64*r}")
E("s_waitcnt lgkmcnt(0)")
for r in range(1, 16): E(f"v_add_f32 v176, v176, v{176+r}")
E("s_lshl_b32 s69, s2, 7"); E("v_lshlrev_b32 v144, 1, v144"); E("v_mov_b32 v177, s97")
E("buffer_store_dwordx2 v[176:177], v144, s[40:43], s69 offen sc1")
stamp()
prefetch()
L("P1D")
E("v_lshlrev_b32 v144, 4, v0"); E("s_lshl_b32 s69, s61, 12")
gather(["buffer_load_dwordx4 v[160:163], v144, s[40:43], s69 offen sc1"], [161, 163])
E("v_cvt_pk_bf16_f32 v160, v160, v162"); E("v_lshlrev_b32 v144, 2, v0"); E("ds_write_b32 v144, v160")
bar()
E("v_and_b32 v7, 3, v1"); E("v_lshlrev_b32 v144, 8, v7"); E("v_lshl_add_u32 v144, v3, 4, v144")
for b in range(4): E(f"ds_read_b128 v[{160+4*b}:{163+4*b}], v144 offset:{64*b}")
for k in range(8): E(f"v_mov_b32 v{176+k}, 0")
E("s_waitcnt lgkmcnt(0)")
for tt in range(2):
    for b in range(4):
        r = 24 + 16*tt + 4*b
        E(f"v_mfma_f32_16x16x32_bf16 v[{176+4*tt}:{179+4*tt}], v[{r}:{r+3}], v[{160+4*b}:{163+4*b}], v[{176+4*tt}:{179+4*tt}]")
E("s_nop 7"); E("s_nop 1")
E(f"s_mov_b32 s76, {SCALE}"); E(f"s_mov_b32 s77, {LOG2E}")
for k in range(8):
    rbf(176+k); E(f"v_mul_f32 v{176+k}, s76, v{176+k}"); rbf(176+k)
E("v_lshlrev_b32 v144, 5, v4"); E("v_lshl_add_u32 v144, v3, 2, v144"); E("v_lshlrev_b32 v144, 4, v144"); E("v_lshl_add_u32 v144, v7, 2, v144")
for tt in range(2):
    for i in range(4): E(f"ds_write_b32 v144, v{176+4*tt+i} offset:{1024 + tt*256 + i*16}")
bar()
E("v_lshlrev_b32 v144, 4, v1")
E("ds_read_b128 v[176:179], v144 offset:1024"); E("ds_read_b128 v[180:183], v144 offset:2048")
E("s_waitcnt lgkmcnt(0)")
for h in range(4): E(f"v_max_f32 v{176+h}, v{176+h}, v{180+h}")
for h in range(4): wave_reduce("v_max_f32", 176+h)
for h in range(4): E(f"v_mul_f32 v{180+h}, s77, v{176+h}")
E("v_lshlrev_b32 v144, 5, v4"); E("v_add_u32 v144, v144, v3"); E("v_lshlrev_b32 v144, 4, v144")
for i in range(8): E(f"ds_read_b128 v[{192+4*i}:{195+4*i}], v144 offset:{1024 + 64*i}")
for k in range(32): E(f"v_mov_b32 v{224+k}, 0")
for h in range(4): E(f"v_mov_b32 v{184+h}, 0")
E("s_waitcnt lgkmcnt(0)")
for i in range(8):
    unpack8(160, 56+4*i)
    for h in range(4): E(f"v_fma_f32 v{188+h}, v{192+4*i+h}, s77, -v{180+h}")
    for h in range(4): E(f"v_exp_f32 v{188+h}, v{188+h}")
    E("s_nop 0")
    for h in range(4):
        E(f"v_add_f32 v{184+h}, v{184+h}, v{188+h}")
        for j in range(8): E(f"v_fmac_f32 v{224+8*h+j}, v{188+h}, v{160+j}")
R0 = SC; LR = SC + 32768
E("v_lshl_add_u32 v145, v4, 2, v3"); E("v_lshlrev_b32 v144, 11, v145"); E("v_lshl_add_u32 v144, v2, 5, v144")
for h in range(4):
    E(f"ds_write_b128 v144, v[{224+8*h}:{227+8*h}] offset:{R0 + 512*h}")
    E(f"ds_write_b128 v144, v[{228+8*h}:{231+8*h}] offset:{R0 + 512*h + 16}")
E("v_lshlrev_b32 v144, 4, v145"); E(f"ds_write_b128 v144, v[184:187] offset:{LR}")
E("v_mov_b32 v144, 0"); E(f"ds_write_b128 v144, v[176:179] offset:{LR+256}")
bar()
E("v_lshlrev_b32 v144, 3, v0")
for r in range(16): E(f"ds_read_b64 v[{192+2*r}:{193+2*r}], v144 offset:{R0 + 2048*r}")
E("v_and_b32 v145, 3, v0"); E("v_lshlrev_b32 v145, 2, v145")
for r in range(16): E(f"ds_read_b32 v{224+r}, v145 offset:{LR+16*r}")
E(f"ds_read_b32 v240, v145 offset:{LR+256}")
E("s_waitcnt lgkmcnt(0)")
for r in range(1, 16):
    E(f"v_add_f32 v192, v192, v{192+2*r}"); E(f"v_add_f32 v193, v193, v{193+2*r}"); E(f"v_add_f32 v224, v224, v{224+r}")
E("v_mov_b32 v242, v224"); E("v_mov_b32 v241, s97"); E("v_mov_b32 v243, s97")
E("v_mov_b32 v194, v193"); E("v_mov_b32 v193, s97"); E("v_mov_b32 v195, s97")
E("v_lshlrev_b32 v144, 15, v4"); E("v_lshl_add_u32 v144, v1, 4, v144")
E("s_lshl_b32 s68, s61, 17"); E("s_lshl_b32 s69, s62, 10"); E("s_add_u32 s68, s68, s69"); E(f"s_add_u32 s68, s68, {APO}")
E("buffer_store_dwordx4 v[192:195], v144, s[40:43], s68 offen sc1")
E("v_lshlrev_b32 v144, 7, v145")
E("s_lshl_b32 s68, s61, 11"); E("s_lshl_b32 s69, s62, 4"); E("s_add_u32 s68, s68, s69"); E(f"s_add_u32 s68, s68, {APM}")
E("buffer_store_dwordx4 v[240:243], v144, s[40:43], s68 offen sc1")
prefetch2()
stamp()
E("s_lshr_b32 s68, s2, 3")
E("v_and_b32 v144, 31, v1"); E("v_lshlrev_b32 v149, 4, v144"); E("v_lshlrev_b32 v144, 3, v144")
E("s_lshl_b32 s69, s68, 9"); E(f"s_add_u32 s69, s69, {APM}")
E("v_lshrrev_b32 v145, 7, v0"); E("v_and_b32 v146, 127, v0")
E("v_lshlrev_b32 v147, 14, v145"); E("v_lshl_add_u32 v147, v146, 3, v147")
for q in range(1, 4): E(f"v_add_u32 v{151+q}, {4096*q}, v147")
E("v_mov_b32 v151, v147")
E("s_lshl_b32 s70, s68, 15"); E(f"s_add_u32 s70, s70, {APO}")
lds_ = ["buffer_load_dwordx4 v[156:159], v149, s[40:43], s69 offen sc1"]
for s_ in range(16): lds_.append(f"buffer_load_dwordx2 v[{192+2*s_}:{193+2*s_}], v{151 + s_//4}, s[40:43], s70 offen offset:{1024*(s_%4)} sc1")
gather(lds_, [157, 159] + [193+2*s_ for s_ in range(16)])
E("v_mov_b32 v160, v156"); E("v_mov_b32 v161, v158")
E("v_mov_b32 v162, v160"); wave_reduce("v_max_f32", 162)
E("v_sub_f32 v163, v160, v162"); E("v_mul_f32 v163, s77, v163"); E("v_exp_f32 v163, v163"); E("s_nop 0")
E("v_mul_f32 v162, v163, v161"); wave_reduce("v_add_f32", 162)
E("v_mul_f32 v162, 0.5, v162"); E("v_rcp_f32 v164, v162"); E("s_nop 0")
fdiv(165, 163, 162, 164, 166)
E("v_lshrrev_b32 v144, 1, v144"); E("ds_write_b32 v144, v165 offset:1024"); E("s_waitcnt lgkmcnt(0)")
E("v_lshlrev_b32 v144, 6, v145")
for q in range(4): E(f"ds_read_b128 v[{228+4*q}:{231+4*q}], v144 offset:{1024+16*q}")
E("s_waitcnt vmcnt(0) lgkmcnt(0)")
E("v_mul_f32 v168, v192, v228")
for s in range(1, 16): E(f"v_fmac_f32 v168, v{192+2*s}, v{228+s}")
E("v_lshlrev_b32 v144, 2, v0"); E("ds_write_b32 v144, v168")
bar()
E("v_lshrrev_b32 v5, 3, v0"); E("v_and_b32 v6, 7, v0")
E("v_lshlrev_b32 v144, 2, v5")
for j in range(4):
    E(f"ds_read_b32 v{176+j}, v144 offset:{128*j}"); E(f"ds_read_b32 v{180+j}, v144 offset:{512+128*j}")
for k in range(8): E(f"v_mov_b32 v{160+k}, 0")
E("s_waitcnt lgkmcnt(0)")
for j in range(4):
    E(f"v_add_f32 v{176+j}, v{176+j}, v{180+j}"); rbf(176+j)
for j in range(4):
    unpack8(168, 88+4*j)
    for k in range(8): E(f"v_fmac_f32 v{160+k}, v{176+j}, v{168+k}")
E("v_lshlrev_b32 v144, 8, v5"); E("v_lshl_add_u32 v144, v6, 5, v144")
E(f"ds_write_b128 v144, v[160:163] offset:{SC}"); E(f"ds_write_b128 v144, v[164:167] offset:{SC+16}")
bar()
E("v_lshlrev_b32 v144, 11, v4"); E("v_lshl_add_u32 v144, v1, 2, v144")
for r in range(8): E(f"ds_read_b32 v{168+r}, v144 offset:{SC+256*r}")
E("s_waitcnt lgkmcnt(0)")
for r in range(1, 8): E(f"v_add_f32 v168, v168, v{168+r}")
E("v_lshlrev_b32 v144, 2, v0"); E(f"ds_write_b32 v144, v168 offset:{SC+8192}")
bar()
E("s_cmp_lg_u32 s60, 0"); E("s_cbranch_scc1 P3D")
for r in range(4): E(f"ds_read_b32 v{176+r}, v144 offset:{SC+8192+256*r}")
E("s_waitcnt lgkmcnt(0)")
for r in range(1, 4): E(f"v_add_f32 v176, v176, v{176+r}")
E("s_lshl_b32 s69, s2, 9"); E(f"s_add_u32 s69, s69, {OP}"); E("v_lshlrev_b32 v144, 1, v144"); E("v_mov_b32 v177, s97")
E("buffer_store_dwordx2 v[176:177], v144, s[40:43], s69 offen sc1")
stamp()
L("P3D")
E("s_cmp_ge_u32 s2, 224"); E("s_cbranch_scc1 END")
E("v_lshlrev_b32 v145, 4, v0")
E("v_mov_b32 v146, 0"); E("v_mov_b32 v147, 0")
regs_ = [8+4*i for i in range(20)] + [192+4*i for i in range(12)]
lds_ = []
for r in range(32):
    lds_.append(f"s_mov_b32 s69, {OP + r*4096}")
    lds_.append(f"buffer_load_dwordx4 v[{regs_[r]}:{regs_[r]+3}], v145, s[40:43], s69 offen sc1")
gather(lds_, [x+1 for x in regs_] + [x+3 for x in regs_])
for r in range(32):
    E(f"v_add_f32 v146, v146, v{regs_[r]}"); E(f"v_add_f32 v147, v147, v{regs_[r]+2}")
E("v_mov_b32 v192, v146"); E("v_mov_b32 v193, v147")
E("v_lshlrev_b32 v144, 3, v0")
rbf(192); rbf(193)
E("v_lshlrev_b32 v146, 16, v142"); E("v_and_b32 v147, 0xffff0000, v142")
E("v_add_f32 v192, v192, v146"); E("v_add_f32 v193, v193, v147"); rbf(192); rbf(193)
E("s_cmp_lg_u32 s2, 0"); E("s_cbranch_scc1 NOH")
E(f"s_mov_b32 s69, {HH}"); E("v_mov_b32 v196, v192"); E("v_mov_b32 v197, s97"); E("v_mov_b32 v198, v193"); E("v_mov_b32 v199, s97")
E("buffer_store_dwordx4 v[196:199], v145, s[40:43], s69 offen sc1"); E("s_nop 1")
L("NOH")
def block_sum(v, off):
    wave_reduce("v_add_f32", v)
    E("v_lshlrev_b32 v146, 2, v4"); E(f"ds_write_b32 v146, v{v} offset:{off}")
    bar()
    E("v_mov_b32 v146, 0"); E(f"ds_read_b128 v[148:151], v146 offset:{off}"); E("s_waitcnt lgkmcnt(0)")
    E(f"v_add_f32 v{v}, v148, v149"); E(f"v_add_f32 v{v}, v{v}, v150"); E(f"v_add_f32 v{v}, v{v}, v151")
E("v_add_f32 v194, v192, v193"); block_sum(194, SC)
E(f"v_mul_f32 v194, {INV512}, v194")
E("v_sub_f32 v196, v192, v194"); E("v_mul_f32 v195, v196, v196"); E("v_sub_f32 v196, v193, v194"); E("v_fmac_f32 v195, v196, v196")
block_sum(195, SC+16)
E(f"v_mul_f32 v195, {INV512}, v195"); rbf(194); rbf(195)
E(f"v_add_f32 v195, {EPS}, v195"); rbf(195); E("v_sqrt_f32 v195, v195"); E("s_nop 0"); rbf(195)
E("v_rcp_f32 v196, v195"); E("s_nop 0")
for i in range(2):
    E(f"v_sub_f32 v197, v{192+i}, v194"); rbf(197); fdiv(192+i, 197, 195, 196, 198); rbf(192+i)
E("ds_write_b64 v144, v[192:193]")
bar()
E("s_and_b32 s69, s2, 7"); E("s_lshl_b32 s69, s69, 6"); E("v_add_u32 v144, s69, v5"); E("v_lshlrev_b32 v144, 2, v144")
E("ds_read_b32 v176, v144"); E("ds_read_b32 v177, v144 offset:128")
for k in range(8): E(f"v_mov_b32 v{160+k}, 0")
E("s_waitcnt lgkmcnt(0)")
for j in range(2):
    unpack8(168, 104+4*j)
    for k in range(8): E(f"v_fmac_f32 v{160+k}, v{176+j}, v{168+k}")
reduce64()
E("s_cmp_lg_u32 s60, 0"); E("s_cbranch_scc1 P4D")
E("s_and_b32 s69, s2, 7"); E("s_mul_i32 s69, s69, 1792*8"); E("s_lshr_b32 s74, s2, 3"); E("s_lshl_b32 s74, s74, 9"); E("s_add_u32 s69, s69, s74"); E(f"s_add_u32 s69, s69, {H1}")
E("v_mov_b32 v177, s97"); E("v_lshlrev_b32 v144, 1, v144")
E("buffer_store_dwordx2 v[176:177], v144, s[40:43], s69 offen sc1")
stamp()
L("P4D")
E("v_lshlrev_b32 v144, 3, v1"); E("s_lshr_b32 s70, s2, 3"); E("s_lshl_b32 s70, s70, 9"); E(f"s_add_u32 s70, s70, {H1}")
lds_ = []
for p in range(8):
    lds_.append(f"s_add_u32 s69, s70, {p*1792*8}")
    lds_.append(f"buffer_load_dwordx2 v[{192+2*p}:{193+2*p}], v144, s[40:43], s69 offen sc1")
gather(lds_, [193+2*p for p in range(8)])
for p in range(1, 8): E(f"v_add_f32 v192, v192, v{192+2*p}")
E("v_mov_b32 v176, v192")
rbf(176); E("v_lshlrev_b32 v140, 16, v140"); E("v_add_f32 v176, v176, v140"); rbf(176)
E("v_mul_f32 v177, v176, v176"); E("v_mul_f32 v177, v177, v176"); E("s_mov_b32 s69, 0x3d372713"); E("v_fma_f32 v177, v177, s69, v176")
E("v_mul_f32 v177, 0x40135761, v177"); E("v_exp_f32 v177, v177"); E("s_nop 0"); E("v_add_f32 v177, 1.0, v177")
E("v_rcp_f32 v177, v177"); E("s_nop 0"); E("v_fma_f32 v177, v177, -2.0, 1.0"); E("v_add_f32 v177, 1.0, v177")
E("v_mul_f32 v177, v177, v176"); E("v_mul_f32 v177, 0.5, v177"); rbf(177)
E("v_lshlrev_b32 v144, 2, v1"); E("ds_write_b32 v144, v177 offset:4096"); E("s_waitcnt lgkmcnt(0)")
E("v_lshlrev_b32 v144, 2, v5")
E("ds_read_b32 v176, v144 offset:4096"); E("ds_read_b32 v177, v144 offset:4224")
for k in range(8): E(f"v_mov_b32 v{160+k}, 0")
E("s_waitcnt lgkmcnt(0)")
for j in range(2):
    unpack8(168, 112+4*j)
    for k in range(8): E(f"v_fmac_f32 v{160+k}, v{176+j}, v{168+k}")
reduce64()
E("s_cmp_lg_u32 s60, 0"); E("s_cbranch_scc1 END")
E("s_lshl_b32 s69, s2, 9"); E(f"s_add_u32 s69, s69, {F2}")
E("v_mov_b32 v177, s97"); E("v_lshlrev_b32 v144, 1, v144")
E("buffer_store_dwordx2 v[176:177], v144, s[40:43], s69 offen sc1")
stamp()
E("s_cmp_ge_u32 s2, 8"); E("s_cbranch_scc1 END")
E("s_lshl_b32 s70, s2, 9")
lds_ = [f"s_add_u32 s69, s70, {HH}", "buffer_load_dwordx2 v[248:249], v144, s[40:43], s69 offen sc1"]
for k in range(28):
    lds_.append(f"s_add_u32 s69, s70, {F2 + 4096*k}")
    lds_.append(f"buffer_load_dwordx2 v[{192+2*k}:{193+2*k}], v144, s[40:43], s69 offen sc1")
gather(lds_, [249] + [193+2*k for k in range(28)])
for k in range(1, 28): E(f"v_add_f32 v192, v192, v{192+2*k}")
rbf(192); E("v_lshlrev_b32 v141, 16, v141"); E("v_add_f32 v192, v192, v141"); rbf(192)
E("v_add_f32 v192, v192, v248"); E("v_cvt_pk_bf16_f32 v192, v192, v192")
E("v_lshlrev_b32 v145, 1, v1"); E("s_lshl_b32 s69, s2, 7")
E("buffer_store_short v192, v145, s[56:59], s69 offen")
stamp()
L("END"); E("s_endpgm")

hdr = open(f"cdna_kernels/{NAME}.s.ref").read().split("; Override")[0]
res = [hdr.rstrip("\n"), f"; @launch grid=(256,1,1) block=(256,1,1) lds={SC+32768+512}",
       '.amdgcn_target "amdgcn-amd-amdhsa--gfx950"', ".text"] + out
res.append(f""".section .rodata,"a"
.p2align 6
.amdhsa_kernel {n}
  .amdhsa_next_free_vgpr 256
  .amdhsa_next_free_sgpr 102
  .amdhsa_accum_offset 256
  .amdhsa_group_segment_fixed_size 0
  .amdhsa_kernarg_size 104
  .amdhsa_user_sgpr_count 2
  .amdhsa_user_sgpr_kernarg_segment_ptr 1
  .amdhsa_system_sgpr_workgroup_id_x 1
.end_amdhsa_kernel""")
path = sys.argv[1] if len(sys.argv) > 1 else f"cdna_kernels/{NAME}.s"
open(path, "w").write("\n".join(res) + "\n")
```

```python
import sys
NAME = "sequential_preLN__sliding_block_cached__dense_activation_gelu__decode"
out = []
def E(s): out.append("    " + s)
def L(s): out.append(s + ":")

Q   = 0
APO = 32768
APM = APO + 1048576
OP  = APM + 16384
HH  = OP + 131072
H1  = HH + 4096
F2  = H1 + 8*1792*8
WSN = 1 << 22
LOG2E = 0x3fb8aa3b; SCALE = 0x3db504f3; EPS = 0x3727c5ac; INV512 = 0x3b000000
SC = 8192

def srd(d, b, n):
    E(f"s_mov_b32 s{d}, s{b}"); E(f"s_and_b32 s{d+1}, s{b+1}, 0xffff")
    E(f"s_mov_b32 s{d+2}, {n}"); E(f"s_mov_b32 s{d+3}, 0x00020000")
def rbf(v):
    E(f"v_cvt_pk_bf16_f32 v{v}, v{v}, v{v}"); E(f"v_lshlrev_b32 v{v}, 16, v{v}")
def wave_reduce(op, v, st=90):
    for mode in ["quad_perm:[1,0,3,2]", "quad_perm:[2,3,0,1]", "row_half_mirror", "row_mirror"]:
        E("s_nop 1"); E(f"{op}_dpp v{v}, v{v}, v{v} {mode} row_mask:0xf bank_mask:0xf")
    E("s_nop 1")
    for i in range(4): E(f"v_readlane_b32 s{st+i}, v{v}, {16*i}")
    E("s_nop 1"); E(f"v_mov_b32 v{v}, s{st}")
    for i in range(1, 4): E(f"{op} v{v}, s{st+i}, v{v}")
def unpack8(dst, src):
    for i in range(4):
        E(f"v_lshlrev_b32 v{dst+2*i}, 16, v{src+i}"); E(f"v_and_b32 v{dst+2*i+1}, 0xffff0000, v{src+i}")
def fdiv(dst, num, den, rcp, t):
    E(f"v_mul_f32 v{dst}, v{num}, v{rcp}"); E(f"v_fma_f32 v{t}, -v{dst}, v{den}, v{num}"); E(f"v_fma_f32 v{dst}, v{t}, v{rcp}, v{dst}")
def bar():
    E("s_waitcnt lgkmcnt(0)"); E("s_barrier")

STAMP = len(sys.argv) > 2
stampn = [0]
def stamp():
    if not STAMP: return
    k = stampn[0]; stampn[0] += 1
    E("s_cmp_lg_u32 s60, 0"); E(f"s_cbranch_scc1 ST{k}")
    E("s_memrealtime s[94:95]"); E("s_waitcnt lgkmcnt(0)")
    E("v_mov_b32 v254, s94"); E("s_lshl_b32 s96, s2, 6"); E(f"s_add_u32 s96, s96, {3145728 + 4*k}")
    E("v_mov_b32 v255, 0")
    E("buffer_store_dword v254, v255, s[40:43], s96 offen")
    L(f"ST{k}")
pollcnt = [0]
def poll(base_sgpr_expr, count, val):
    pollcnt[0] += 1; n = pollcnt[0]
    E("s_cmp_lg_u32 s60, 0"); E(f"s_cbranch_scc1 PD{n}")
    E("s_mov_b32 s71, 0")
    if count <= 64:
        E(f"v_min_u32 v250, {count-1}, v1"); E("v_add_u32 v250, s70, v250")
        L(f"PL{n}")
        E("buffer_load_ubyte v251, v250, s[44:47], 0 offen sc1")
        E("s_waitcnt vmcnt(0)")
        E(f"v_cmp_le_u32 vcc, {val}, v251")
    else:
        nd = count // 4
        E(f"v_min_u32 v250, {nd-1}, v1"); E("v_lshlrev_b32 v250, 2, v250")
        L(f"PL{n}")
        E("buffer_load_dword v251, v250, s[44:47], 0 offen sc1")
        E("s_waitcnt vmcnt(0)")
        E("v_bfe_u32 v252, v251, 0, 8"); E("v_bfe_u32 v253, v251, 8, 8"); E("v_min_u32 v252, v252, v253")
        E("v_bfe_u32 v253, v251, 16, 8"); E("v_min_u32 v252, v252, v253")
        E("v_lshrrev_b32 v253, 24, v251"); E("v_min_u32 v252, v252, v253")
        E(f"v_cmp_le_u32 vcc, {val}, v252")
    E("s_nop 4")
    E("s_cmp_eq_u64 vcc, exec"); E(f"s_cbranch_scc1 PD{n}")
    E("s_add_u32 s71, s71, 1"); E("s_cmp_lt_u32 s71, 0x40000"); E(f"s_cbranch_scc1 PL{n}")
    L(f"PD{n}")
    E("s_barrier")
    stamp()
def publish(val, all_waves=True):
    pollcnt[0] += 1; n = pollcnt[0]
    E("s_waitcnt vmcnt(0)")
    if all_waves: E("s_barrier")
    E("s_cmp_lg_u32 s60, 0"); E(f"s_cbranch_scc1 PB{n}")
    E(f"v_mov_b32 v250, s2"); E(f"v_mov_b32 v251, {val}")
    E("v_cmp_eq_u32 vcc, 0, v1"); E("s_and_saveexec_b64 s[72:73], vcc")
    E("buffer_store_byte v251, v250, s[44:47], 0 offen sc1")
    E("s_mov_b64 exec, s[72:73]")
    L(f"PB{n}")
    stamp()

def get_nonce():
    pollcnt[0] += 1; n = pollcnt[0]
    E("s_mov_b32 s71, 0"); E("v_mov_b32 v250, 0")
    L(f"NL{n}")
    E("buffer_load_dword v251, v250, s[44:47], 0 offen sc1"); E("s_waitcnt vmcnt(0)")
    E("v_readfirstlane_b32 s97, v251"); E("s_nop 3")
    E("s_cmp_lg_u32 s97, 0"); E(f"s_cbranch_scc1 ND{n}")
    E("s_add_u32 s71, s71, 1"); E("s_cmp_lt_u32 s71, 0x40000"); E(f"s_cbranch_scc1 NL{n}")
    L(f"ND{n}")
def gather(loads, tags):
    pollcnt[0] += 1; n = pollcnt[0]
    E("s_mov_b32 s71, 0")
    L(f"GL{n}")
    for l in loads: E(l)
    E("s_waitcnt vmcnt(0)")
    E(f"v_xor_b32 v250, s97, v{tags[0]}")
    for t_ in tags[1:]:
        E(f"v_xor_b32 v251, s97, v{t_}"); E("v_or_b32 v250, v250, v251")
    E("v_cmp_eq_u32 vcc, 0, v250"); E("s_nop 4")
    E("s_cmp_eq_u64 vcc, exec"); E(f"s_cbranch_scc1 GD{n}")
    E("s_add_u32 s71, s71, 1"); E("s_cmp_lt_u32 s71, 0x20000"); E(f"s_cbranch_scc1 GL{n}")
    L(f"GD{n}")
    stamp()
def prefetch():
    E("v_lshlrev_b32 v144, 5, v4"); E("v_add_u32 v144, v144, v2"); E("v_lshlrev_b32 v144, 8, v144")
    E("v_lshl_add_u32 v144, v3, 4, v144"); E("v_add_u32 v145, 4096, v144")
    for t in range(2):
        for b in range(4):
            r = 24 + 16*t + 4*b
            E(f"buffer_load_dwordx4 v[{r}:{r+3}], v{144+t}, s[16:19], s64 offen offset:{64*b}")
    E("v_lshlrev_b32 v146, 5, v4"); E("v_add_u32 v146, v146, v3"); E("v_lshlrev_b32 v146, 8, v146")
    E("v_lshl_add_u32 v146, v2, 4, v146"); E("v_add_u32 v147, 4096, v146")
    for i in range(8):
        r = 56 + 4*i
        E(f"buffer_load_dwordx4 v[{r}:{r+3}], v{146 + i//4}, s[20:23], s64 offen offset:{1024*(i%4)}")
def prefetch2():
    E("s_lshr_b32 s65, s2, 3"); E("s_lshl_b32 s65, s65, 17"); E("s_and_b32 s66, s2, 7"); E("s_lshl_b32 s66, s66, 7"); E("s_add_u32 s65, s65, s66")
    for j in range(1, 4): E(f"s_add_u32 s{65+j}, s65, {j*32768}")
    E("v_lshrrev_b32 v148, 3, v0"); E("v_and_b32 v149, 7, v0")
    E("v_lshlrev_b32 v148, 10, v148"); E("v_lshl_add_u32 v148, v149, 4, v148")
    for j in range(4):
        E(f"buffer_load_dwordx4 v[{88+4*j}:{91+4*j}], v148, s[28:31], s{65+j} offen")
    E("v_lshrrev_b32 v148, 3, v0"); E("v_and_b32 v149, 7, v0")
    E("s_movk_i32 s69, 3584"); E("v_mul_lo_u32 v150, v148, s69"); E("v_lshl_add_u32 v150, v149, 4, v150")
    E("s_and_b32 s69, s2, 7"); E("s_mul_i32 s69, s69, 64*3584"); E("s_lshr_b32 s74, s2, 3"); E("s_lshl_b32 s74, s74, 7"); E("s_add_u32 s69, s69, s74")
    E("s_add_u32 s74, s69, 32*3584")
    E("buffer_load_dwordx4 v[104:107], v150, s[32:35], s69 offen")
    E("buffer_load_dwordx4 v[108:111], v150, s[32:35], s74 offen")
    E("v_lshlrev_b32 v150, 10, v148"); E("v_lshl_add_u32 v150, v149, 4, v150")
    E("s_lshr_b32 s69, s2, 3"); E("s_lshl_b32 s69, s69, 16"); E("s_and_b32 s74, s2, 7"); E("s_lshl_b32 s74, s74, 7"); E("s_add_u32 s69, s69, s74")
    E("s_add_u32 s74, s69, 32768")
    E("buffer_load_dwordx4 v[112:115], v150, s[36:39], s69 offen")
    E("buffer_load_dwordx4 v[116:119], v150, s[36:39], s74 offen")
    E("v_lshlrev_b32 v148, 1, v1")
    E("s_lshr_b32 s69, s2, 3"); E("s_lshl_b32 s69, s69, 7")
    E("buffer_load_ushort v140, v148, s[48:51], s69 offen")
    E("s_lshl_b32 s69, s2, 7")
    E("buffer_load_ushort v141, v148, s[52:55], s69 offen")
    E("v_lshlrev_b32 v148, 2, v0")
    E("buffer_load_dword v142, v148, s[12:15], 0 offen")

def reduce64():
    E("v_lshlrev_b32 v144, 8, v5"); E("v_lshl_add_u32 v144, v6, 5, v144")
    E(f"ds_write_b128 v144, v[160:163] offset:{SC}"); E(f"ds_write_b128 v144, v[164:167] offset:{SC+16}")
    bar()
    E("v_lshlrev_b32 v144, 11, v4"); E("v_lshl_add_u32 v144, v1, 2, v144")
    for r in range(8): E(f"ds_read_b32 v{168+r}, v144 offset:{SC+256*r}")
    E("s_waitcnt lgkmcnt(0)")
    for r in range(1, 8): E(f"v_add_f32 v168, v168, v{168+r}")
    E("v_lshlrev_b32 v144, 2, v0"); E(f"ds_write_b32 v144, v168 offset:{SC+8192}")
    bar()
    E("v_lshlrev_b32 v144, 2, v1")
    for r in range(4): E(f"ds_read_b32 v{176+r}, v144 offset:{SC+8192+256*r}")
    E("s_waitcnt lgkmcnt(0)")
    for r in range(1, 4): E(f"v_add_f32 v176, v176, v{176+r}")

def reduce8(final):
    E("v_lshlrev_b32 v150, 5, v0")
    E(f"ds_write_b128 v150, v[160:163] offset:{SC}"); E(f"ds_write_b128 v150, v[164:167] offset:{SC+16}")
    bar()
    E("v_and_b32 v150, 7, v0"); E("v_lshrrev_b32 v151, 3, v0")
    E("v_lshlrev_b32 v152, 8, v151"); E("v_lshl_add_u32 v152, v150, 2, v152")
    for r in range(8): E(f"ds_read_b32 v{168+r}, v152 offset:{SC+32*r}")
    E("s_waitcnt lgkmcnt(0)")
    for r in range(1, 8): E(f"v_add_f32 v168, v168, v{168+r}")
    E("v_lshlrev_b32 v152, 2, v0")
    E(f"ds_write_b32 v152, v168 offset:{SC+8192}")
    bar()
    E("v_lshlrev_b32 v152, 2, v150")
    for r in range(32): E(f"ds_read_b32 v{176+r}, v152 offset:{SC+8192+32*r}")
    E("s_waitcnt lgkmcnt(0)")
    for r in range(1, 32): E(f"v_add_f32 v176, v176, v{176+r}")

n = NAME + "_kernel"
out.append(f".globl {n}"); out.append(".p2align 8"); out.append(f".type {n},@function"); L(n)
E("s_cmp_ge_u32 s2, 256"); E("s_cbranch_scc1 END")
E("s_load_dwordx16 s[64:79], s[0:1], 0")
E("s_load_dwordx8 s[80:87], s[0:1], 64")
E("s_load_dwordx2 s[88:89], s[0:1], 96")
E("s_waitcnt lgkmcnt(0)")
srd(12, 64, 1024); srd(16, 66, 0x8000000); srd(20, 68, 0x8000000); srd(24, 70, 512*4096*2); srd(28, 72, 4096*512*2)
srd(32, 76, 512*1792*2); srd(36, 80, 1792*512*2); srd(40, 88, WSN); srd(44, 86, 256); srd(48, 78, 3584); srd(52, 82, 1024); srd(56, 84, 1024)
E("v_and_b32 v1, 63, v0"); E("v_and_b32 v2, 15, v1"); E("v_lshrrev_b32 v3, 4, v1"); E("v_lshrrev_b32 v4, 6, v0")
E("s_nop 0"); E("v_readfirstlane_b32 s60, v4")
E("s_lshr_b32 s61, s2, 5"); E("s_and_b32 s62, s2, 31")
E("s_or_b32 s63, s2, s60"); E("s_cmp_lg_u32 s63, 0"); E("s_cbranch_scc1 NON")
E("s_memrealtime s[94:95]"); E("s_waitcnt lgkmcnt(0)"); E("s_or_b32 s94, s94, 1")
E("v_mov_b32 v250, 0"); E("v_mov_b32 v251, s94"); E("buffer_store_dword v251, v250, s[44:47], 0 offen sc1")
L("NON")
stamp()
E("v_lshlrev_b32 v144, 4, v1")
E("buffer_load_dwordx4 v[156:159], v144, s[12:15], 0 offen")
E("v_lshrrev_b32 v5, 1, v0"); E("v_and_b32 v6, 1, v0")
E("v_lshlrev_b32 v145, 13, v5"); E("v_lshl_add_u32 v145, v6, 4, v145")
E("s_lshl_b32 s63, s2, 5")
for j in range(4):
    E(f"s_add_u32 s64, s63, {j*128*8192}")
    E(f"buffer_load_dwordx4 v[{8+4*j}:{11+4*j}], v145, s[24:27], s64 offen")
E("s_lshl_b32 s64, s61, 24"); E("s_lshl_b32 s65, s62, 15"); E("s_add_u32 s64, s64, s65"); E(f"s_add_u32 s64, s64, {61440*256}")
E("s_lshr_b32 s65, s2, 3"); E("s_lshl_b32 s65, s65, 17"); E("s_and_b32 s66, s2, 7"); E("s_lshl_b32 s66, s66, 7"); E("s_add_u32 s65, s65, s66")
for j in range(1, 4): E(f"s_add_u32 s{65+j}, s65, {j*32768}")
E("s_waitcnt vmcnt(0)" ) if False else None
E("s_waitcnt vmcnt(4)")
stamp()
unpack8(160, 156)
t = 170
E(f"v_add_f32 v{t}, v160, v161")
for i in range(2, 8): E(f"v_add_f32 v{t}, v{t}, v{160+i}")
wave_reduce("v_add_f32", t)
E(f"v_mul_f32 v{t}, {INV512}, v{t}"); E(f"v_mov_b32 v{t+1}, 0")
for i in range(8):
    E(f"v_sub_f32 v{t+2}, v{160+i}, v{t}"); E(f"v_fmac_f32 v{t+1}, v{t+2}, v{t+2}")
wave_reduce("v_add_f32", t+1)
E(f"v_mul_f32 v{t+1}, {INV512}, v{t+1}")
rbf(t); rbf(t+1); E(f"v_add_f32 v{t+1}, {EPS}, v{t+1}"); rbf(t+1)
E(f"v_sqrt_f32 v{t+1}, v{t+1}"); E("s_nop 0"); rbf(t+1); E(f"v_rcp_f32 v{t+2}, v{t+1}"); E("s_nop 0")
for i in range(8):
    E(f"v_sub_f32 v{t+3}, v{160+i}, v{t}"); rbf(t+3); fdiv(160+i, t+3, t+1, t+2, t+4); rbf(160+i)
E("v_lshlrev_b32 v144, 5, v1")
E("ds_write_b128 v144, v[160:163]"); E("ds_write_b128 v144, v[164:167] offset:16")
E("s_waitcnt lgkmcnt(0)")
E("v_lshlrev_b32 v144, 2, v5")
for j in range(4): E(f"ds_read_b32 v{176+j}, v144 offset:{512*j}")
for k in range(8): E(f"v_mov_b32 v{160+k}, 0")
get_nonce()
E("s_waitcnt vmcnt(0) lgkmcnt(0)")
stamp()


for j in range(4):
    unpack8(168, 8+4*j)
    for k in range(8): E(f"v_fmac_f32 v{160+k}, v{176+j}, v{168+k}")
E("v_lshlrev_b32 v144, 6, v5"); E("v_lshl_add_u32 v144, v6, 5, v144")
E(f"ds_write_b128 v144, v[160:163] offset:{SC}"); E(f"ds_write_b128 v144, v[164:167] offset:{SC+16}")
bar()
E("v_and_b32 v145, 15, v0"); E("v_lshrrev_b32 v146, 4, v0")
E("v_lshlrev_b32 v144, 9, v146"); E("v_lshl_add_u32 v144, v145, 2, v144")
for r in range(8): E(f"ds_read_b32 v{168+r}, v144 offset:{SC+64*r}")
E("s_waitcnt lgkmcnt(0)")
for r in range(1, 8): E(f"v_add_f32 v168, v168, v{168+r}")
E("v_lshlrev_b32 v144, 2, v0"); E(f"ds_write_b32 v144, v168 offset:{SC+8192}")
bar()
E("s_cmp_lg_u32 s60, 0"); E("s_cbranch_scc1 P1D")
E("v_lshlrev_b32 v144, 2, v145")
for r in range(16): E(f"ds_read_b32 v{176+r}, v144 offset:{SC+8192+64*r}")
E("s_waitcnt lgkmcnt(0)")
for r in range(1, 16): E(f"v_add_f32 v176, v176, v{176+r}")
E("s_lshl_b32 s69, s2, 7"); E("v_lshlrev_b32 v144, 1, v144"); E("v_mov_b32 v177, s97")
E("buffer_store_dwordx2 v[176:177], v144, s[40:43], s69 offen sc1")
stamp()
L("P1D")
prefetch()
prefetch2()
E("v_lshlrev_b32 v144, 4, v0"); E("s_lshl_b32 s69, s61, 12")
gather(["buffer_load_dwordx4 v[160:163], v144, s[40:43], s69 offen sc1"], [161, 163])
E("v_cvt_pk_bf16_f32 v160, v160, v162"); E("v_lshlrev_b32 v144, 2, v0"); E("ds_write_b32 v144, v160")
bar()
E("v_and_b32 v7, 3, v1"); E("v_lshlrev_b32 v144, 8, v7"); E("v_lshl_add_u32 v144, v3, 4, v144")
for b in range(4): E(f"ds_read_b128 v[{160+4*b}:{163+4*b}], v144 offset:{64*b}")
for k in range(8): E(f"v_mov_b32 v{176+k}, 0")
E("s_waitcnt lgkmcnt(0)")
for tt in range(2):
    for b in range(4):
        r = 24 + 16*tt + 4*b
        E(f"v_mfma_f32_16x16x32_bf16 v[{176+4*tt}:{179+4*tt}], v[{r}:{r+3}], v[{160+4*b}:{163+4*b}], v[{176+4*tt}:{179+4*tt}]")
E("s_nop 7"); E("s_nop 1")
E(f"s_mov_b32 s76, {SCALE}"); E(f"s_mov_b32 s77, {LOG2E}")
for k in range(8):
    rbf(176+k); E(f"v_mul_f32 v{176+k}, s76, v{176+k}"); rbf(176+k)
E("v_lshlrev_b32 v144, 5, v4"); E("v_lshl_add_u32 v144, v3, 2, v144"); E("v_lshlrev_b32 v144, 4, v144"); E("v_lshl_add_u32 v144, v7, 2, v144")
for tt in range(2):
    for i in range(4): E(f"ds_write_b32 v144, v{176+4*tt+i} offset:{1024 + tt*256 + i*16}")
bar()
E("v_lshlrev_b32 v144, 4, v1")
E("ds_read_b128 v[176:179], v144 offset:1024"); E("ds_read_b128 v[180:183], v144 offset:2048")
E("s_waitcnt lgkmcnt(0)")
for h in range(4): E(f"v_max_f32 v{176+h}, v{176+h}, v{180+h}")
for h in range(4): wave_reduce("v_max_f32", 176+h)
for h in range(4): E(f"v_mul_f32 v{180+h}, s77, v{176+h}")
E("v_lshlrev_b32 v144, 5, v4"); E("v_add_u32 v144, v144, v3"); E("v_lshlrev_b32 v144, 4, v144")
for i in range(8): E(f"ds_read_b128 v[{192+4*i}:{195+4*i}], v144 offset:{1024 + 64*i}")
for k in range(32): E(f"v_mov_b32 v{224+k}, 0")
for h in range(4): E(f"v_mov_b32 v{184+h}, 0")
E("s_waitcnt lgkmcnt(0)")
for i in range(8):
    unpack8(160, 56+4*i)
    for h in range(4): E(f"v_fma_f32 v{188+h}, v{192+4*i+h}, s77, -v{180+h}")
    for h in range(4): E(f"v_exp_f32 v{188+h}, v{188+h}")
    E("s_nop 0")
    for h in range(4):
        E(f"v_add_f32 v{184+h}, v{184+h}, v{188+h}")
        for j in range(8): E(f"v_fmac_f32 v{224+8*h+j}, v{188+h}, v{160+j}")
R0 = SC; LR = SC + 32768
E("v_lshl_add_u32 v145, v4, 2, v3"); E("v_lshlrev_b32 v144, 11, v145"); E("v_lshl_add_u32 v144, v2, 5, v144")
for h in range(4):
    E(f"ds_write_b128 v144, v[{224+8*h}:{227+8*h}] offset:{R0 + 512*h}")
    E(f"ds_write_b128 v144, v[{228+8*h}:{231+8*h}] offset:{R0 + 512*h + 16}")
E("v_lshlrev_b32 v144, 4, v145"); E(f"ds_write_b128 v144, v[184:187] offset:{LR}")
E("v_mov_b32 v144, 0"); E(f"ds_write_b128 v144, v[176:179] offset:{LR+256}")
bar()
E("v_lshlrev_b32 v144, 3, v0")
for r in range(16): E(f"ds_read_b64 v[{192+2*r}:{193+2*r}], v144 offset:{R0 + 2048*r}")
E("v_and_b32 v145, 3, v0"); E("v_lshlrev_b32 v145, 2, v145")
for r in range(16): E(f"ds_read_b32 v{224+r}, v145 offset:{LR+16*r}")
E(f"ds_read_b32 v240, v145 offset:{LR+256}")
E("s_waitcnt lgkmcnt(0)")
for r in range(1, 16):
    E(f"v_add_f32 v192, v192, v{192+2*r}"); E(f"v_add_f32 v193, v193, v{193+2*r}"); E(f"v_add_f32 v224, v224, v{224+r}")
E("v_mov_b32 v242, v224"); E("v_mov_b32 v241, s97"); E("v_mov_b32 v243, s97")
E("v_mov_b32 v194, v193"); E("v_mov_b32 v193, s97"); E("v_mov_b32 v195, s97")
E("v_lshlrev_b32 v144, 15, v4"); E("v_lshl_add_u32 v144, v1, 4, v144")
E("s_lshl_b32 s68, s61, 17"); E("s_lshl_b32 s69, s62, 10"); E("s_add_u32 s68, s68, s69"); E(f"s_add_u32 s68, s68, {APO}")
E("buffer_store_dwordx4 v[192:195], v144, s[40:43], s68 offen sc1")
E("v_lshlrev_b32 v144, 7, v145")
E("s_lshl_b32 s68, s61, 11"); E("s_lshl_b32 s69, s62, 4"); E("s_add_u32 s68, s68, s69"); E(f"s_add_u32 s68, s68, {APM}")
E("buffer_store_dwordx4 v[240:243], v144, s[40:43], s68 offen sc1")
stamp()
E("s_lshr_b32 s68, s2, 3")
E("v_and_b32 v144, 31, v1"); E("v_lshlrev_b32 v149, 4, v144"); E("v_lshlrev_b32 v144, 3, v144")
E("s_lshl_b32 s69, s68, 9"); E(f"s_add_u32 s69, s69, {APM}")
E("v_lshrrev_b32 v145, 7, v0"); E("v_and_b32 v146, 127, v0")
E("v_lshlrev_b32 v147, 14, v145"); E("v_lshl_add_u32 v147, v146, 3, v147")
for q in range(1, 4): E(f"v_add_u32 v{151+q}, {4096*q}, v147")
E("v_mov_b32 v151, v147")
E("s_lshl_b32 s70, s68, 15"); E(f"s_add_u32 s70, s70, {APO}")
lds_ = ["buffer_load_dwordx4 v[156:159], v149, s[40:43], s69 offen sc1"]
for s_ in range(16): lds_.append(f"buffer_load_dwordx2 v[{192+2*s_}:{193+2*s_}], v{151 + s_//4}, s[40:43], s70 offen offset:{1024*(s_%4)} sc1")
gather(lds_, [157, 159] + [193+2*s_ for s_ in range(16)])
E("v_mov_b32 v160, v156"); E("v_mov_b32 v161, v158")
E("v_mov_b32 v162, v160"); wave_reduce("v_max_f32", 162)
E("v_sub_f32 v163, v160, v162"); E("v_mul_f32 v163, s77, v163"); E("v_exp_f32 v163, v163"); E("s_nop 0")
E("v_mul_f32 v162, v163, v161"); wave_reduce("v_add_f32", 162)
E("v_mul_f32 v162, 0.5, v162"); E("v_rcp_f32 v164, v162"); E("s_nop 0")
fdiv(165, 163, 162, 164, 166)
E("v_lshrrev_b32 v144, 1, v144"); E("ds_write_b32 v144, v165 offset:1024"); E("s_waitcnt lgkmcnt(0)")
E("v_lshlrev_b32 v144, 6, v145")
for q in range(4): E(f"ds_read_b128 v[{228+4*q}:{231+4*q}], v144 offset:{1024+16*q}")
E("s_waitcnt vmcnt(0) lgkmcnt(0)")
E("v_mul_f32 v168, v192, v228")
for s in range(1, 16): E(f"v_fmac_f32 v168, v{192+2*s}, v{228+s}")
E("v_lshlrev_b32 v144, 2, v0"); E("ds_write_b32 v144, v168")
bar()
E("v_lshrrev_b32 v5, 3, v0"); E("v_and_b32 v6, 7, v0")
E("v_lshlrev_b32 v144, 2, v5")
for j in range(4):
    E(f"ds_read_b32 v{176+j}, v144 offset:{128*j}"); E(f"ds_read_b32 v{180+j}, v144 offset:{512+128*j}")
for k in range(8): E(f"v_mov_b32 v{160+k}, 0")
E("s_waitcnt lgkmcnt(0)")
for j in range(4):
    E(f"v_add_f32 v{176+j}, v{176+j}, v{180+j}"); rbf(176+j)
for j in range(4):
    unpack8(168, 88+4*j)
    for k in range(8): E(f"v_fmac_f32 v{160+k}, v{176+j}, v{168+k}")
E("v_lshlrev_b32 v144, 8, v5"); E("v_lshl_add_u32 v144, v6, 5, v144")
E(f"ds_write_b128 v144, v[160:163] offset:{SC}"); E(f"ds_write_b128 v144, v[164:167] offset:{SC+16}")
bar()
E("v_lshlrev_b32 v144, 11, v4"); E("v_lshl_add_u32 v144, v1, 2, v144")
for r in range(8): E(f"ds_read_b32 v{168+r}, v144 offset:{SC+256*r}")
E("s_waitcnt lgkmcnt(0)")
for r in range(1, 8): E(f"v_add_f32 v168, v168, v{168+r}")
E("v_lshlrev_b32 v144, 2, v0"); E(f"ds_write_b32 v144, v168 offset:{SC+8192}")
bar()
E("s_cmp_lg_u32 s60, 0"); E("s_cbranch_scc1 P3D")
for r in range(4): E(f"ds_read_b32 v{176+r}, v144 offset:{SC+8192+256*r}")
E("s_waitcnt lgkmcnt(0)")
for r in range(1, 4): E(f"v_add_f32 v176, v176, v{176+r}")
E("s_lshl_b32 s69, s2, 9"); E(f"s_add_u32 s69, s69, {OP}"); E("v_lshlrev_b32 v144, 1, v144"); E("v_mov_b32 v177, s97")
E("buffer_store_dwordx2 v[176:177], v144, s[40:43], s69 offen sc1")
stamp()
L("P3D")
E("s_cmp_ge_u32 s2, 224"); E("s_cbranch_scc1 END")
E("v_lshlrev_b32 v145, 4, v0")
E("v_mov_b32 v146, 0"); E("v_mov_b32 v147, 0")
regs_ = [8+4*i for i in range(20)] + [192+4*i for i in range(12)]
lds_ = []
for r in range(32):
    lds_.append(f"s_mov_b32 s69, {OP + r*4096}")
    lds_.append(f"buffer_load_dwordx4 v[{regs_[r]}:{regs_[r]+3}], v145, s[40:43], s69 offen sc1")
gather(lds_, [x+1 for x in regs_] + [x+3 for x in regs_])
for r in range(32):
    E(f"v_add_f32 v146, v146, v{regs_[r]}"); E(f"v_add_f32 v147, v147, v{regs_[r]+2}")
E("v_mov_b32 v192, v146"); E("v_mov_b32 v193, v147")
E("v_lshlrev_b32 v144, 3, v0")
rbf(192); rbf(193)
E("v_lshlrev_b32 v146, 16, v142"); E("v_and_b32 v147, 0xffff0000, v142")
E("v_add_f32 v192, v192, v146"); E("v_add_f32 v193, v193, v147"); rbf(192); rbf(193)
E("s_cmp_lg_u32 s2, 0"); E("s_cbranch_scc1 NOH")
E(f"s_mov_b32 s69, {HH}"); E("v_mov_b32 v196, v192"); E("v_mov_b32 v197, s97"); E("v_mov_b32 v198, v193"); E("v_mov_b32 v199, s97")
E("buffer_store_dwordx4 v[196:199], v145, s[40:43], s69 offen sc1"); E("s_nop 1")
L("NOH")
def block_sum(v, off):
    wave_reduce("v_add_f32", v)
    E("v_lshlrev_b32 v146, 2, v4"); E(f"ds_write_b32 v146, v{v} offset:{off}")
    bar()
    E("v_mov_b32 v146, 0"); E(f"ds_read_b128 v[148:151], v146 offset:{off}"); E("s_waitcnt lgkmcnt(0)")
    E(f"v_add_f32 v{v}, v148, v149"); E(f"v_add_f32 v{v}, v{v}, v150"); E(f"v_add_f32 v{v}, v{v}, v151")
E("v_add_f32 v194, v192, v193"); block_sum(194, SC)
E(f"v_mul_f32 v194, {INV512}, v194")
E("v_sub_f32 v196, v192, v194"); E("v_mul_f32 v195, v196, v196"); E("v_sub_f32 v196, v193, v194"); E("v_fmac_f32 v195, v196, v196")
block_sum(195, SC+16)
E(f"v_mul_f32 v195, {INV512}, v195"); rbf(194); rbf(195)
E(f"v_add_f32 v195, {EPS}, v195"); rbf(195); E("v_sqrt_f32 v195, v195"); E("s_nop 0"); rbf(195)
E("v_rcp_f32 v196, v195"); E("s_nop 0")
for i in range(2):
    E(f"v_sub_f32 v197, v{192+i}, v194"); rbf(197); fdiv(192+i, 197, 195, 196, 198); rbf(192+i)
E("ds_write_b64 v144, v[192:193]")
bar()
E("s_and_b32 s69, s2, 7"); E("s_lshl_b32 s69, s69, 6"); E("v_add_u32 v144, s69, v5"); E("v_lshlrev_b32 v144, 2, v144")
E("ds_read_b32 v176, v144"); E("ds_read_b32 v177, v144 offset:128")
for k in range(8): E(f"v_mov_b32 v{160+k}, 0")
E("s_waitcnt lgkmcnt(0)")
for j in range(2):
    unpack8(168, 104+4*j)
    for k in range(8): E(f"v_fmac_f32 v{160+k}, v{176+j}, v{168+k}")
reduce64()
E("s_cmp_lg_u32 s60, 0"); E("s_cbranch_scc1 P4D")
E("s_and_b32 s69, s2, 7"); E("s_mul_i32 s69, s69, 1792*8"); E("s_lshr_b32 s74, s2, 3"); E("s_lshl_b32 s74, s74, 9"); E("s_add_u32 s69, s69, s74"); E(f"s_add_u32 s69, s69, {H1}")
E("v_mov_b32 v177, s97"); E("v_lshlrev_b32 v144, 1, v144")
E("buffer_store_dwordx2 v[176:177], v144, s[40:43], s69 offen sc1")
stamp()
L("P4D")
E("v_lshlrev_b32 v144, 3, v1"); E("s_lshr_b32 s70, s2, 3"); E("s_lshl_b32 s70, s70, 9"); E(f"s_add_u32 s70, s70, {H1}")
lds_ = []
for p in range(8):
    lds_.append(f"s_add_u32 s69, s70, {p*1792*8}")
    lds_.append(f"buffer_load_dwordx2 v[{192+2*p}:{193+2*p}], v144, s[40:43], s69 offen sc1")
gather(lds_, [193+2*p for p in range(8)])
for p in range(1, 8): E(f"v_add_f32 v192, v192, v{192+2*p}")
E("v_mov_b32 v176, v192")
rbf(176); E("v_lshlrev_b32 v140, 16, v140"); E("v_add_f32 v176, v176, v140"); rbf(176)
E("v_mul_f32 v177, v176, v176"); E("v_mul_f32 v177, v177, v176"); E("s_mov_b32 s69, 0x3d372713"); E("v_fma_f32 v177, v177, s69, v176")
E("v_mul_f32 v177, 0x40135761, v177"); E("v_exp_f32 v177, v177"); E("s_nop 0"); E("v_add_f32 v177, 1.0, v177")
E("v_rcp_f32 v177, v177"); E("s_nop 0"); E("v_fma_f32 v177, v177, -2.0, 1.0"); E("v_add_f32 v177, 1.0, v177")
E("v_mul_f32 v177, v177, v176"); E("v_mul_f32 v177, 0.5, v177"); rbf(177)
E("v_lshlrev_b32 v144, 2, v1"); E("ds_write_b32 v144, v177 offset:4096"); E("s_waitcnt lgkmcnt(0)")
E("v_lshlrev_b32 v144, 2, v5")
E("ds_read_b32 v176, v144 offset:4096"); E("ds_read_b32 v177, v144 offset:4224")
for k in range(8): E(f"v_mov_b32 v{160+k}, 0")
E("s_waitcnt lgkmcnt(0)")
for j in range(2):
    unpack8(168, 112+4*j)
    for k in range(8): E(f"v_fmac_f32 v{160+k}, v{176+j}, v{168+k}")
reduce64()
E("s_cmp_lg_u32 s60, 0"); E("s_cbranch_scc1 END")
E("s_lshl_b32 s69, s2, 9"); E(f"s_add_u32 s69, s69, {F2}")
E("v_mov_b32 v177, s97"); E("v_lshlrev_b32 v144, 1, v144")
E("buffer_store_dwordx2 v[176:177], v144, s[40:43], s69 offen sc1")
stamp()
E("s_cmp_ge_u32 s2, 8"); E("s_cbranch_scc1 END")
E("s_lshl_b32 s70, s2, 9")
lds_ = [f"s_add_u32 s69, s70, {HH}", "buffer_load_dwordx2 v[248:249], v144, s[40:43], s69 offen sc1"]
for k in range(28):
    lds_.append(f"s_add_u32 s69, s70, {F2 + 4096*k}")
    lds_.append(f"buffer_load_dwordx2 v[{192+2*k}:{193+2*k}], v144, s[40:43], s69 offen sc1")
gather(lds_, [249] + [193+2*k for k in range(28)])
for k in range(1, 28): E(f"v_add_f32 v192, v192, v{192+2*k}")
rbf(192); E("v_lshlrev_b32 v141, 16, v141"); E("v_add_f32 v192, v192, v141"); rbf(192)
E("v_add_f32 v192, v192, v248"); E("v_cvt_pk_bf16_f32 v192, v192, v192")
E("v_lshlrev_b32 v145, 1, v1"); E("s_lshl_b32 s69, s2, 7")
E("buffer_store_short v192, v145, s[56:59], s69 offen")
stamp()
L("END"); E("s_endpgm")

hdr = open(f"cdna_kernels/{NAME}.s.ref").read().split("; Override")[0]
res = [hdr.rstrip("\n"), f"; @launch grid=(256,1,1) block=(256,1,1) lds={SC+32768+512}",
       '.amdgcn_target "amdgcn-amd-amdhsa--gfx950"', ".text"] + out
res.append(f""".section .rodata,"a"
.p2align 6
.amdhsa_kernel {n}
  .amdhsa_next_free_vgpr 256
  .amdhsa_next_free_sgpr 102
  .amdhsa_accum_offset 256
  .amdhsa_group_segment_fixed_size 0
  .amdhsa_kernarg_size 104
  .amdhsa_user_sgpr_count 2
  .amdhsa_user_sgpr_kernarg_segment_ptr 1
  .amdhsa_system_sgpr_workgroup_id_x 1
.end_amdhsa_kernel""")
path = sys.argv[1] if len(sys.argv) > 1 else f"cdna_kernels/{NAME}.s"
open(path, "w").write("\n".join(res) + "\n")
```

```python
import sys
NAME = "sequential_preLN__sliding_block_cached__dense_activation_gelu__decode"
out = []
def E(s): out.append("    " + s)
def L(s): out.append(s + ":")

Q   = 0
APO = 32768
APM = APO + 1048576
OP  = APM + 16384
HH  = OP + 131072
H1  = HH + 4096
F2  = H1 + 8*1792*8
WSN = 1 << 22
LOG2E = 0x3fb8aa3b; SCALE = 0x3db504f3; EPS = 0x3727c5ac; INV512 = 0x3b000000
SC = 8192

def srd(d, b, n):
    E(f"s_mov_b32 s{d}, s{b}"); E(f"s_and_b32 s{d+1}, s{b+1}, 0xffff")
    E(f"s_mov_b32 s{d+2}, {n}"); E(f"s_mov_b32 s{d+3}, 0x00020000")
def rbf(v):
    E(f"v_cvt_pk_bf16_f32 v{v}, v{v}, v{v}"); E(f"v_lshlrev_b32 v{v}, 16, v{v}")
def wave_reduce(op, v, st=90):
    for mode in ["quad_perm:[1,0,3,2]", "quad_perm:[2,3,0,1]", "row_half_mirror", "row_mirror"]:
        E("s_nop 1"); E(f"{op}_dpp v{v}, v{v}, v{v} {mode} row_mask:0xf bank_mask:0xf")
    E("s_nop 1")
    for i in range(4): E(f"v_readlane_b32 s{st+i}, v{v}, {16*i}")
    E("s_nop 1"); E(f"v_mov_b32 v{v}, s{st}")
    for i in range(1, 4): E(f"{op} v{v}, s{st+i}, v{v}")
def unpack8(dst, src):
    for i in range(4):
        E(f"v_lshlrev_b32 v{dst+2*i}, 16, v{src+i}"); E(f"v_and_b32 v{dst+2*i+1}, 0xffff0000, v{src+i}")
def fdiv(dst, num, den, rcp, t):
    E(f"v_mul_f32 v{dst}, v{num}, v{rcp}"); E(f"v_fma_f32 v{t}, -v{dst}, v{den}, v{num}"); E(f"v_fma_f32 v{dst}, v{t}, v{rcp}, v{dst}")
def bar():
    E("s_waitcnt lgkmcnt(0)"); E("s_barrier")

STAMP = len(sys.argv) > 2
stampn = [0]
def stamp():
    if not STAMP: return
    k = stampn[0]; stampn[0] += 1
    E("s_cmp_lg_u32 s60, 0"); E(f"s_cbranch_scc1 ST{k}")
    E("s_memrealtime s[94:95]"); E("s_waitcnt lgkmcnt(0)")
    E("v_mov_b32 v254, s94"); E("s_lshl_b32 s96, s2, 6"); E(f"s_add_u32 s96, s96, {3145728 + 4*k}")
    E("v_mov_b32 v255, 0")
    E("buffer_store_dword v254, v255, s[40:43], s96 offen")
    L(f"ST{k}")
pollcnt = [0]
def poll(base_sgpr_expr, count, val):
    pollcnt[0] += 1; n = pollcnt[0]
    E("s_cmp_lg_u32 s60, 0"); E(f"s_cbranch_scc1 PD{n}")
    E("s_mov_b32 s71, 0")
    if count <= 64:
        E(f"v_min_u32 v250, {count-1}, v1"); E("v_add_u32 v250, s70, v250")
        L(f"PL{n}")
        E("buffer_load_ubyte v251, v250, s[44:47], 0 offen sc1")
        E("s_waitcnt vmcnt(0)")
        E(f"v_cmp_le_u32 vcc, {val}, v251")
    else:
        nd = count // 4
        E(f"v_min_u32 v250, {nd-1}, v1"); E("v_lshlrev_b32 v250, 2, v250")
        L(f"PL{n}")
        E("buffer_load_dword v251, v250, s[44:47], 0 offen sc1")
        E("s_waitcnt vmcnt(0)")
        E("v_bfe_u32 v252, v251, 0, 8"); E("v_bfe_u32 v253, v251, 8, 8"); E("v_min_u32 v252, v252, v253")
        E("v_bfe_u32 v253, v251, 16, 8"); E("v_min_u32 v252, v252, v253")
        E("v_lshrrev_b32 v253, 24, v251"); E("v_min_u32 v252, v252, v253")
        E(f"v_cmp_le_u32 vcc, {val}, v252")
    E("s_nop 4")
    E("s_cmp_eq_u64 vcc, exec"); E(f"s_cbranch_scc1 PD{n}")
    E("s_add_u32 s71, s71, 1"); E("s_cmp_lt_u32 s71, 0x40000"); E(f"s_cbranch_scc1 PL{n}")
    L(f"PD{n}")
    E("s_barrier")
    stamp()
def publish(val, all_waves=True):
    pollcnt[0] += 1; n = pollcnt[0]
    E("s_waitcnt vmcnt(0)")
    if all_waves: E("s_barrier")
    E("s_cmp_lg_u32 s60, 0"); E(f"s_cbranch_scc1 PB{n}")
    E(f"v_mov_b32 v250, s2"); E(f"v_mov_b32 v251, {val}")
    E("v_cmp_eq_u32 vcc, 0, v1"); E("s_and_saveexec_b64 s[72:73], vcc")
    E("buffer_store_byte v251, v250, s[44:47], 0 offen sc1")
    E("s_mov_b64 exec, s[72:73]")
    L(f"PB{n}")
    stamp()

def get_nonce():
    pollcnt[0] += 1; n = pollcnt[0]
    E("s_mov_b32 s71, 0"); E("v_mov_b32 v250, 0")
    L(f"NL{n}")
    E("buffer_load_dword v251, v250, s[44:47], 0 offen sc1"); E("s_waitcnt vmcnt(0)")
    E("v_readfirstlane_b32 s97, v251"); E("s_nop 3")
    E("s_cmp_lg_u32 s97, 0"); E(f"s_cbranch_scc1 ND{n}")
    E("s_add_u32 s71, s71, 1"); E("s_cmp_lt_u32 s71, 0x40000"); E(f"s_cbranch_scc1 NL{n}")
    L(f"ND{n}")
def gather(loads, tags):
    pollcnt[0] += 1; n = pollcnt[0]
    E("s_mov_b32 s71, 0")
    L(f"GL{n}")
    for l in loads: E(l)
    E("s_waitcnt vmcnt(0)")
    E(f"v_xor_b32 v250, s97, v{tags[0]}")
    for t_ in tags[1:]:
        E(f"v_xor_b32 v251, s97, v{t_}"); E("v_or_b32 v250, v250, v251")
    E("v_cmp_eq_u32 vcc, 0, v250"); E("s_nop 4")
    E("s_cmp_eq_u64 vcc, exec"); E(f"s_cbranch_scc1 GD{n}")
    E("s_add_u32 s71, s71, 1"); E("s_cmp_lt_u32 s71, 0x20000"); E(f"s_cbranch_scc1 GL{n}")
    L(f"GD{n}")
    stamp()
def prefetch():
    E("v_lshlrev_b32 v144, 5, v4"); E("v_add_u32 v144, v144, v2"); E("v_lshlrev_b32 v144, 8, v144")
    E("v_lshl_add_u32 v144, v3, 4, v144"); E("v_add_u32 v145, 4096, v144")
    for t in range(2):
        for b in range(4):
            r = 24 + 16*t + 4*b
            E(f"buffer_load_dwordx4 v[{r}:{r+3}], v{144+t}, s[16:19], s64 offen offset:{64*b}")
    E("v_lshlrev_b32 v146, 5, v4"); E("v_add_u32 v146, v146, v3"); E("v_lshlrev_b32 v146, 8, v146")
    E("v_lshl_add_u32 v146, v2, 4, v146"); E("v_add_u32 v147, 4096, v146")
    for i in range(8):
        r = 56 + 4*i
        E(f"buffer_load_dwordx4 v[{r}:{r+3}], v{146 + i//4}, s[20:23], s64 offen offset:{1024*(i%4)}")
def prefetch2():
    E("s_lshr_b32 s65, s2, 3"); E("s_lshl_b32 s65, s65, 17"); E("s_and_b32 s66, s2, 7"); E("s_lshl_b32 s66, s66, 7"); E("s_add_u32 s65, s65, s66")
    for j in range(1, 4): E(f"s_add_u32 s{65+j}, s65, {j*32768}")
    E("v_lshrrev_b32 v148, 3, v0"); E("v_and_b32 v149, 7, v0")
    E("v_lshlrev_b32 v148, 10, v148"); E("v_lshl_add_u32 v148, v149, 4, v148")
    for j in range(4):
        E(f"buffer_load_dwordx4 v[{88+4*j}:{91+4*j}], v148, s[28:31], s{65+j} offen")
    E("v_lshrrev_b32 v148, 3, v0"); E("v_and_b32 v149, 7, v0")
    E("s_movk_i32 s69, 3584"); E("v_mul_lo_u32 v150, v148, s69"); E("v_lshl_add_u32 v150, v149, 4, v150")
    E("s_and_b32 s69, s2, 7"); E("s_mul_i32 s69, s69, 64*3584"); E("s_lshr_b32 s74, s2, 3"); E("s_lshl_b32 s74, s74, 7"); E("s_add_u32 s69, s69, s74")
    E("s_add_u32 s74, s69, 32*3584")
    E("buffer_load_dwordx4 v[104:107], v150, s[32:35], s69 offen")
    E("buffer_load_dwordx4 v[108:111], v150, s[32:35], s74 offen")
    E("v_lshlrev_b32 v150, 10, v148"); E("v_lshl_add_u32 v150, v149, 4, v150")
    E("s_lshr_b32 s69, s2, 3"); E("s_lshl_b32 s69, s69, 16"); E("s_and_b32 s74, s2, 7"); E("s_lshl_b32 s74, s74, 7"); E("s_add_u32 s69, s69, s74")
    E("s_add_u32 s74, s69, 32768")
    E("buffer_load_dwordx4 v[112:115], v150, s[36:39], s69 offen")
    E("buffer_load_dwordx4 v[116:119], v150, s[36:39], s74 offen")
    E("v_lshlrev_b32 v148, 1, v1")
    E("s_lshr_b32 s69, s2, 3"); E("s_lshl_b32 s69, s69, 7")
    E("buffer_load_ushort v140, v148, s[48:51], s69 offen")
    E("s_lshl_b32 s69, s2, 7")
    E("buffer_load_ushort v141, v148, s[52:55], s69 offen")
    E("v_lshlrev_b32 v148, 2, v0")
    E("buffer_load_dword v142, v148, s[12:15], 0 offen")

def reduce64():
    E("v_lshlrev_b32 v144, 8, v5"); E("v_lshl_add_u32 v144, v6, 5, v144")
    E(f"ds_write_b128 v144, v[160:163] offset:{SC}"); E(f"ds_write_b128 v144, v[164:167] offset:{SC+16}")
    bar()
    E("v_lshlrev_b32 v144, 11, v4"); E("v_lshl_add_u32 v144, v1, 2, v144")
    for r in range(8): E(f"ds_read_b32 v{168+r}, v144 offset:{SC+256*r}")
    E("s_waitcnt lgkmcnt(0)")
    for r in range(1, 8): E(f"v_add_f32 v168, v168, v{168+r}")
    E("v_lshlrev_b32 v144, 2, v0"); E(f"ds_write_b32 v144, v168 offset:{SC+8192}")
    bar()
    E("v_lshlrev_b32 v144, 2, v1")
    for r in range(4): E(f"ds_read_b32 v{176+r}, v144 offset:{SC+8192+256*r}")
    E("s_waitcnt lgkmcnt(0)")
    for r in range(1, 4): E(f"v_add_f32 v176, v176, v{176+r}")

def reduce8(final):
    E("v_lshlrev_b32 v150, 5, v0")
    E(f"ds_write_b128 v150, v[160:163] offset:{SC}"); E(f"ds_write_b128 v150, v[164:167] offset:{SC+16}")
    bar()
    E("v_and_b32 v150, 7, v0"); E("v_lshrrev_b32 v151, 3, v0")
    E("v_lshlrev_b32 v152, 8, v151"); E("v_lshl_add_u32 v152, v150, 2, v152")
    for r in range(8): E(f"ds_read_b32 v{168+r}, v152 offset:{SC+32*r}")
    E("s_waitcnt lgkmcnt(0)")
    for r in range(1, 8): E(f"v_add_f32 v168, v168, v{168+r}")
    E("v_lshlrev_b32 v152, 2, v0")
    E(f"ds_write_b32 v152, v168 offset:{SC+8192}")
    bar()
    E("v_lshlrev_b32 v152, 2, v150")
    for r in range(32): E(f"ds_read_b32 v{176+r}, v152 offset:{SC+8192+32*r}")
    E("s_waitcnt lgkmcnt(0)")
    for r in range(1, 32): E(f"v_add_f32 v176, v176, v{176+r}")

n = NAME + "_kernel"
out.append(f".globl {n}"); out.append(".p2align 8"); out.append(f".type {n},@function"); L(n)
E("s_cmp_ge_u32 s2, 256"); E("s_cbranch_scc1 END")
E("s_load_dwordx16 s[64:79], s[0:1], 0")
E("s_load_dwordx8 s[80:87], s[0:1], 64")
E("s_load_dwordx2 s[88:89], s[0:1], 96")
E("s_waitcnt lgkmcnt(0)")
srd(12, 64, 1024); srd(16, 66, 0x8000000); srd(20, 68, 0x8000000); srd(24, 70, 512*4096*2); srd(28, 72, 4096*512*2)
srd(32, 76, 512*1792*2); srd(36, 80, 1792*512*2); srd(40, 88, WSN); srd(44, 86, 256); srd(48, 78, 3584); srd(52, 82, 1024); srd(56, 84, 1024)
E("v_and_b32 v1, 63, v0"); E("v_and_b32 v2, 15, v1"); E("v_lshrrev_b32 v3, 4, v1"); E("v_lshrrev_b32 v4, 6, v0")
E("s_nop 0"); E("v_readfirstlane_b32 s60, v4")
E("s_lshr_b32 s61, s2, 5"); E("s_and_b32 s62, s2, 31")
E("s_or_b32 s63, s2, s60"); E("s_cmp_lg_u32 s63, 0"); E("s_cbranch_scc1 NON")
E("s_memrealtime s[94:95]"); E("s_waitcnt lgkmcnt(0)"); E("s_or_b32 s94, s94, 1")
E("v_mov_b32 v250, 0"); E("v_mov_b32 v251, s94"); E("buffer_store_dword v251, v250, s[44:47], 0 offen sc1")
L("NON")
stamp()
E("v_lshlrev_b32 v144, 4, v1")
E("buffer_load_dwordx4 v[156:159], v144, s[12:15], 0 offen")
E("v_lshrrev_b32 v5, 1, v0"); E("v_and_b32 v6, 1, v0")
E("v_lshlrev_b32 v145, 13, v5"); E("v_lshl_add_u32 v145, v6, 4, v145")
E("s_lshl_b32 s63, s2, 5")
for j in range(4):
    E(f"s_add_u32 s64, s63, {j*128*8192}")
    E(f"buffer_load_dwordx4 v[{8+4*j}:{11+4*j}], v145, s[24:27], s64 offen")
E("s_lshl_b32 s64, s61, 24"); E("s_lshl_b32 s65, s62, 15"); E("s_add_u32 s64, s64, s65"); E(f"s_add_u32 s64, s64, {61440*256}")
E("s_lshr_b32 s65, s2, 3"); E("s_lshl_b32 s65, s65, 17"); E("s_and_b32 s66, s2, 7"); E("s_lshl_b32 s66, s66, 7"); E("s_add_u32 s65, s65, s66")
for j in range(1, 4): E(f"s_add_u32 s{65+j}, s65, {j*32768}")
E("s_cmp_eq_u32 s60, 0"); E("s_cbranch_scc1 NOPF")
prefetch()
prefetch2()
E("s_waitcnt vmcnt(31)"); E("s_branch NOPF2")
L("NOPF")
E("s_waitcnt vmcnt(4)")
L("NOPF2")
E("s_waitcnt vmcnt(0)" ) if False else None
stamp()
unpack8(160, 156)
t = 170
E(f"v_add_f32 v{t}, v160, v161")
for i in range(2, 8): E(f"v_add_f32 v{t}, v{t}, v{160+i}")
wave_reduce("v_add_f32", t)
E(f"v_mul_f32 v{t}, {INV512}, v{t}"); E(f"v_mov_b32 v{t+1}, 0")
for i in range(8):
    E(f"v_sub_f32 v{t+2}, v{160+i}, v{t}"); E(f"v_fmac_f32 v{t+1}, v{t+2}, v{t+2}")
wave_reduce("v_add_f32", t+1)
E(f"v_mul_f32 v{t+1}, {INV512}, v{t+1}")
rbf(t); rbf(t+1); E(f"v_add_f32 v{t+1}, {EPS}, v{t+1}"); rbf(t+1)
E(f"v_sqrt_f32 v{t+1}, v{t+1}"); E("s_nop 0"); rbf(t+1); E(f"v_rcp_f32 v{t+2}, v{t+1}"); E("s_nop 0")
for i in range(8):
    E(f"v_sub_f32 v{t+3}, v{160+i}, v{t}"); rbf(t+3); fdiv(160+i, t+3, t+1, t+2, t+4); rbf(160+i)
E("v_lshlrev_b32 v144, 5, v1")
E("ds_write_b128 v144, v[160:163]"); E("ds_write_b128 v144, v[164:167] offset:16")
E("s_waitcnt lgkmcnt(0)")
E("v_lshlrev_b32 v144, 2, v5")
for j in range(4): E(f"ds_read_b32 v{176+j}, v144 offset:{512*j}")
for k in range(8): E(f"v_mov_b32 v{160+k}, 0")
E("s_cmp_eq_u32 s60, 0"); E("s_cbranch_scc1 W0Y")
E("s_waitcnt vmcnt(27) lgkmcnt(0)"); E("s_branch W1Y")
L("W0Y")
get_nonce()
E("s_waitcnt vmcnt(0) lgkmcnt(0)")
L("W1Y")
stamp()


for j in range(4):
    unpack8(168, 8+4*j)
    for k in range(8): E(f"v_fmac_f32 v{160+k}, v{176+j}, v{168+k}")
E("v_lshlrev_b32 v144, 6, v5"); E("v_lshl_add_u32 v144, v6, 5, v144")
E(f"ds_write_b128 v144, v[160:163] offset:{SC}"); E(f"ds_write_b128 v144, v[164:167] offset:{SC+16}")
bar()
E("v_and_b32 v145, 15, v0"); E("v_lshrrev_b32 v146, 4, v0")
E("v_lshlrev_b32 v144, 9, v146"); E("v_lshl_add_u32 v144, v145, 2, v144")
for r in range(8): E(f"ds_read_b32 v{168+r}, v144 offset:{SC+64*r}")
E("s_waitcnt lgkmcnt(0)")
for r in range(1, 8): E(f"v_add_f32 v168, v168, v{168+r}")
E("v_lshlrev_b32 v144, 2, v0"); E(f"ds_write_b32 v144, v168 offset:{SC+8192}")
bar()
E("s_cmp_lg_u32 s60, 0"); E("s_cbranch_scc1 P1D")
E("v_lshlrev_b32 v144, 2, v145")
for r in range(16): E(f"ds_read_b32 v{176+r}, v144 offset:{SC+8192+64*r}")
E("s_waitcnt lgkmcnt(0)")
for r in range(1, 16): E(f"v_add_f32 v176, v176, v{176+r}")
E("s_lshl_b32 s69, s2, 7"); E("v_lshlrev_b32 v144, 1, v144"); E("v_mov_b32 v177, s97")
E("buffer_store_dwordx2 v[176:177], v144, s[40:43], s69 offen sc1")
stamp()
prefetch()
prefetch2()
L("P1D")
E("s_cmp_eq_u32 s60, 0"); E("s_cbranch_scc1 HASN")
get_nonce()
L("HASN")
E("v_lshlrev_b32 v144, 4, v0"); E("s_lshl_b32 s69, s61, 12")
gather(["buffer_load_dwordx4 v[160:163], v144, s[40:43], s69 offen sc1"], [161, 163])
E("v_cvt_pk_bf16_f32 v160, v160, v162"); E("v_lshlrev_b32 v144, 2, v0"); E("ds_write_b32 v144, v160")
bar()
E("v_and_b32 v7, 3, v1"); E("v_lshlrev_b32 v144, 8, v7"); E("v_lshl_add_u32 v144, v3, 4, v144")
for b in range(4): E(f"ds_read_b128 v[{160+4*b}:{163+4*b}], v144 offset:{64*b}")
for k in range(8): E(f"v_mov_b32 v{176+k}, 0")
E("s_waitcnt lgkmcnt(0)")
for tt in range(2):
    for b in range(4):
        r = 24 + 16*tt + 4*b
        E(f"v_mfma_f32_16x16x32_bf16 v[{176+4*tt}:{179+4*tt}], v[{r}:{r+3}], v[{160+4*b}:{163+4*b}], v[{176+4*tt}:{179+4*tt}]")
E("s_nop 7"); E("s_nop 1")
E(f"s_mov_b32 s76, {SCALE}"); E(f"s_mov_b32 s77, {LOG2E}")
for k in range(8):
    rbf(176+k); E(f"v_mul_f32 v{176+k}, s76, v{176+k}"); rbf(176+k)
E("v_lshlrev_b32 v144, 5, v4"); E("v_lshl_add_u32 v144, v3, 2, v144"); E("v_lshlrev_b32 v144, 4, v144"); E("v_lshl_add_u32 v144, v7, 2, v144")
for tt in range(2):
    for i in range(4): E(f"ds_write_b32 v144, v{176+4*tt+i} offset:{1024 + tt*256 + i*16}")
bar()
E("v_lshlrev_b32 v144, 4, v1")
E("ds_read_b128 v[176:179], v144 offset:1024"); E("ds_read_b128 v[180:183], v144 offset:2048")
E("s_waitcnt lgkmcnt(0)")
for h in range(4): E(f"v_max_f32 v{176+h}, v{176+h}, v{180+h}")
for h in range(4): wave_reduce("v_max_f32", 176+h)
for h in range(4): E(f"v_mul_f32 v{180+h}, s77, v{176+h}")
E("v_lshlrev_b32 v144, 5, v4"); E("v_add_u32 v144, v144, v3"); E("v_lshlrev_b32 v144, 4, v144")
for i in range(8): E(f"ds_read_b128 v[{192+4*i}:{195+4*i}], v144 offset:{1024 + 64*i}")
for k in range(32): E(f"v_mov_b32 v{224+k}, 0")
for h in range(4): E(f"v_mov_b32 v{184+h}, 0")
E("s_waitcnt lgkmcnt(0)")
for i in range(8):
    unpack8(160, 56+4*i)
    for h in range(4): E(f"v_fma_f32 v{188+h}, v{192+4*i+h}, s77, -v{180+h}")
    for h in range(4): E(f"v_exp_f32 v{188+h}, v{188+h}")
    E("s_nop 0")
    for h in range(4):
        E(f"v_add_f32 v{184+h}, v{184+h}, v{188+h}")
        for j in range(8): E(f"v_fmac_f32 v{224+8*h+j}, v{188+h}, v{160+j}")
R0 = SC; LR = SC + 32768
E("v_lshl_add_u32 v145, v4, 2, v3"); E("v_lshlrev_b32 v144, 11, v145"); E("v_lshl_add_u32 v144, v2, 5, v144")
for h in range(4):
    E(f"ds_write_b128 v144, v[{224+8*h}:{227+8*h}] offset:{R0 + 512*h}")
    E(f"ds_write_b128 v144, v[{228+8*h}:{231+8*h}] offset:{R0 + 512*h + 16}")
E("v_lshlrev_b32 v144, 4, v145"); E(f"ds_write_b128 v144, v[184:187] offset:{LR}")
E("v_mov_b32 v144, 0"); E(f"ds_write_b128 v144, v[176:179] offset:{LR+256}")
bar()
E("v_lshlrev_b32 v144, 3, v0")
for r in range(16): E(f"ds_read_b64 v[{192+2*r}:{193+2*r}], v144 offset:{R0 + 2048*r}")
E("v_and_b32 v145, 3, v0"); E("v_lshlrev_b32 v145, 2, v145")
for r in range(16): E(f"ds_read_b32 v{224+r}, v145 offset:{LR+16*r}")
E(f"ds_read_b32 v240, v145 offset:{LR+256}")
E("s_waitcnt lgkmcnt(0)")
for r in range(1, 16):
    E(f"v_add_f32 v192, v192, v{192+2*r}"); E(f"v_add_f32 v193, v193, v{193+2*r}"); E(f"v_add_f32 v224, v224, v{224+r}")
E("v_mov_b32 v242, v224"); E("v_mov_b32 v241, s97"); E("v_mov_b32 v243, s97")
E("v_mov_b32 v194, v193"); E("v_mov_b32 v193, s97"); E("v_mov_b32 v195, s97")
E("v_lshlrev_b32 v144, 15, v4"); E("v_lshl_add_u32 v144, v1, 4, v144")
E("s_lshl_b32 s68, s61, 17"); E("s_lshl_b32 s69, s62, 10"); E("s_add_u32 s68, s68, s69"); E(f"s_add_u32 s68, s68, {APO}")
E("buffer_store_dwordx4 v[192:195], v144, s[40:43], s68 offen sc1")
E("v_lshlrev_b32 v144, 7, v145")
E("s_lshl_b32 s68, s61, 11"); E("s_lshl_b32 s69, s62, 4"); E("s_add_u32 s68, s68, s69"); E(f"s_add_u32 s68, s68, {APM}")
E("buffer_store_dwordx4 v[240:243], v144, s[40:43], s68 offen sc1")
stamp()
E("s_lshr_b32 s68, s2, 3")
E("v_and_b32 v144, 31, v1"); E("v_lshlrev_b32 v149, 4, v144"); E("v_lshlrev_b32 v144, 3, v144")
E("s_lshl_b32 s69, s68, 9"); E(f"s_add_u32 s69, s69, {APM}")
E("v_lshrrev_b32 v145, 7, v0"); E("v_and_b32 v146, 127, v0")
E("v_lshlrev_b32 v147, 14, v145"); E("v_lshl_add_u32 v147, v146, 3, v147")
for q in range(1, 4): E(f"v_add_u32 v{151+q}, {4096*q}, v147")
E("v_mov_b32 v151, v147")
E("s_lshl_b32 s70, s68, 15"); E(f"s_add_u32 s70, s70, {APO}")
lds_ = ["buffer_load_dwordx4 v[156:159], v149, s[40:43], s69 offen sc1"]
for s_ in range(16): lds_.append(f"buffer_load_dwordx2 v[{192+2*s_}:{193+2*s_}], v{151 + s_//4}, s[40:43], s70 offen offset:{1024*(s_%4)} sc1")
gather(lds_, [157, 159] + [193+2*s_ for s_ in range(16)])
E("v_mov_b32 v160, v156"); E("v_mov_b32 v161, v158")
E("v_mov_b32 v162, v160"); wave_reduce("v_max_f32", 162)
E("v_sub_f32 v163, v160, v162"); E("v_mul_f32 v163, s77, v163"); E("v_exp_f32 v163, v163"); E("s_nop 0")
E("v_mul_f32 v162, v163, v161"); wave_reduce("v_add_f32", 162)
E("v_mul_f32 v162, 0.5, v162"); E("v_rcp_f32 v164, v162"); E("s_nop 0")
fdiv(165, 163, 162, 164, 166)
E("v_lshrrev_b32 v144, 1, v144"); E("ds_write_b32 v144, v165 offset:1024"); E("s_waitcnt lgkmcnt(0)")
E("v_lshlrev_b32 v144, 6, v145")
for q in range(4): E(f"ds_read_b128 v[{228+4*q}:{231+4*q}], v144 offset:{1024+16*q}")
E("s_waitcnt vmcnt(0) lgkmcnt(0)")
E("v_mul_f32 v168, v192, v228")
for s in range(1, 16): E(f"v_fmac_f32 v168, v{192+2*s}, v{228+s}")
E("v_lshlrev_b32 v144, 2, v0"); E("ds_write_b32 v144, v168")
bar()
E("v_lshrrev_b32 v5, 3, v0"); E("v_and_b32 v6, 7, v0")
E("v_lshlrev_b32 v144, 2, v5")
for j in range(4):
    E(f"ds_read_b32 v{176+j}, v144 offset:{128*j}"); E(f"ds_read_b32 v{180+j}, v144 offset:{512+128*j}")
for k in range(8): E(f"v_mov_b32 v{160+k}, 0")
E("s_waitcnt lgkmcnt(0)")
for j in range(4):
    E(f"v_add_f32 v{176+j}, v{176+j}, v{180+j}"); rbf(176+j)
for j in range(4):
    unpack8(168, 88+4*j)
    for k in range(8): E(f"v_fmac_f32 v{160+k}, v{176+j}, v{168+k}")
E("v_lshlrev_b32 v144, 8, v5"); E("v_lshl_add_u32 v144, v6, 5, v144")
E(f"ds_write_b128 v144, v[160:163] offset:{SC}"); E(f"ds_write_b128 v144, v[164:167] offset:{SC+16}")
bar()
E("v_lshlrev_b32 v144, 11, v4"); E("v_lshl_add_u32 v144, v1, 2, v144")
for r in range(8): E(f"ds_read_b32 v{168+r}, v144 offset:{SC+256*r}")
E("s_waitcnt lgkmcnt(0)")
for r in range(1, 8): E(f"v_add_f32 v168, v168, v{168+r}")
E("v_lshlrev_b32 v144, 2, v0"); E(f"ds_write_b32 v144, v168 offset:{SC+8192}")
bar()
E("s_cmp_lg_u32 s60, 0"); E("s_cbranch_scc1 P3D")
for r in range(4): E(f"ds_read_b32 v{176+r}, v144 offset:{SC+8192+256*r}")
E("s_waitcnt lgkmcnt(0)")
for r in range(1, 4): E(f"v_add_f32 v176, v176, v{176+r}")
E("s_lshl_b32 s69, s2, 9"); E(f"s_add_u32 s69, s69, {OP}"); E("v_lshlrev_b32 v144, 1, v144"); E("v_mov_b32 v177, s97")
E("buffer_store_dwordx2 v[176:177], v144, s[40:43], s69 offen sc1")
stamp()
L("P3D")
E("s_cmp_ge_u32 s2, 224"); E("s_cbranch_scc1 END")
E("v_lshlrev_b32 v145, 4, v0")
E("v_mov_b32 v146, 0"); E("v_mov_b32 v147, 0")
regs_ = [8+4*i for i in range(20)] + [192+4*i for i in range(12)]
lds_ = []
for r in range(32):
    lds_.append(f"s_mov_b32 s69, {OP + r*4096}")
    lds_.append(f"buffer_load_dwordx4 v[{regs_[r]}:{regs_[r]+3}], v145, s[40:43], s69 offen sc1")
gather(lds_, [x+1 for x in regs_] + [x+3 for x in regs_])
for r in range(32):
    E(f"v_add_f32 v146, v146, v{regs_[r]}"); E(f"v_add_f32 v147, v147, v{regs_[r]+2}")
E("v_mov_b32 v192, v146"); E("v_mov_b32 v193, v147")
E("v_lshlrev_b32 v144, 3, v0")
rbf(192); rbf(193)
E("v_lshlrev_b32 v146, 16, v142"); E("v_and_b32 v147, 0xffff0000, v142")
E("v_add_f32 v192, v192, v146"); E("v_add_f32 v193, v193, v147"); rbf(192); rbf(193)
E("s_cmp_lg_u32 s2, 0"); E("s_cbranch_scc1 NOH")
E(f"s_mov_b32 s69, {HH}"); E("v_mov_b32 v196, v192"); E("v_mov_b32 v197, s97"); E("v_mov_b32 v198, v193"); E("v_mov_b32 v199, s97")
E("buffer_store_dwordx4 v[196:199], v145, s[40:43], s69 offen sc1"); E("s_nop 1")
L("NOH")
def block_sum(v, off):
    wave_reduce("v_add_f32", v)
    E("v_lshlrev_b32 v146, 2, v4"); E(f"ds_write_b32 v146, v{v} offset:{off}")
    bar()
    E("v_mov_b32 v146, 0"); E(f"ds_read_b128 v[148:151], v146 offset:{off}"); E("s_waitcnt lgkmcnt(0)")
    E(f"v_add_f32 v{v}, v148, v149"); E(f"v_add_f32 v{v}, v{v}, v150"); E(f"v_add_f32 v{v}, v{v}, v151")
E("v_add_f32 v194, v192, v193"); block_sum(194, SC)
E(f"v_mul_f32 v194, {INV512}, v194")
E("v_sub_f32 v196, v192, v194"); E("v_mul_f32 v195, v196, v196"); E("v_sub_f32 v196, v193, v194"); E("v_fmac_f32 v195, v196, v196")
block_sum(195, SC+16)
E(f"v_mul_f32 v195, {INV512}, v195"); rbf(194); rbf(195)
E(f"v_add_f32 v195, {EPS}, v195"); rbf(195); E("v_sqrt_f32 v195, v195"); E("s_nop 0"); rbf(195)
E("v_rcp_f32 v196, v195"); E("s_nop 0")
for i in range(2):
    E(f"v_sub_f32 v197, v{192+i}, v194"); rbf(197); fdiv(192+i, 197, 195, 196, 198); rbf(192+i)
E("ds_write_b64 v144, v[192:193]")
bar()
E("s_and_b32 s69, s2, 7"); E("s_lshl_b32 s69, s69, 6"); E("v_add_u32 v144, s69, v5"); E("v_lshlrev_b32 v144, 2, v144")
E("ds_read_b32 v176, v144"); E("ds_read_b32 v177, v144 offset:128")
for k in range(8): E(f"v_mov_b32 v{160+k}, 0")
E("s_waitcnt lgkmcnt(0)")
for j in range(2):
    unpack8(168, 104+4*j)
    for k in range(8): E(f"v_fmac_f32 v{160+k}, v{176+j}, v{168+k}")
reduce64()
E("s_cmp_lg_u32 s60, 0"); E("s_cbranch_scc1 P4D")
E("s_and_b32 s69, s2, 7"); E("s_mul_i32 s69, s69, 1792*8"); E("s_lshr_b32 s74, s2, 3"); E("s_lshl_b32 s74, s74, 9"); E("s_add_u32 s69, s69, s74"); E(f"s_add_u32 s69, s69, {H1}")
E("v_mov_b32 v177, s97"); E("v_lshlrev_b32 v144, 1, v144")
E("buffer_store_dwordx2 v[176:177], v144, s[40:43], s69 offen sc1")
stamp()
L("P4D")
E("v_lshlrev_b32 v144, 3, v1"); E("s_lshr_b32 s70, s2, 3"); E("s_lshl_b32 s70, s70, 9"); E(f"s_add_u32 s70, s70, {H1}")
lds_ = []
for p in range(8):
    lds_.append(f"s_add_u32 s69, s70, {p*1792*8}")
    lds_.append(f"buffer_load_dwordx2 v[{192+2*p}:{193+2*p}], v144, s[40:43], s69 offen sc1")
gather(lds_, [193+2*p for p in range(8)])
for p in range(1, 8): E(f"v_add_f32 v192, v192, v{192+2*p}")
E("v_mov_b32 v176, v192")
rbf(176); E("v_lshlrev_b32 v140, 16, v140"); E("v_add_f32 v176, v176, v140"); rbf(176)
E("v_mul_f32 v177, v176, v176"); E("v_mul_f32 v177, v177, v176"); E("s_mov_b32 s69, 0x3d372713"); E("v_fma_f32 v177, v177, s69, v176")
E("v_mul_f32 v177, 0x40135761, v177"); E("v_exp_f32 v177, v177"); E("s_nop 0"); E("v_add_f32 v177, 1.0, v177")
E("v_rcp_f32 v177, v177"); E("s_nop 0"); E("v_fma_f32 v177, v177, -2.0, 1.0"); E("v_add_f32 v177, 1.0, v177")
E("v_mul_f32 v177, v177, v176"); E("v_mul_f32 v177, 0.5, v177"); rbf(177)
E("v_lshlrev_b32 v144, 2, v1"); E("ds_write_b32 v144, v177 offset:4096"); E("s_waitcnt lgkmcnt(0)")
E("v_lshlrev_b32 v144, 2, v5")
E("ds_read_b32 v176, v144 offset:4096"); E("ds_read_b32 v177, v144 offset:4224")
for k in range(8): E(f"v_mov_b32 v{160+k}, 0")
E("s_waitcnt lgkmcnt(0)")
for j in range(2):
    unpack8(168, 112+4*j)
    for k in range(8): E(f"v_fmac_f32 v{160+k}, v{176+j}, v{168+k}")
reduce64()
E("s_cmp_lg_u32 s60, 0"); E("s_cbranch_scc1 END")
E("s_lshl_b32 s69, s2, 9"); E(f"s_add_u32 s69, s69, {F2}")
E("v_mov_b32 v177, s97"); E("v_lshlrev_b32 v144, 1, v144")
E("buffer_store_dwordx2 v[176:177], v144, s[40:43], s69 offen sc1")
stamp()
E("s_cmp_ge_u32 s2, 8"); E("s_cbranch_scc1 END")
E("s_lshl_b32 s70, s2, 9")
lds_ = [f"s_add_u32 s69, s70, {HH}", "buffer_load_dwordx2 v[248:249], v144, s[40:43], s69 offen sc1"]
for k in range(28):
    lds_.append(f"s_add_u32 s69, s70, {F2 + 4096*k}")
    lds_.append(f"buffer_load_dwordx2 v[{192+2*k}:{193+2*k}], v144, s[40:43], s69 offen sc1")
gather(lds_, [249] + [193+2*k for k in range(28)])
for k in range(1, 28): E(f"v_add_f32 v192, v192, v{192+2*k}")
rbf(192); E("v_lshlrev_b32 v141, 16, v141"); E("v_add_f32 v192, v192, v141"); rbf(192)
E("v_add_f32 v192, v192, v248"); E("v_cvt_pk_bf16_f32 v192, v192, v192")
E("v_lshlrev_b32 v145, 1, v1"); E("s_lshl_b32 s69, s2, 7")
E("buffer_store_short v192, v145, s[56:59], s69 offen")
stamp()
L("END"); E("s_endpgm")

hdr = open(f"cdna_kernels/{NAME}.s.ref").read().split("; Override")[0]
res = [hdr.rstrip("\n"), f"; @launch grid=(256,1,1) block=(256,1,1) lds={SC+32768+512}",
       '.amdgcn_target "amdgcn-amd-amdhsa--gfx950"', ".text"] + out
res.append(f""".section .rodata,"a"
.p2align 6
.amdhsa_kernel {n}
  .amdhsa_next_free_vgpr 256
  .amdhsa_next_free_sgpr 102
  .amdhsa_accum_offset 256
  .amdhsa_group_segment_fixed_size 0
  .amdhsa_kernarg_size 104
  .amdhsa_user_sgpr_count 2
  .amdhsa_user_sgpr_kernarg_segment_ptr 1
  .amdhsa_system_sgpr_workgroup_id_x 1
.end_amdhsa_kernel""")
path = sys.argv[1] if len(sys.argv) > 1 else f"cdna_kernels/{NAME}.s"
open(path, "w").write("\n".join(res) + "\n")
```

```python
import sys
NAME = "sequential_preLN__sliding_block_cached__dense_activation_gelu__decode"
out = []
def E(s): out.append("    " + s)
def L(s): out.append(s + ":")

Q   = 0
APO = 131072
APM = APO + 1048576
OP  = APM + 16384
HH  = OP + 131072
H1  = HH + 4096
F2  = H1 + 8*1792*8
WSN = 1 << 22
LOG2E = 0x3fb8aa3b; SCALE = 0x3db504f3; EPS = 0x3727c5ac; INV512 = 0x3b000000
SC = 8192

def srd(d, b, n):
    E(f"s_mov_b32 s{d}, s{b}"); E(f"s_and_b32 s{d+1}, s{b+1}, 0xffff")
    E(f"s_mov_b32 s{d+2}, {n}"); E(f"s_mov_b32 s{d+3}, 0x00020000")
def rbf(v):
    E(f"v_cvt_pk_bf16_f32 v{v}, v{v}, v{v}"); E(f"v_lshlrev_b32 v{v}, 16, v{v}")
def wave_reduce(op, v, st=90):
    for mode in ["quad_perm:[1,0,3,2]", "quad_perm:[2,3,0,1]", "row_half_mirror", "row_mirror"]:
        E("s_nop 1"); E(f"{op}_dpp v{v}, v{v}, v{v} {mode} row_mask:0xf bank_mask:0xf")
    E("s_nop 1")
    for i in range(4): E(f"v_readlane_b32 s{st+i}, v{v}, {16*i}")
    E("s_nop 1"); E(f"v_mov_b32 v{v}, s{st}")
    for i in range(1, 4): E(f"{op} v{v}, s{st+i}, v{v}")
def unpack8(dst, src):
    for i in range(4):
        E(f"v_lshlrev_b32 v{dst+2*i}, 16, v{src+i}"); E(f"v_and_b32 v{dst+2*i+1}, 0xffff0000, v{src+i}")
def fdiv(dst, num, den, rcp, t):
    E(f"v_mul_f32 v{dst}, v{num}, v{rcp}"); E(f"v_fma_f32 v{t}, -v{dst}, v{den}, v{num}"); E(f"v_fma_f32 v{dst}, v{t}, v{rcp}, v{dst}")
def bar():
    E("s_waitcnt lgkmcnt(0)"); E("s_barrier")

STAMP = len(sys.argv) > 2
stampn = [0]
def stamp():
    if not STAMP: return
    k = stampn[0]; stampn[0] += 1
    E("s_cmp_lg_u32 s60, 0"); E(f"s_cbranch_scc1 ST{k}")
    E("s_memrealtime s[94:95]"); E("s_waitcnt lgkmcnt(0)")
    E("v_mov_b32 v254, s94"); E("s_lshl_b32 s96, s2, 6"); E(f"s_add_u32 s96, s96, {3145728 + 4*k}")
    E("v_mov_b32 v255, 0")
    E("buffer_store_dword v254, v255, s[40:43], s96 offen")
    L(f"ST{k}")
pollcnt = [0]
def poll(base_sgpr_expr, count, val):
    pollcnt[0] += 1; n = pollcnt[0]
    E("s_cmp_lg_u32 s60, 0"); E(f"s_cbranch_scc1 PD{n}")
    E("s_mov_b32 s71, 0")
    if count <= 64:
        E(f"v_min_u32 v250, {count-1}, v1"); E("v_add_u32 v250, s70, v250")
        L(f"PL{n}")
        E("buffer_load_ubyte v251, v250, s[44:47], 0 offen sc1")
        E("s_waitcnt vmcnt(0)")
        E(f"v_cmp_le_u32 vcc, {val}, v251")
    else:
        nd = count // 4
        E(f"v_min_u32 v250, {nd-1}, v1"); E("v_lshlrev_b32 v250, 2, v250")
        L(f"PL{n}")
        E("buffer_load_dword v251, v250, s[44:47], 0 offen sc1")
        E("s_waitcnt vmcnt(0)")
        E("v_bfe_u32 v252, v251, 0, 8"); E("v_bfe_u32 v253, v251, 8, 8"); E("v_min_u32 v252, v252, v253")
        E("v_bfe_u32 v253, v251, 16, 8"); E("v_min_u32 v252, v252, v253")
        E("v_lshrrev_b32 v253, 24, v251"); E("v_min_u32 v252, v252, v253")
        E(f"v_cmp_le_u32 vcc, {val}, v252")
    E("s_nop 4")
    E("s_cmp_eq_u64 vcc, exec"); E(f"s_cbranch_scc1 PD{n}")
    E("s_add_u32 s71, s71, 1"); E("s_cmp_lt_u32 s71, 0x40000"); E(f"s_cbranch_scc1 PL{n}")
    L(f"PD{n}")
    E("s_barrier")
    stamp()
def publish(val, all_waves=True):
    pollcnt[0] += 1; n = pollcnt[0]
    E("s_waitcnt vmcnt(0)")
    if all_waves: E("s_barrier")
    E("s_cmp_lg_u32 s60, 0"); E(f"s_cbranch_scc1 PB{n}")
    E(f"v_mov_b32 v250, s2"); E(f"v_mov_b32 v251, {val}")
    E("v_cmp_eq_u32 vcc, 0, v1"); E("s_and_saveexec_b64 s[72:73], vcc")
    E("buffer_store_byte v251, v250, s[44:47], 0 offen sc1")
    E("s_mov_b64 exec, s[72:73]")
    L(f"PB{n}")
    stamp()

def get_nonce():
    pollcnt[0] += 1; n = pollcnt[0]
    E("s_mov_b32 s71, 0"); E("v_mov_b32 v250, 0")
    L(f"NL{n}")
    E("buffer_load_dword v251, v250, s[44:47], 0 offen sc1"); E("s_waitcnt vmcnt(0)")
    E("v_readfirstlane_b32 s97, v251"); E("s_nop 3")
    E("s_cmp_lg_u32 s97, 0"); E(f"s_cbranch_scc1 ND{n}")
    E("s_add_u32 s71, s71, 1"); E("s_cmp_lt_u32 s71, 0x40000"); E(f"s_cbranch_scc1 NL{n}")
    L(f"ND{n}")
def gather(loads, tags):
    pollcnt[0] += 1; n = pollcnt[0]
    E("s_mov_b32 s71, 0")
    L(f"GL{n}")
    for l in loads: E(l)
    E("s_waitcnt vmcnt(0)")
    E(f"v_xor_b32 v250, s97, v{tags[0]}")
    for t_ in tags[1:]:
        E(f"v_xor_b32 v251, s97, v{t_}"); E("v_or_b32 v250, v250, v251")
    E("v_cmp_eq_u32 vcc, 0, v250"); E("s_nop 4")
    E("s_cmp_eq_u64 vcc, exec"); E(f"s_cbranch_scc1 GD{n}")
    E("s_add_u32 s71, s71, 1"); E("s_cmp_lt_u32 s71, 0x20000"); E(f"s_cbranch_scc1 GL{n}")
    L(f"GD{n}")
    stamp()
def prefetch():
    E("v_lshlrev_b32 v144, 5, v4"); E("v_add_u32 v144, v144, v2"); E("v_lshlrev_b32 v144, 8, v144")
    E("v_lshl_add_u32 v144, v3, 4, v144"); E("v_add_u32 v145, 4096, v144")
    for t in range(2):
        for b in range(4):
            r = 24 + 16*t + 4*b
            E(f"buffer_load_dwordx4 v[{r}:{r+3}], v{144+t}, s[16:19], s64 offen offset:{64*b}")
    E("v_lshlrev_b32 v146, 5, v4"); E("v_add_u32 v146, v146, v3"); E("v_lshlrev_b32 v146, 8, v146")
    E("v_lshl_add_u32 v146, v2, 4, v146"); E("v_add_u32 v147, 4096, v146")
    for i in range(8):
        r = 56 + 4*i
        E(f"buffer_load_dwordx4 v[{r}:{r+3}], v{146 + i//4}, s[20:23], s64 offen offset:{1024*(i%4)}")
def prefetch2():
    E("s_lshr_b32 s65, s2, 3"); E("s_lshl_b32 s65, s65, 17"); E("s_and_b32 s66, s2, 7"); E("s_lshl_b32 s66, s66, 7"); E("s_add_u32 s65, s65, s66")
    for j in range(1, 4): E(f"s_add_u32 s{65+j}, s65, {j*32768}")
    E("v_lshrrev_b32 v148, 3, v0"); E("v_and_b32 v149, 7, v0")
    E("v_lshlrev_b32 v148, 10, v148"); E("v_lshl_add_u32 v148, v149, 4, v148")
    for j in range(4):
        E(f"buffer_load_dwordx4 v[{88+4*j}:{91+4*j}], v148, s[28:31], s{65+j} offen")
    E("v_lshrrev_b32 v148, 3, v0"); E("v_and_b32 v149, 7, v0")
    E("s_movk_i32 s69, 3584"); E("v_mul_lo_u32 v150, v148, s69"); E("v_lshl_add_u32 v150, v149, 4, v150")
    E("s_and_b32 s69, s2, 7"); E("s_mul_i32 s69, s69, 64*3584"); E("s_lshr_b32 s74, s2, 3"); E("s_lshl_b32 s74, s74, 7"); E("s_add_u32 s69, s69, s74")
    E("s_add_u32 s74, s69, 32*3584")
    E("buffer_load_dwordx4 v[104:107], v150, s[32:35], s69 offen")
    E("buffer_load_dwordx4 v[108:111], v150, s[32:35], s74 offen")
    E("v_lshlrev_b32 v150, 10, v148"); E("v_lshl_add_u32 v150, v149, 4, v150")
    E("s_lshr_b32 s69, s2, 3"); E("s_lshl_b32 s69, s69, 16"); E("s_and_b32 s74, s2, 7"); E("s_lshl_b32 s74, s74, 7"); E("s_add_u32 s69, s69, s74")
    E("s_add_u32 s74, s69, 32768")
    E("buffer_load_dwordx4 v[112:115], v150, s[36:39], s69 offen")
    E("buffer_load_dwordx4 v[116:119], v150, s[36:39], s74 offen")
    E("v_lshlrev_b32 v148, 1, v1")
    E("s_lshr_b32 s69, s2, 3"); E("s_lshl_b32 s69, s69, 7")
    E("buffer_load_ushort v140, v148, s[48:51], s69 offen")
    E("s_lshl_b32 s69, s2, 7")
    E("buffer_load_ushort v141, v148, s[52:55], s69 offen")
    E("v_lshlrev_b32 v148, 2, v0")
    E("buffer_load_dword v142, v148, s[12:15], 0 offen")

def reduce64():
    E("v_lshlrev_b32 v144, 8, v5"); E("v_lshl_add_u32 v144, v6, 5, v144")
    E(f"ds_write_b128 v144, v[160:163] offset:{SC}"); E(f"ds_write_b128 v144, v[164:167] offset:{SC+16}")
    bar()
    E("v_lshlrev_b32 v144, 11, v4"); E("v_lshl_add_u32 v144, v1, 2, v144")
    for r in range(8): E(f"ds_read_b32 v{168+r}, v144 offset:{SC+256*r}")
    E("s_waitcnt lgkmcnt(0)")
    for r in range(1, 8): E(f"v_add_f32 v168, v168, v{168+r}")
    E("v_lshlrev_b32 v144, 2, v0"); E(f"ds_write_b32 v144, v168 offset:{SC+8192}")
    bar()
    E("v_lshlrev_b32 v144, 2, v1")
    for r in range(4): E(f"ds_read_b32 v{176+r}, v144 offset:{SC+8192+256*r}")
    E("s_waitcnt lgkmcnt(0)")
    for r in range(1, 4): E(f"v_add_f32 v176, v176, v{176+r}")

def reduce8(final):
    E("v_lshlrev_b32 v150, 5, v0")
    E(f"ds_write_b128 v150, v[160:163] offset:{SC}"); E(f"ds_write_b128 v150, v[164:167] offset:{SC+16}")
    bar()
    E("v_and_b32 v150, 7, v0"); E("v_lshrrev_b32 v151, 3, v0")
    E("v_lshlrev_b32 v152, 8, v151"); E("v_lshl_add_u32 v152, v150, 2, v152")
    for r in range(8): E(f"ds_read_b32 v{168+r}, v152 offset:{SC+32*r}")
    E("s_waitcnt lgkmcnt(0)")
    for r in range(1, 8): E(f"v_add_f32 v168, v168, v{168+r}")
    E("v_lshlrev_b32 v152, 2, v0")
    E(f"ds_write_b32 v152, v168 offset:{SC+8192}")
    bar()
    E("v_lshlrev_b32 v152, 2, v150")
    for r in range(32): E(f"ds_read_b32 v{176+r}, v152 offset:{SC+8192+32*r}")
    E("s_waitcnt lgkmcnt(0)")
    for r in range(1, 32): E(f"v_add_f32 v176, v176, v{176+r}")

n = NAME + "_kernel"
out.append(f".globl {n}"); out.append(".p2align 8"); out.append(f".type {n},@function"); L(n)
E("s_cmp_ge_u32 s2, 256"); E("s_cbranch_scc1 END")
E("s_load_dwordx16 s[64:79], s[0:1], 0")
E("s_load_dwordx8 s[80:87], s[0:1], 64")
E("s_load_dwordx2 s[88:89], s[0:1], 96")
E("s_waitcnt lgkmcnt(0)")
srd(12, 64, 1024); srd(16, 66, 0x8000000); srd(20, 68, 0x8000000); srd(24, 70, 512*4096*2); srd(28, 72, 4096*512*2)
srd(32, 76, 512*1792*2); srd(36, 80, 1792*512*2); srd(40, 88, WSN); srd(44, 86, 256); srd(48, 78, 3584); srd(52, 82, 1024); srd(56, 84, 1024)
E("v_and_b32 v1, 63, v0"); E("v_and_b32 v2, 15, v1"); E("v_lshrrev_b32 v3, 4, v1"); E("v_lshrrev_b32 v4, 6, v0")
E("s_nop 0"); E("v_readfirstlane_b32 s60, v4")
E("s_lshr_b32 s61, s2, 5"); E("s_and_b32 s62, s2, 31")
E("s_or_b32 s63, s2, s60"); E("s_cmp_lg_u32 s63, 0"); E("s_cbranch_scc1 NON")
E("s_memrealtime s[94:95]"); E("s_waitcnt lgkmcnt(0)"); E("s_or_b32 s94, s94, 1")
E("v_mov_b32 v250, 0"); E("v_mov_b32 v251, s94"); E("buffer_store_dword v251, v250, s[44:47], 0 offen sc1")
L("NON")
stamp()
E("v_lshlrev_b32 v144, 4, v1")
E("buffer_load_dwordx4 v[156:159], v144, s[12:15], 0 offen")
E("v_lshrrev_b32 v5, 3, v0"); E("v_and_b32 v6, 7, v0")
E("v_lshlrev_b32 v145, 13, v5"); E("v_lshl_add_u32 v145, v6, 4, v145")
E("s_and_b32 s63, s2, 3"); E("s_lshl_b32 s63, s63, 20"); E("s_lshr_b32 s64, s2, 2"); E("s_lshl_b32 s64, s64, 7"); E("s_add_u32 s63, s63, s64")
for j in range(4):
    E(f"s_add_u32 s64, s63, {j*32*8192}")
    E(f"buffer_load_dwordx4 v[{8+4*j}:{11+4*j}], v145, s[24:27], s64 offen")
E("s_lshl_b32 s64, s61, 24"); E("s_lshl_b32 s65, s62, 15"); E("s_add_u32 s64, s64, s65"); E(f"s_add_u32 s64, s64, {61440*256}")
E("s_lshr_b32 s65, s2, 3"); E("s_lshl_b32 s65, s65, 17"); E("s_and_b32 s66, s2, 7"); E("s_lshl_b32 s66, s66, 7"); E("s_add_u32 s65, s65, s66")
for j in range(1, 4): E(f"s_add_u32 s{65+j}, s65, {j*32768}")
E("s_cmp_eq_u32 s60, 0"); E("s_cbranch_scc1 NOPF")
prefetch()
prefetch2()
E("s_waitcnt vmcnt(31)"); E("s_branch NOPF2")
L("NOPF")
E("s_waitcnt vmcnt(4)")
L("NOPF2")
E("s_waitcnt vmcnt(0)" ) if False else None
stamp()
unpack8(160, 156)
t = 170
E(f"v_add_f32 v{t}, v160, v161")
for i in range(2, 8): E(f"v_add_f32 v{t}, v{t}, v{160+i}")
wave_reduce("v_add_f32", t)
E(f"v_mul_f32 v{t}, {INV512}, v{t}"); E(f"v_mov_b32 v{t+1}, 0")
for i in range(8):
    E(f"v_sub_f32 v{t+2}, v{160+i}, v{t}"); E(f"v_fmac_f32 v{t+1}, v{t+2}, v{t+2}")
wave_reduce("v_add_f32", t+1)
E(f"v_mul_f32 v{t+1}, {INV512}, v{t+1}")
rbf(t); rbf(t+1); E(f"v_add_f32 v{t+1}, {EPS}, v{t+1}"); rbf(t+1)
E(f"v_sqrt_f32 v{t+1}, v{t+1}"); E("s_nop 0"); rbf(t+1); E(f"v_rcp_f32 v{t+2}, v{t+1}"); E("s_nop 0")
for i in range(8):
    E(f"v_sub_f32 v{t+3}, v{160+i}, v{t}"); rbf(t+3); fdiv(160+i, t+3, t+1, t+2, t+4); rbf(160+i)
E("v_lshlrev_b32 v144, 5, v1")
E("ds_write_b128 v144, v[160:163]"); E("ds_write_b128 v144, v[164:167] offset:16")
E("s_waitcnt lgkmcnt(0)")
E("s_and_b32 s69, s2, 3"); E("s_lshl_b32 s69, s69, 7"); E("v_add_u32 v144, s69, v5"); E("v_lshlrev_b32 v144, 2, v144")
for j in range(4): E(f"ds_read_b32 v{176+j}, v144 offset:{128*j}")
for k in range(8): E(f"v_mov_b32 v{160+k}, 0")
E("s_cmp_eq_u32 s60, 0"); E("s_cbranch_scc1 W0Y")
E("s_waitcnt vmcnt(27) lgkmcnt(0)"); E("s_branch W1Y")
L("W0Y")
get_nonce()
E("s_waitcnt vmcnt(0) lgkmcnt(0)")
L("W1Y")
stamp()


for j in range(4):
    unpack8(168, 8+4*j)
    for k in range(8): E(f"v_fmac_f32 v{160+k}, v{176+j}, v{168+k}")
reduce64()
E("s_cmp_lg_u32 s60, 0"); E("s_cbranch_scc1 P1D")
E("s_and_b32 s69, s2, 3"); E("s_lshl_b32 s69, s69, 15"); E("s_lshr_b32 s74, s2, 2"); E("s_lshl_b32 s74, s74, 9"); E("s_add_u32 s69, s69, s74")
E("v_lshlrev_b32 v144, 1, v144"); E("v_mov_b32 v177, s97")
E("buffer_store_dwordx2 v[176:177], v144, s[40:43], s69 offen sc1")
stamp()
prefetch()
prefetch2()
L("P1D")
E("s_cmp_eq_u32 s60, 0"); E("s_cbranch_scc1 HASN")
get_nonce()
L("HASN")
E("v_lshlrev_b32 v144, 4, v0"); E("s_lshl_b32 s69, s61, 12")
lds_ = []
for p in range(4):
    lds_.append(f"s_add_u32 s70, s69, {p*32768}")
    lds_.append(f"buffer_load_dwordx4 v[{160+4*p}:{163+4*p}], v144, s[40:43], s70 offen sc1")
gather(lds_, [161+2*i for i in range(8)])
for p in range(1, 4):
    E(f"v_add_f32 v160, v160, v{160+4*p}"); E(f"v_add_f32 v162, v162, v{162+4*p}")
E("v_cvt_pk_bf16_f32 v160, v160, v162"); E("v_lshlrev_b32 v144, 2, v0"); E("ds_write_b32 v144, v160")
bar()
E("v_and_b32 v7, 3, v1"); E("v_lshlrev_b32 v144, 8, v7"); E("v_lshl_add_u32 v144, v3, 4, v144")
for b in range(4): E(f"ds_read_b128 v[{160+4*b}:{163+4*b}], v144 offset:{64*b}")
for k in range(8): E(f"v_mov_b32 v{176+k}, 0")
E("s_waitcnt lgkmcnt(0)")
for tt in range(2):
    for b in range(4):
        r = 24 + 16*tt + 4*b
        E(f"v_mfma_f32_16x16x32_bf16 v[{176+4*tt}:{179+4*tt}], v[{r}:{r+3}], v[{160+4*b}:{163+4*b}], v[{176+4*tt}:{179+4*tt}]")
E("s_nop 7"); E("s_nop 1")
E(f"s_mov_b32 s76, {SCALE}"); E(f"s_mov_b32 s77, {LOG2E}")
for k in range(8):
    rbf(176+k); E(f"v_mul_f32 v{176+k}, s76, v{176+k}"); rbf(176+k)
E("v_lshlrev_b32 v144, 5, v4"); E("v_lshl_add_u32 v144, v3, 2, v144"); E("v_lshlrev_b32 v144, 4, v144"); E("v_lshl_add_u32 v144, v7, 2, v144")
for tt in range(2):
    for i in range(4): E(f"ds_write_b32 v144, v{176+4*tt+i} offset:{1024 + tt*256 + i*16}")
bar()
E("v_lshlrev_b32 v144, 4, v1")
E("ds_read_b128 v[176:179], v144 offset:1024"); E("ds_read_b128 v[180:183], v144 offset:2048")
E("s_waitcnt lgkmcnt(0)")
for h in range(4): E(f"v_max_f32 v{176+h}, v{176+h}, v{180+h}")
for h in range(4): wave_reduce("v_max_f32", 176+h)
for h in range(4): E(f"v_mul_f32 v{180+h}, s77, v{176+h}")
E("v_lshlrev_b32 v144, 5, v4"); E("v_add_u32 v144, v144, v3"); E("v_lshlrev_b32 v144, 4, v144")
for i in range(8): E(f"ds_read_b128 v[{192+4*i}:{195+4*i}], v144 offset:{1024 + 64*i}")
for k in range(32): E(f"v_mov_b32 v{224+k}, 0")
for h in range(4): E(f"v_mov_b32 v{184+h}, 0")
E("s_waitcnt lgkmcnt(0)")
for i in range(8):
    unpack8(160, 56+4*i)
    for h in range(4): E(f"v_fma_f32 v{188+h}, v{192+4*i+h}, s77, -v{180+h}")
    for h in range(4): E(f"v_exp_f32 v{188+h}, v{188+h}")
    E("s_nop 0")
    for h in range(4):
        E(f"v_add_f32 v{184+h}, v{184+h}, v{188+h}")
        for j in range(8): E(f"v_fmac_f32 v{224+8*h+j}, v{188+h}, v{160+j}")
R0 = SC; LR = SC + 32768
E("v_lshl_add_u32 v145, v4, 2, v3"); E("v_lshlrev_b32 v144, 11, v145"); E("v_lshl_add_u32 v144, v2, 5, v144")
for h in range(4):
    E(f"ds_write_b128 v144, v[{224+8*h}:{227+8*h}] offset:{R0 + 512*h}")
    E(f"ds_write_b128 v144, v[{228+8*h}:{231+8*h}] offset:{R0 + 512*h + 16}")
E("v_lshlrev_b32 v144, 4, v145"); E(f"ds_write_b128 v144, v[184:187] offset:{LR}")
E("v_mov_b32 v144, 0"); E(f"ds_write_b128 v144, v[176:179] offset:{LR+256}")
bar()
E("v_lshlrev_b32 v144, 3, v0")
for r in range(16): E(f"ds_read_b64 v[{192+2*r}:{193+2*r}], v144 offset:{R0 + 2048*r}")
E("v_and_b32 v145, 3, v0"); E("v_lshlrev_b32 v145, 2, v145")
for r in range(16): E(f"ds_read_b32 v{224+r}, v145 offset:{LR+16*r}")
E(f"ds_read_b32 v240, v145 offset:{LR+256}")
E("s_waitcnt lgkmcnt(0)")
for r in range(1, 16):
    E(f"v_add_f32 v192, v192, v{192+2*r}"); E(f"v_add_f32 v193, v193, v{193+2*r}"); E(f"v_add_f32 v224, v224, v{224+r}")
E("v_mov_b32 v242, v224"); E("v_mov_b32 v241, s97"); E("v_mov_b32 v243, s97")
E("v_mov_b32 v194, v193"); E("v_mov_b32 v193, s97"); E("v_mov_b32 v195, s97")
E("v_lshlrev_b32 v144, 15, v4"); E("v_lshl_add_u32 v144, v1, 4, v144")
E("s_lshl_b32 s68, s61, 17"); E("s_lshl_b32 s69, s62, 10"); E("s_add_u32 s68, s68, s69"); E(f"s_add_u32 s68, s68, {APO}")
E("buffer_store_dwordx4 v[192:195], v144, s[40:43], s68 offen sc1")
E("v_lshlrev_b32 v144, 7, v145")
E("s_lshl_b32 s68, s61, 11"); E("s_lshl_b32 s69, s62, 4"); E("s_add_u32 s68, s68, s69"); E(f"s_add_u32 s68, s68, {APM}")
E("buffer_store_dwordx4 v[240:243], v144, s[40:43], s68 offen sc1")
stamp()
E("s_lshr_b32 s68, s2, 3")
E("v_and_b32 v144, 31, v1"); E("v_lshlrev_b32 v149, 4, v144"); E("v_lshlrev_b32 v144, 3, v144")
E("s_lshl_b32 s69, s68, 9"); E(f"s_add_u32 s69, s69, {APM}")
E("v_lshrrev_b32 v145, 7, v0"); E("v_and_b32 v146, 127, v0")
E("v_lshlrev_b32 v147, 14, v145"); E("v_lshl_add_u32 v147, v146, 3, v147")
for q in range(1, 4): E(f"v_add_u32 v{151+q}, {4096*q}, v147")
E("v_mov_b32 v151, v147")
E("s_lshl_b32 s70, s68, 15"); E(f"s_add_u32 s70, s70, {APO}")
lds_ = ["buffer_load_dwordx4 v[156:159], v149, s[40:43], s69 offen sc1"]
for s_ in range(16): lds_.append(f"buffer_load_dwordx2 v[{192+2*s_}:{193+2*s_}], v{151 + s_//4}, s[40:43], s70 offen offset:{1024*(s_%4)} sc1")
gather(lds_, [157, 159] + [193+2*s_ for s_ in range(16)])
E("v_mov_b32 v160, v156"); E("v_mov_b32 v161, v158")
E("v_mov_b32 v162, v160"); wave_reduce("v_max_f32", 162)
E("v_sub_f32 v163, v160, v162"); E("v_mul_f32 v163, s77, v163"); E("v_exp_f32 v163, v163"); E("s_nop 0")
E("v_mul_f32 v162, v163, v161"); wave_reduce("v_add_f32", 162)
E("v_mul_f32 v162, 0.5, v162"); E("v_rcp_f32 v164, v162"); E("s_nop 0")
fdiv(165, 163, 162, 164, 166)
E("v_lshrrev_b32 v144, 1, v144"); E("ds_write_b32 v144, v165 offset:1024"); E("s_waitcnt lgkmcnt(0)")
E("v_lshlrev_b32 v144, 6, v145")
for q in range(4): E(f"ds_read_b128 v[{228+4*q}:{231+4*q}], v144 offset:{1024+16*q}")
E("s_waitcnt vmcnt(0) lgkmcnt(0)")
E("v_mul_f32 v168, v192, v228")
for s in range(1, 16): E(f"v_fmac_f32 v168, v{192+2*s}, v{228+s}")
E("v_lshlrev_b32 v144, 2, v0"); E("ds_write_b32 v144, v168")
bar()
E("v_lshrrev_b32 v5, 3, v0"); E("v_and_b32 v6, 7, v0")
E("v_lshlrev_b32 v144, 2, v5")
for j in range(4):
    E(f"ds_read_b32 v{176+j}, v144 offset:{128*j}"); E(f"ds_read_b32 v{180+j}, v144 offset:{512+128*j}")
for k in range(8): E(f"v_mov_b32 v{160+k}, 0")
E("s_waitcnt lgkmcnt(0)")
for j in range(4):
    E(f"v_add_f32 v{176+j}, v{176+j}, v{180+j}"); rbf(176+j)
for j in range(4):
    unpack8(168, 88+4*j)
    for k in range(8): E(f"v_fmac_f32 v{160+k}, v{176+j}, v{168+k}")
E("v_lshlrev_b32 v144, 8, v5"); E("v_lshl_add_u32 v144, v6, 5, v144")
E(f"ds_write_b128 v144, v[160:163] offset:{SC}"); E(f"ds_write_b128 v144, v[164:167] offset:{SC+16}")
bar()
E("v_lshlrev_b32 v144, 11, v4"); E("v_lshl_add_u32 v144, v1, 2, v144")
for r in range(8): E(f"ds_read_b32 v{168+r}, v144 offset:{SC+256*r}")
E("s_waitcnt lgkmcnt(0)")
for r in range(1, 8): E(f"v_add_f32 v168, v168, v{168+r}")
E("v_lshlrev_b32 v144, 2, v0"); E(f"ds_write_b32 v144, v168 offset:{SC+8192}")
bar()
E("s_cmp_lg_u32 s60, 0"); E("s_cbranch_scc1 P3D")
for r in range(4): E(f"ds_read_b32 v{176+r}, v144 offset:{SC+8192+256*r}")
E("s_waitcnt lgkmcnt(0)")
for r in range(1, 4): E(f"v_add_f32 v176, v176, v{176+r}")
E("s_lshl_b32 s69, s2, 9"); E(f"s_add_u32 s69, s69, {OP}"); E("v_lshlrev_b32 v144, 1, v144"); E("v_mov_b32 v177, s97")
E("buffer_store_dwordx2 v[176:177], v144, s[40:43], s69 offen sc1")
stamp()
L("P3D")
E("s_cmp_ge_u32 s2, 224"); E("s_cbranch_scc1 END")
E("v_lshlrev_b32 v145, 4, v0")
E("v_mov_b32 v146, 0"); E("v_mov_b32 v147, 0")
regs_ = [8+4*i for i in range(20)] + [192+4*i for i in range(12)]
lds_ = []
for r in range(32):
    lds_.append(f"s_mov_b32 s69, {OP + r*4096}")
    lds_.append(f"buffer_load_dwordx4 v[{regs_[r]}:{regs_[r]+3}], v145, s[40:43], s69 offen sc1")
gather(lds_, [x+1 for x in regs_] + [x+3 for x in regs_])
for r in range(32):
    E(f"v_add_f32 v146, v146, v{regs_[r]}"); E(f"v_add_f32 v147, v147, v{regs_[r]+2}")
E("v_mov_b32 v192, v146"); E("v_mov_b32 v193, v147")
E("v_lshlrev_b32 v144, 3, v0")
rbf(192); rbf(193)
E("v_lshlrev_b32 v146, 16, v142"); E("v_and_b32 v147, 0xffff0000, v142")
E("v_add_f32 v192, v192, v146"); E("v_add_f32 v193, v193, v147"); rbf(192); rbf(193)
E("s_cmp_lg_u32 s2, 0"); E("s_cbranch_scc1 NOH")
E(f"s_mov_b32 s69, {HH}"); E("v_mov_b32 v196, v192"); E("v_mov_b32 v197, s97"); E("v_mov_b32 v198, v193"); E("v_mov_b32 v199, s97")
E("buffer_store_dwordx4 v[196:199], v145, s[40:43], s69 offen sc1"); E("s_nop 1")
L("NOH")
def block_sum(v, off):
    wave_reduce("v_add_f32", v)
    E("v_lshlrev_b32 v146, 2, v4"); E(f"ds_write_b32 v146, v{v} offset:{off}")
    bar()
    E("v_mov_b32 v146, 0"); E(f"ds_read_b128 v[148:151], v146 offset:{off}"); E("s_waitcnt lgkmcnt(0)")
    E(f"v_add_f32 v{v}, v148, v149"); E(f"v_add_f32 v{v}, v{v}, v150"); E(f"v_add_f32 v{v}, v{v}, v151")
E("v_add_f32 v194, v192, v193"); block_sum(194, SC)
E(f"v_mul_f32 v194, {INV512}, v194")
E("v_sub_f32 v196, v192, v194"); E("v_mul_f32 v195, v196, v196"); E("v_sub_f32 v196, v193, v194"); E("v_fmac_f32 v195, v196, v196")
block_sum(195, SC+16)
E(f"v_mul_f32 v195, {INV512}, v195"); rbf(194); rbf(195)
E(f"v_add_f32 v195, {EPS}, v195"); rbf(195); E("v_sqrt_f32 v195, v195"); E("s_nop 0"); rbf(195)
E("v_rcp_f32 v196, v195"); E("s_nop 0")
for i in range(2):
    E(f"v_sub_f32 v197, v{192+i}, v194"); rbf(197); fdiv(192+i, 197, 195, 196, 198); rbf(192+i)
E("ds_write_b64 v144, v[192:193]")
bar()
E("s_and_b32 s69, s2, 7"); E("s_lshl_b32 s69, s69, 6"); E("v_add_u32 v144, s69, v5"); E("v_lshlrev_b32 v144, 2, v144")
E("ds_read_b32 v176, v144"); E("ds_read_b32 v177, v144 offset:128")
for k in range(8): E(f"v_mov_b32 v{160+k}, 0")
E("s_waitcnt lgkmcnt(0)")
for j in range(2):
    unpack8(168, 104+4*j)
    for k in range(8): E(f"v_fmac_f32 v{160+k}, v{176+j}, v{168+k}")
reduce64()
E("s_cmp_lg_u32 s60, 0"); E("s_cbranch_scc1 P4D")
E("s_and_b32 s69, s2, 7"); E("s_mul_i32 s69, s69, 1792*8"); E("s_lshr_b32 s74, s2, 3"); E("s_lshl_b32 s74, s74, 9"); E("s_add_u32 s69, s69, s74"); E(f"s_add_u32 s69, s69, {H1}")
E("v_mov_b32 v177, s97"); E("v_lshlrev_b32 v144, 1, v144")
E("buffer_store_dwordx2 v[176:177], v144, s[40:43], s69 offen sc1")
stamp()
L("P4D")
E("v_lshlrev_b32 v144, 3, v1"); E("s_lshr_b32 s70, s2, 3"); E("s_lshl_b32 s70, s70, 9"); E(f"s_add_u32 s70, s70, {H1}")
lds_ = []
for p in range(8):
    lds_.append(f"s_add_u32 s69, s70, {p*1792*8}")
    lds_.append(f"buffer_load_dwordx2 v[{192+2*p}:{193+2*p}], v144, s[40:43], s69 offen sc1")
gather(lds_, [193+2*p for p in range(8)])
for p in range(1, 8): E(f"v_add_f32 v192, v192, v{192+2*p}")
E("v_mov_b32 v176, v192")
rbf(176); E("v_lshlrev_b32 v140, 16, v140"); E("v_add_f32 v176, v176, v140"); rbf(176)
E("v_mul_f32 v177, v176, v176"); E("v_mul_f32 v177, v177, v176"); E("s_mov_b32 s69, 0x3d372713"); E("v_fma_f32 v177, v177, s69, v176")
E("v_mul_f32 v177, 0x40135761, v177"); E("v_exp_f32 v177, v177"); E("s_nop 0"); E("v_add_f32 v177, 1.0, v177")
E("v_rcp_f32 v177, v177"); E("s_nop 0"); E("v_fma_f32 v177, v177, -2.0, 1.0"); E("v_add_f32 v177, 1.0, v177")
E("v_mul_f32 v177, v177, v176"); E("v_mul_f32 v177, 0.5, v177"); rbf(177)
E("v_lshlrev_b32 v144, 2, v1"); E("ds_write_b32 v144, v177 offset:4096"); E("s_waitcnt lgkmcnt(0)")
E("v_lshlrev_b32 v144, 2, v5")
E("ds_read_b32 v176, v144 offset:4096"); E("ds_read_b32 v177, v144 offset:4224")
for k in range(8): E(f"v_mov_b32 v{160+k}, 0")
E("s_waitcnt lgkmcnt(0)")
for j in range(2):
    unpack8(168, 112+4*j)
    for k in range(8): E(f"v_fmac_f32 v{160+k}, v{176+j}, v{168+k}")
reduce64()
E("s_cmp_lg_u32 s60, 0"); E("s_cbranch_scc1 END")
E("s_lshl_b32 s69, s2, 9"); E(f"s_add_u32 s69, s69, {F2}")
E("v_mov_b32 v177, s97"); E("v_lshlrev_b32 v144, 1, v144")
E("buffer_store_dwordx2 v[176:177], v144, s[40:43], s69 offen sc1")
stamp()
E("s_cmp_ge_u32 s2, 8"); E("s_cbranch_scc1 END")
E("s_lshl_b32 s70, s2, 9")
lds_ = [f"s_add_u32 s69, s70, {HH}", "buffer_load_dwordx2 v[248:249], v144, s[40:43], s69 offen sc1"]
for k in range(28):
    lds_.append(f"s_add_u32 s69, s70, {F2 + 4096*k}")
    lds_.append(f"buffer_load_dwordx2 v[{192+2*k}:{193+2*k}], v144, s[40:43], s69 offen sc1")
gather(lds_, [249] + [193+2*k for k in range(28)])
for k in range(1, 28): E(f"v_add_f32 v192, v192, v{192+2*k}")
rbf(192); E("v_lshlrev_b32 v141, 16, v141"); E("v_add_f32 v192, v192, v141"); rbf(192)
E("v_add_f32 v192, v192, v248"); E("v_cvt_pk_bf16_f32 v192, v192, v192")
E("v_lshlrev_b32 v145, 1, v1"); E("s_lshl_b32 s69, s2, 7")
E("buffer_store_short v192, v145, s[56:59], s69 offen")
stamp()
L("END"); E("s_endpgm")

hdr = open(f"cdna_kernels/{NAME}.s.ref").read().split("; Override")[0]
res = [hdr.rstrip("\n"), f"; @launch grid=(256,1,1) block=(256,1,1) lds={SC+32768+512}",
       '.amdgcn_target "amdgcn-amd-amdhsa--gfx950"', ".text"] + out
res.append(f""".section .rodata,"a"
.p2align 6
.amdhsa_kernel {n}
  .amdhsa_next_free_vgpr 256
  .amdhsa_next_free_sgpr 102
  .amdhsa_accum_offset 256
  .amdhsa_group_segment_fixed_size 0
  .amdhsa_kernarg_size 104
  .amdhsa_user_sgpr_count 2
  .amdhsa_user_sgpr_kernarg_segment_ptr 1
  .amdhsa_system_sgpr_workgroup_id_x 1
.end_amdhsa_kernel""")
path = sys.argv[1] if len(sys.argv) > 1 else f"cdna_kernels/{NAME}.s"
open(path, "w").write("\n".join(res) + "\n")
```

```python
import sys
NAME = "sequential_preLN__sliding_block_cached__dense_activation_gelu__decode"
out = []
def E(s): out.append("    " + s)
def L(s): out.append(s + ":")

Q   = 0
APO = 131072
APM = APO + 1048576
OP  = APM + 16384
F2  = OP + 131072
WSN = 1 << 22
LOG2E = 0x3fb8aa3b; SCALE = 0x3db504f3; EPS = 0x3727c5ac; INV512 = 0x3b000000
XN = 0; QL = 2048; NON = 3072; SCO = 4096; SC = 8192
R0 = SC; LR = SC + 32768
LDSN = LR + 512

STAMP = len(sys.argv) > 2 and sys.argv[2] == "1"
DEPTH = int(sys.argv[3]) if len(sys.argv) > 3 else 4

def srd(d, b, n):
    E(f"s_mov_b32 s{d}, s{b}"); E(f"s_and_b32 s{d+1}, s{b+1}, 0xffff")
    E(f"s_mov_b32 s{d+2}, {n}"); E(f"s_mov_b32 s{d+3}, 0x00020000")
def rbf(v):
    E(f"v_cvt_pk_bf16_f32 v{v}, v{v}, v{v}"); E(f"v_lshlrev_b32 v{v}, 16, v{v}")
def wave_reduce(op, v, st=90):
    for mode in ["quad_perm:[1,0,3,2]", "quad_perm:[2,3,0,1]", "row_half_mirror", "row_mirror"]:
        E("s_nop 1"); E(f"{op}_dpp v{v}, v{v}, v{v} {mode} row_mask:0xf bank_mask:0xf")
    E("s_nop 1")
    for i in range(4): E(f"v_readlane_b32 s{st+i}, v{v}, {16*i}")
    E("s_nop 1"); E(f"v_mov_b32 v{v}, s{st}")
    for i in range(1, 4): E(f"{op} v{v}, s{st+i}, v{v}")
def wave_reduce_multi(op, vs):
    for mode in ["quad_perm:[1,0,3,2]", "quad_perm:[2,3,0,1]", "row_half_mirror", "row_mirror"]:
        E("s_nop 1")
        for v in vs: E(f"{op}_dpp v{v}, v{v}, v{v} {mode} row_mask:0xf bank_mask:0xf")
    E("s_nop 1")
    for k, v in enumerate(vs):
        for i in range(4): E(f"v_readlane_b32 s{80+4*k+i}, v{v}, {16*i}")
    E("s_nop 1")
    for k, v in enumerate(vs):
        E(f"v_mov_b32 v{v}, s{80+4*k}")
        for i in range(1, 4): E(f"{op} v{v}, s{80+4*k+i}, v{v}")
def unpack8(dst, src):
    for i in range(4):
        E(f"v_lshlrev_b32 v{dst+2*i}, 16, v{src+i}"); E(f"v_and_b32 v{dst+2*i+1}, 0xffff0000, v{src+i}")
def pkfma8(acc, p, x):
    if p % 2 == 0: pp, sel = p, "op_sel_hi:[0,1,1]"
    else: pp, sel = p - 1, "op_sel:[1,0,0] op_sel_hi:[1,1,1]"
    for i in range(4):
        E(f"v_pk_fma_f32 v[{acc+2*i}:{acc+2*i+1}], v[{pp}:{pp+1}], v[{x+2*i}:{x+2*i+1}], v[{acc+2*i}:{acc+2*i+1}] {sel}")
def fdiv(dst, num, den, rcp, t):
    E(f"v_mul_f32 v{dst}, v{num}, v{rcp}"); E(f"v_fma_f32 v{t}, -v{dst}, v{den}, v{num}"); E(f"v_fma_f32 v{dst}, v{t}, v{rcp}, v{dst}")
def bar():
    E("s_waitcnt lgkmcnt(0)"); E("s_barrier")
lab = [0]
def stamp(k, w=0):
    if not STAMP: return
    lab[0] += 1; n = lab[0]
    E(f"s_cmp_lg_u32 s60, {w}"); E(f"s_cbranch_scc1 ST{n}")
    E("s_memrealtime s[94:95]"); E("s_waitcnt lgkmcnt(0)")
    E("v_mov_b32 v254, s94"); E("s_lshl_b32 s96, s2, 6"); E(f"s_add_u32 s96, s96, {3145728 + 4*k}")
    E("v_mov_b32 v255, 0")
    E("buffer_store_dword v254, v255, s[40:43], s96 offen")
    L(f"ST{n}")
def gather(loads, tags):
    lab[0] += 1; n = lab[0]
    E("s_mov_b32 s71, 0")
    L(f"GL{n}")
    for l in loads: E(l)
    E("s_waitcnt vmcnt(0)")
    E(f"v_xor_b32 v250, s97, v{tags[0]}")
    for t_ in tags[1:]:
        E(f"v_xor_b32 v251, s97, v{t_}"); E("v_or_b32 v250, v250, v251")
    E("v_cmp_eq_u32 vcc, 0, v250"); E("s_nop 4")
    E("s_cmp_eq_u64 vcc, exec"); E(f"s_cbranch_scc1 GD{n}")
    E("s_add_u32 s71, s71, 1"); E("s_cmp_lt_u32 s71, 0x20000"); E(f"s_cbranch_scc1 GL{n}")
    L(f"GD{n}")

n = NAME + "_kernel"
out.append(f".globl {n}"); out.append(".p2align 8"); out.append(f".type {n},@function"); L(n)
E("s_cmp_ge_u32 s2, 256"); E("s_cbranch_scc1 END")
E("s_load_dwordx16 s[64:79], s[0:1], 0")
E("s_load_dwordx8 s[80:87], s[0:1], 64")
E("s_load_dwordx2 s[88:89], s[0:1], 96")
E("v_and_b32 v1, 63, v0"); E("v_and_b32 v2, 15, v1"); E("v_lshrrev_b32 v3, 4, v1"); E("v_lshrrev_b32 v4, 6, v0")
E("v_lshrrev_b32 v5, 3, v0"); E("v_and_b32 v6, 7, v0"); E("v_and_b32 v7, 3, v1")
E("v_readfirstlane_b32 s60, v4")
E("s_lshr_b32 s61, s2, 5"); E("s_and_b32 s62, s2, 31")
E("s_waitcnt lgkmcnt(0)")
srd(12, 64, 1024); srd(16, 66, 0x8000000); srd(20, 68, 0x8000000); srd(24, 70, 512*4096*2); srd(28, 72, 4096*512*2)
srd(32, 76, 512*1792*2); srd(36, 80, 1792*512*2); srd(40, 88, WSN); srd(44, 86, 256); srd(48, 78, 3584); srd(52, 82, 1024); srd(56, 84, 1024)
E("s_cmp_eq_u32 s60, 4"); E("s_cbranch_scc1 MW")
stamp(0)
E("v_lshlrev_b32 v144, 4, v1")
E("buffer_load_dwordx4 v[156:159], v144, s[12:15], 0 offen")
E("v_lshlrev_b32 v145, 13, v5"); E("v_lshl_add_u32 v145, v6, 4, v145")
E("s_and_b32 s63, s2, 3"); E("s_lshl_b32 s63, s63, 20"); E("s_lshr_b32 s64, s2, 2"); E("s_lshl_b32 s64, s64, 7"); E("s_add_u32 s63, s63, s64")
for j in range(4):
    E(f"s_add_u32 s64, s63, {j*32*8192}")
    E(f"buffer_load_dwordx4 v[{8+4*j}:{11+4*j}], v145, s[24:27], s64 offen")
E("s_lshl_b32 s98, s61, 24"); E("s_lshl_b32 s65, s62, 15"); E("s_add_u32 s98, s98, s65"); E(f"s_add_u32 s98, s98, {61440*256}")
E("v_lshlrev_b32 v136, 5, v4"); E("v_add_u32 v136, v136, v2"); E("v_lshlrev_b32 v136, 8, v136")
E("v_lshl_add_u32 v136, v3, 4, v136"); E("v_add_u32 v137, 4096, v136")
E("v_lshlrev_b32 v138, 5, v4"); E("v_add_u32 v138, v138, v3"); E("v_lshlrev_b32 v138, 8, v138")
E("v_lshl_add_u32 v138, v2, 4, v138"); E("v_add_u32 v139, 4096, v138")
KL = []
for t in range(2):
    for b in range(4):
        r = 24 + 16*t + 4*b
        KL.append(f"buffer_load_dwordx4 v[{r}:{r+3}], v{136+t}, s[16:19], s98 offen offset:{64*b}")
VL = []
for i in range(8):
    r = 56 + 4*i
    VL.append(f"buffer_load_dwordx4 v[{r}:{r+3}], v{138 + i//4}, s[20:23], s98 offen offset:{1024*(i%4)}")
E("s_waitcnt vmcnt(4)")
unpack8(160, 156)
t = 170
E(f"v_add_f32 v{t}, v160, v161")
for i in range(2, 8): E(f"v_add_f32 v{t}, v{t}, v{160+i}")
wave_reduce("v_add_f32", t)
E(f"v_mul_f32 v{t}, {INV512}, v{t}"); E(f"v_mov_b32 v{t+1}, 0")
for i in range(8):
    E(f"v_sub_f32 v{t+2}, v{160+i}, v{t}"); E(f"v_fmac_f32 v{t+1}, v{t+2}, v{t+2}")
wave_reduce("v_add_f32", t+1)
E(f"v_mul_f32 v{t+1}, {INV512}, v{t+1}")
rbf(t); rbf(t+1); E(f"v_add_f32 v{t+1}, {EPS}, v{t+1}"); rbf(t+1)
E(f"v_sqrt_f32 v{t+1}, v{t+1}"); E("s_nop 0"); rbf(t+1); E(f"v_rcp_f32 v{t+2}, v{t+1}"); E("s_nop 0")
for i in range(8):
    E(f"v_sub_f32 v{t+3}, v{160+i}, v{t}"); rbf(t+3); fdiv(160+i, t+3, t+1, t+2, t+4); rbf(160+i)
E("v_lshlrev_b32 v144, 5, v1")
E(f"ds_write_b128 v144, v[160:163] offset:{XN}"); E(f"ds_write_b128 v144, v[164:167] offset:{XN+16}")
E("s_waitcnt lgkmcnt(0)")
E("s_and_b32 s69, s2, 3"); E("s_lshl_b32 s69, s69, 7"); E("v_add_u32 v144, s69, v5"); E("v_lshlrev_b32 v144, 2, v144")
for j in range(4): E(f"ds_read_b32 v{176+2*j}, v144 offset:{XN+128*j}")
for k in range(8): E(f"v_mov_b32 v{160+k}, 0")
E("s_waitcnt vmcnt(0) lgkmcnt(0)")
stamp(1)
for l in KL[:DEPTH]: E(l)
for j in range(4):
    unpack8(168, 8+4*j)
    pkfma8(160, 176+2*j, 168)
E("v_lshlrev_b32 v144, 8, v5"); E("v_lshl_add_u32 v144, v6, 5, v144")
E(f"ds_write_b128 v144, v[160:163] offset:{SC}"); E(f"ds_write_b128 v144, v[164:167] offset:{SC+16}")
bar()
seq = KL[DEPTH:] + VL[:DEPTH]
for l in seq:
    E(f"s_waitcnt vmcnt({DEPTH-1})"); E(l)
for l in VL[DEPTH:]: E(l)
E("s_barrier")
stamp(4)
E(f"v_mov_b32 v144, {NON}"); E("ds_read_b32 v145, v144")
E("v_lshlrev_b32 v144, 8, v7"); E("v_lshl_add_u32 v144, v3, 4, v144")
for b in range(4): E(f"ds_read_b128 v[{160+4*b}:{163+4*b}], v144 offset:{QL+64*b}")
for k in range(8): E(f"v_mov_b32 v{176+k}, 0")
E("s_waitcnt vmcnt(8) lgkmcnt(0)")
E("v_readfirstlane_b32 s97, v145")
for tt in range(2):
    for b in range(4):
        r = 24 + 16*tt + 4*b
        E(f"v_mfma_f32_16x16x32_bf16 v[{176+4*tt}:{179+4*tt}], v[{r}:{r+3}], v[{160+4*b}:{163+4*b}], v[{176+4*tt}:{179+4*tt}]")
E(f"s_mov_b32 s76, {SCALE}"); E(f"s_mov_b32 s77, {LOG2E}")
E("v_lshlrev_b32 v144, 5, v4"); E("v_lshl_add_u32 v144, v3, 2, v144"); E("v_lshlrev_b32 v144, 4, v144"); E("v_lshl_add_u32 v144, v7, 2, v144")
E("s_nop 7"); E("s_nop 1")
for k in range(8):
    rbf(176+k); E(f"v_mul_f32 v{176+k}, s76, v{176+k}"); rbf(176+k)
for tt in range(2):
    for i in range(4): E(f"ds_write_b32 v144, v{176+4*tt+i} offset:{SCO + tt*256 + i*16}")
bar()
E("v_lshlrev_b32 v144, 4, v1")
E(f"ds_read_b128 v[176:179], v144 offset:{SCO}"); E(f"ds_read_b128 v[180:183], v144 offset:{SCO+1024}")
E("v_lshlrev_b32 v144, 5, v4"); E("v_add_u32 v144, v144, v3"); E("v_lshlrev_b32 v144, 4, v144")
for i in range(8): E(f"ds_read_b128 v[{192+4*i}:{195+4*i}], v144 offset:{SCO + 64*i}")
for k in range(32): E(f"v_mov_b32 v{224+k}, 0")
E("s_waitcnt lgkmcnt(8)")
for h in range(4): E(f"v_max_f32 v{176+h}, v{176+h}, v{180+h}")
wave_reduce_multi("v_max_f32", [176, 177, 178, 179])
for h in range(4): E(f"v_mul_f32 v{180+h}, s77, v{176+h}")
E("s_waitcnt lgkmcnt(0)")
for i in range(8):
    for h in range(4): E(f"v_fma_f32 v{192+4*i+h}, v{192+4*i+h}, s77, -v{180+h}")
for i in range(8):
    for h in range(4): E(f"v_exp_f32 v{192+4*i+h}, v{192+4*i+h}")
E("s_nop 0")
for h in range(4):
    E(f"v_add_f32 v{184+h}, v{192+h}, v{196+h}")
    for i in range(2, 8): E(f"v_add_f32 v{184+h}, v{184+h}, v{192+4*i+h}")
for i in range(8):
    E(f"s_waitcnt vmcnt({7-i})")
    unpack8(160, 56+4*i)
    for h in range(4): pkfma8(224+8*h, 192+4*i+h, 160)
E("v_lshl_add_u32 v145, v4, 2, v3"); E("v_lshlrev_b32 v144, 11, v145"); E("v_lshl_add_u32 v144, v2, 5, v144")
for h in range(4):
    E(f"ds_write_b128 v144, v[{224+8*h}:{227+8*h}] offset:{R0 + 512*h}")
    E(f"ds_write_b128 v144, v[{228+8*h}:{231+8*h}] offset:{R0 + 512*h + 16}")
E("v_lshlrev_b32 v144, 4, v145"); E(f"ds_write_b128 v144, v[184:187] offset:{LR}")
E("v_mov_b32 v144, 0"); E(f"ds_write_b128 v144, v[176:179] offset:{LR+256}")
bar()
E("v_lshlrev_b32 v144, 3, v0")
for r in range(16): E(f"ds_read_b64 v[{192+2*r}:{193+2*r}], v144 offset:{R0 + 2048*r}")
E("v_and_b32 v145, 3, v0"); E("v_lshlrev_b32 v145, 2, v145")
for r in range(16): E(f"ds_read_b32 v{224+r}, v145 offset:{LR+16*r}")
E(f"ds_read_b32 v240, v145 offset:{LR+256}")
E("v_lshlrev_b32 v146, 15, v4"); E("v_lshl_add_u32 v146, v1, 4, v146")
E("s_lshl_b32 s68, s61, 17"); E("s_lshl_b32 s69, s62, 10"); E("s_add_u32 s68, s68, s69"); E(f"s_add_u32 s68, s68, {APO}")
E("v_lshlrev_b32 v147, 7, v145")
E("s_lshl_b32 s70, s61, 11"); E("s_lshl_b32 s69, s62, 4"); E("s_add_u32 s70, s70, s69"); E(f"s_add_u32 s70, s70, {APM}")
E("s_waitcnt lgkmcnt(0)")
for r in range(1, 16):
    E(f"v_pk_add_f32 v[192:193], v[192:193], v[{192+2*r}:{193+2*r}]"); E(f"v_add_f32 v224, v224, v{224+r}")
E("v_mov_b32 v242, v224"); E("v_mov_b32 v241, s97"); E("v_mov_b32 v243, s97")
E("v_mov_b32 v194, v193"); E("v_mov_b32 v193, s97"); E("v_mov_b32 v195, s97")
E("buffer_store_dwordx4 v[192:195], v146, s[40:43], s68 offen sc1")
E("buffer_store_dwordx4 v[240:243], v147, s[40:43], s70 offen sc1")
stamp(5)
E("s_cmp_lt_u32 s2, 28"); E("s_cbranch_scc1 ROLEC")
E("s_cmp_lt_u32 s2, 36"); E("s_cbranch_scc1 ROLED")
E("s_cmp_lt_u32 s2, 128"); E("s_cbranch_scc1 END")
E("s_sub_u32 s68, s2, 128"); E("s_lshr_b32 s68, s68, 2"); E("s_and_b32 s67, s2, 3")
E("v_lshrrev_b32 v5, 4, v0"); E("v_and_b32 v6, 15, v0")
E("v_lshlrev_b32 v148, 10, v5"); E("v_lshl_add_u32 v148, v6, 4, v148")
E("s_lshl_b32 s69, s68, 17"); E("s_lshl_b32 s70, s67, 8"); E("s_add_u32 s69, s69, s70")
for j in range(8):
    E(f"buffer_load_dwordx4 v[{88+4*j}:{91+4*j}], v148, s[28:31], s69 offen")
    if j < 7: E("s_add_u32 s69, s69, 16384")
E("v_and_b32 v144, 31, v1"); E("v_lshlrev_b32 v149, 4, v144"); E("v_lshlrev_b32 v144, 3, v144")
E("s_lshl_b32 s69, s68, 9"); E(f"s_add_u32 s69, s69, {APM}")
E("v_lshrrev_b32 v145, 7, v0"); E("v_and_b32 v146, 127, v0")
E("v_lshlrev_b32 v147, 14, v145"); E("v_lshl_add_u32 v147, v146, 3, v147")
for q in range(1, 4): E(f"v_add_u32 v{151+q}, {4096*q}, v147")
E("v_mov_b32 v151, v147")
E("s_lshl_b32 s70, s68, 15"); E(f"s_add_u32 s70, s70, {APO}")
lds_ = ["buffer_load_dwordx4 v[156:159], v149, s[40:43], s69 offen sc1"]
for s_ in range(16): lds_.append(f"buffer_load_dwordx2 v[{192+2*s_}:{193+2*s_}], v{151 + s_//4}, s[40:43], s70 offen offset:{1024*(s_%4)} sc1")
gather(lds_, [157, 159] + [193+2*s_ for s_ in range(16)])
stamp(6)
E("v_mov_b32 v160, v156"); E("v_mov_b32 v161, v158")
E("v_mov_b32 v162, v160"); wave_reduce("v_max_f32", 162)
E("v_sub_f32 v163, v160, v162"); E("v_mul_f32 v163, s77, v163"); E("v_exp_f32 v163, v163"); E("s_nop 0")
E("v_mul_f32 v162, v163, v161"); wave_reduce("v_add_f32", 162)
E("v_mul_f32 v162, 0.5, v162"); E("v_rcp_f32 v164, v162"); E("s_nop 0")
fdiv(165, 163, 162, 164, 166)
E("v_lshrrev_b32 v144, 1, v144"); E(f"ds_write_b32 v144, v165 offset:{QL}"); E("s_waitcnt lgkmcnt(0)")
E("v_lshlrev_b32 v144, 6, v145")
for q in range(4): E(f"ds_read_b128 v[{228+4*q}:{231+4*q}], v144 offset:{QL+16*q}")
E("s_waitcnt lgkmcnt(0)")
E("v_mul_f32 v168, v192, v228")
for s in range(1, 16): E(f"v_fmac_f32 v168, v{192+2*s}, v{228+s}")
E("v_lshlrev_b32 v144, 2, v0"); E(f"ds_write_b32 v144, v168 offset:{XN}")
bar()
E("v_lshlrev_b32 v144, 2, v5")
for j in range(8):
    E(f"ds_read_b32 v{176+2*j}, v144 offset:{XN+64*j}"); E(f"ds_read_b32 v{177+2*j}, v144 offset:{XN+512+64*j}")
for k in range(8): E(f"v_mov_b32 v{160+k}, 0")
E("s_waitcnt lgkmcnt(0)")
for j in range(8):
    E(f"v_add_f32 v{176+2*j}, v{176+2*j}, v{177+2*j}"); rbf(176+2*j)
for j in range(8):
    unpack8(168, 88+4*j)
    pkfma8(160, 176+2*j, 168)
E("v_lshlrev_b32 v144, 9, v5"); E("v_lshl_add_u32 v144, v6, 5, v144")
E(f"ds_write_b128 v144, v[160:163] offset:{SC}"); E(f"ds_write_b128 v144, v[164:167] offset:{SC+16}")
bar()
E("s_cmp_ge_u32 s60, 2"); E("s_cbranch_scc1 END")
E("v_lshlrev_b32 v144, 2, v0")
for r in range(16): E(f"ds_read_b32 v{176+r}, v144 offset:{SC+512*r}")
E("s_lshl_b32 s69, s68, 12"); E("s_lshl_b32 s70, s67, 10"); E("s_add_u32 s69, s69, s70"); E(f"s_add_u32 s69, s69, {OP}")
E("v_lshlrev_b32 v144, 3, v0")
E("s_waitcnt lgkmcnt(0)")
for r in range(1, 16): E(f"v_add_f32 v176, v176, v{176+r}")
E("v_mov_b32 v177, s97")
E("buffer_store_dwordx2 v[176:177], v144, s[40:43], s69 offen sc1")
stamp(7)
E("s_branch END")
L("ROLEC")
E("s_mov_b32 s69, 57344"); E("v_mul_lo_u32 v148, v5, s69"); E("v_lshl_add_u32 v148, v6, 4, v148")
E("s_lshl_b32 s69, s2, 7")
for i in range(16):
    E(f"buffer_load_dwordx4 v[{8+4*i}:{11+4*i}], v148, s[32:35], s69 offen")
    if i < 15: E("s_add_u32 s69, s69, 3584")
E("v_lshlrev_b32 v148, 14, v4"); E("v_lshl_add_u32 v148, v1, 4, v148")
E("s_lshl_b32 s69, s2, 16")
for i in range(16):
    E(f"buffer_load_dwordx4 v[{72+4*i}:{75+4*i}], v148, s[36:39], s69 offen offset:{1024*(i%4)}")
    if i % 4 == 3 and i < 15: E("s_add_u32 s69, s69, 4096")
E("v_lshlrev_b32 v148, 1, v1"); E("s_lshl_b32 s69, s2, 7")
E("buffer_load_ushort v140, v148, s[48:51], s69 offen")
E("v_lshlrev_b32 v148, 2, v0")
E("buffer_load_dword v142, v148, s[12:15], 0 offen")
E("v_lshlrev_b32 v145, 4, v0")
E("v_mov_b32 v146, 0"); E("v_mov_b32 v147, 0")
for half in range(2):
    lds_ = []
    for r in range(16):
        lds_.append(f"s_mov_b32 s69, {OP + (half*16+r)*4096}")
        lds_.append(f"buffer_load_dwordx4 v[{160+4*r}:{163+4*r}], v145, s[40:43], s69 offen sc1")
    gather(lds_, [161+4*r for r in range(16)] + [163+4*r for r in range(16)])
    for r in range(16):
        E(f"v_add_f32 v146, v146, v{160+4*r}"); E(f"v_add_f32 v147, v147, v{162+4*r}")
stamp(6)
E("v_mov_b32 v192, v146"); E("v_mov_b32 v193, v147")
E("v_lshlrev_b32 v144, 3, v0")
rbf(192); rbf(193)
E("v_lshlrev_b32 v146, 16, v142"); E("v_and_b32 v147, 0xffff0000, v142")
E("v_add_f32 v192, v192, v146"); E("v_add_f32 v193, v193, v147"); rbf(192); rbf(193)
def block_sum(v, off):
    wave_reduce("v_add_f32", v)
    E("v_lshlrev_b32 v146, 2, v4"); E(f"ds_write_b32 v146, v{v} offset:{off}")
    bar()
    E("v_mov_b32 v146, 0"); E(f"ds_read_b128 v[148:151], v146 offset:{off}"); E("s_waitcnt lgkmcnt(0)")
    E(f"v_add_f32 v{v}, v148, v149"); E(f"v_add_f32 v{v}, v{v}, v150"); E(f"v_add_f32 v{v}, v{v}, v151")
E("v_add_f32 v194, v192, v193"); block_sum(194, QL)
E(f"v_mul_f32 v194, {INV512}, v194")
E("v_sub_f32 v196, v192, v194"); E("v_mul_f32 v195, v196, v196"); E("v_sub_f32 v196, v193, v194"); E("v_fmac_f32 v195, v196, v196")
block_sum(195, QL+16)
E(f"v_mul_f32 v195, {INV512}, v195"); rbf(194); rbf(195)
E(f"v_add_f32 v195, {EPS}, v195"); rbf(195); E("v_sqrt_f32 v195, v195"); E("s_nop 0"); rbf(195)
E("v_rcp_f32 v196, v195"); E("s_nop 0")
for i in range(2):
    E(f"v_sub_f32 v197, v{192+i}, v194"); rbf(197); fdiv(192+i, 197, 195, 196, 198); rbf(192+i)
E(f"ds_write_b64 v144, v[192:193] offset:{XN}")
bar()
E("v_lshlrev_b32 v144, 6, v5")
for q in range(4): E(f"ds_read_b128 v[{192+4*q}:{195+4*q}], v144 offset:{XN+16*q}")
for k in range(8): E(f"v_mov_b32 v{160+k}, 0")
E("s_waitcnt lgkmcnt(0)")
for i in range(16):
    unpack8(168, 8+4*i)
    pkfma8(160, 192+i, 168)
E("v_lshlrev_b32 v144, 8, v5"); E("v_lshl_add_u32 v144, v6, 5, v144")
E(f"ds_write_b128 v144, v[160:163] offset:{SC}"); E(f"ds_write_b128 v144, v[164:167] offset:{SC+16}")
bar()
E("v_lshlrev_b32 v144, 2, v1")
for r in range(32): E(f"ds_read_b32 v{192+r}, v144 offset:{SC+256*r}")
E("s_lshl_b32 s63, s60, 4")
for k in range(8): E(f"v_mov_b32 v{160+k}, 0")
E("s_waitcnt lgkmcnt(0)")
for r in range(1, 32): E(f"v_add_f32 v192, v192, v{192+r}")
E("v_mov_b32 v176, v192")
rbf(176); E("v_lshlrev_b32 v140, 16, v140"); E("v_add_f32 v176, v176, v140"); rbf(176)
E("v_mul_f32 v177, v176, v176"); E("v_mul_f32 v177, v177, v176"); E("s_mov_b32 s69, 0x3d372713"); E("v_fma_f32 v177, v177, s69, v176")
E("v_mul_f32 v177, 0x40135761, v177"); E("v_exp_f32 v177, v177"); E("s_nop 0"); E("v_add_f32 v177, 1.0, v177")
E("v_rcp_f32 v177, v177"); E("s_nop 0"); E("v_fma_f32 v177, v177, -2.0, 1.0"); E("v_add_f32 v177, 1.0, v177")
E("v_mul_f32 v177, v177, v176"); E("v_mul_f32 v177, 0.5, v177"); rbf(177)
E("s_nop 1")
for i in range(16):
    E(f"v_readlane_b32 s{64+i}, v177, s63")
    if i < 15: E("s_add_u32 s63, s63, 1")
E("s_nop 1")
for i in range(16):
    unpack8(168, 72+4*i)
    for k in range(8): E(f"v_fmac_f32 v{160+k}, s{64+i}, v{168+k}")
E("v_lshlrev_b32 v144, 11, v4"); E("v_lshl_add_u32 v144, v1, 5, v144")
E(f"ds_write_b128 v144, v[160:163] offset:{SC+8192}"); E(f"ds_write_b128 v144, v[164:167] offset:{SC+8192+16}")
bar()
E("v_lshlrev_b32 v144, 3, v0")
for r in range(4): E(f"ds_read_b64 v[{192+2*r}:{193+2*r}], v144 offset:{SC+8192+2048*r}")
E("s_lshl_b32 s69, s2, 12"); E(f"s_add_u32 s69, s69, {F2}")
E("s_waitcnt lgkmcnt(0)")
for r in range(1, 4): E(f"v_pk_add_f32 v[192:193], v[192:193], v[{192+2*r}:{193+2*r}]")
E("v_mov_b32 v194, v193"); E("v_mov_b32 v193, s97"); E("v_mov_b32 v195, s97")
E("buffer_store_dwordx4 v[192:195], v145, s[40:43], s69 offen sc1")
stamp(7)
E("s_branch END")
L("ROLED")
E("s_cmp_lg_u32 s60, 0"); E("s_cbranch_scc1 END")
E("s_sub_u32 s68, s2, 28")
E("v_lshlrev_b32 v148, 1, v1"); E("s_lshl_b32 s69, s68, 7")
E("buffer_load_ushort v141, v148, s[52:55], s69 offen")
E("buffer_load_ushort v140, v148, s[12:15], s69 offen")
E("v_lshlrev_b32 v144, 3, v1"); E("s_lshl_b32 s70, s68, 9")
lds_ = []
for k in range(32):
    lds_.append(f"s_add_u32 s69, s70, {OP + 4096*k}")
    lds_.append(f"buffer_load_dwordx2 v[{160+2*k}:{161+2*k}], v144, s[40:43], s69 offen sc1")
gather(lds_, [161+2*k for k in range(32)])
stamp(6)
for k in range(1, 32): E(f"v_add_f32 v160, v160, v{160+2*k}")
rbf(160); E("v_lshlrev_b32 v140, 16, v140"); E("v_add_f32 v248, v160, v140"); rbf(248)
lds_ = []
for k in range(28):
    lds_.append(f"s_add_u32 s69, s70, {F2 + 4096*k}")
    lds_.append(f"buffer_load_dwordx2 v[{192+2*k}:{193+2*k}], v144, s[40:43], s69 offen sc1")
gather(lds_, [193+2*k for k in range(28)])
for k in range(1, 28): E(f"v_add_f32 v192, v192, v{192+2*k}")
rbf(192); E("v_lshlrev_b32 v141, 16, v141"); E("v_add_f32 v192, v192, v141"); rbf(192)
E("v_add_f32 v192, v192, v248"); E("v_cvt_pk_bf16_f32 v192, v192, v192")
E("s_lshl_b32 s69, s68, 7")
E("buffer_store_short v192, v148, s[56:59], s69 offen")
stamp(7)
E("s_branch END")
L("MW")
E("s_cmp_lg_u32 s2, 0"); E("s_cbranch_scc1 NONW")
E("s_memrealtime s[94:95]"); E("s_waitcnt lgkmcnt(0)"); E("s_or_b32 s94, s94, 1")
E("v_mov_b32 v250, 0"); E("v_mov_b32 v251, s94"); E("buffer_store_dword v251, v250, s[44:47], 0 offen sc1")
L("NONW")
E("s_mov_b32 s71, 0"); E("v_mov_b32 v250, 0")
L("NL")
E("buffer_load_dword v251, v250, s[44:47], 0 offen sc1"); E("s_waitcnt vmcnt(0)")
E("v_readfirstlane_b32 s97, v251"); E("s_nop 3")
E("s_cmp_lg_u32 s97, 0"); E("s_cbranch_scc1 ND")
E("s_add_u32 s71, s71, 1"); E("s_cmp_lt_u32 s71, 0x40000"); E("s_cbranch_scc1 NL")
L("ND")
E(f"v_mov_b32 v144, {NON}"); E("v_mov_b32 v145, s97"); E("ds_write_b32 v144, v145")
E("v_lshlrev_b32 v144, 2, v1")
E("s_and_b32 s69, s2, 3"); E("s_lshl_b32 s69, s69, 15"); E("s_lshr_b32 s74, s2, 2"); E("s_lshl_b32 s74, s74, 9"); E("s_add_u32 s69, s69, s74")
E("v_lshlrev_b32 v146, 3, v1"); E("v_lshlrev_b32 v147, 4, v1")
bar()
for r in range(32): E(f"ds_read_b32 v{160+r}, v144 offset:{SC+256*r}")
E("s_waitcnt lgkmcnt(0)")
for r in range(1, 32): E(f"v_add_f32 v160, v160, v{160+r}")
E("v_mov_b32 v161, s97")
E("buffer_store_dwordx2 v[160:161], v146, s[40:43], s69 offen sc1")
stamp(2, 4)
E("s_lshl_b32 s69, s61, 12")
lds_ = []
for p in range(4):
    lds_.append(f"s_add_u32 s70, s69, {p*32768}")
    for j in range(4):
        r = 160 + 16*p + 4*j
        lds_.append(f"buffer_load_dwordx4 v[{r}:{r+3}], v147, s[40:43], s70 offen offset:{1024*j} sc1")
gather(lds_, [161+2*i for i in range(32)])
stamp(3, 4)
for j in range(4):
    for p in range(1, 4):
        E(f"v_add_f32 v{160+4*j}, v{160+4*j}, v{160+16*p+4*j}"); E(f"v_add_f32 v{162+4*j}, v{162+4*j}, v{162+16*p+4*j}")
    E(f"v_cvt_pk_bf16_f32 v{160+4*j}, v{160+4*j}, v{162+4*j}")
    E(f"ds_write_b32 v144, v{160+4*j} offset:{QL+256*j}")
bar()
L("END"); E("s_endpgm")

hdr = open(f"cdna_kernels/{NAME}.s.ref").read().split("; Override")[0]
res = [hdr.rstrip("\n"), f"; @launch grid=(256,1,1) block=(320,1,1) lds={LDSN}",
       '.amdgcn_target "amdgcn-amd-amdhsa--gfx950"', ".text"] + out
res.append(f""".section .rodata,"a"
.p2align 6
.amdhsa_kernel {n}
  .amdhsa_next_free_vgpr 256
  .amdhsa_next_free_sgpr 102
  .amdhsa_accum_offset 256
  .amdhsa_group_segment_fixed_size 0
  .amdhsa_kernarg_size 104
  .amdhsa_user_sgpr_count 2
  .amdhsa_user_sgpr_kernarg_segment_ptr 1
  .amdhsa_system_sgpr_workgroup_id_x 1
.end_amdhsa_kernel""")
path = sys.argv[1] if len(sys.argv) > 1 else f"cdna_kernels/{NAME}.s"
open(path, "w").write("\n".join(res) + "\n")
```

```python
import sys
NAME = "sequential_preLN__sliding_block_cached__dense_activation_gelu__decode"
out = []
def E(s): out.append("    " + s)
def L(s): out.append(s + ":")

Q   = 0
APO = 131072
APM = APO + 1048576
OP  = APM + 16384
F2  = OP + 131072
WSN = 1 << 22
LOG2E = 0x3fb8aa3b; SCALE = 0x3db504f3; EPS = 0x3727c5ac; INV512 = 0x3b000000
XN = 0; QL = 2048; NON = 3072; SCO = 4096; SC = 8192
R0 = SC; LR = SC + 32768
LDSN = LR + 512

STAMP = len(sys.argv) > 2 and sys.argv[2] == "1"
DEPTH = int(sys.argv[3]) if len(sys.argv) > 3 else 4

def srd(d, b, n):
    E(f"s_mov_b32 s{d}, s{b}"); E(f"s_and_b32 s{d+1}, s{b+1}, 0xffff")
    E(f"s_mov_b32 s{d+2}, {n}"); E(f"s_mov_b32 s{d+3}, 0x00020000")
def rbf(v):
    E(f"v_cvt_pk_bf16_f32 v{v}, v{v}, v{v}"); E(f"v_lshlrev_b32 v{v}, 16, v{v}")
def wave_reduce(op, v, st=90):
    for mode in ["quad_perm:[1,0,3,2]", "quad_perm:[2,3,0,1]", "row_half_mirror", "row_mirror"]:
        E("s_nop 1"); E(f"{op}_dpp v{v}, v{v}, v{v} {mode} row_mask:0xf bank_mask:0xf")
    E("s_nop 1")
    for i in range(4): E(f"v_readlane_b32 s{st+i}, v{v}, {16*i}")
    E("s_nop 1"); E(f"v_mov_b32 v{v}, s{st}")
    for i in range(1, 4): E(f"{op} v{v}, s{st+i}, v{v}")
def wave_reduce_multi(op, vs):
    for mode in ["quad_perm:[1,0,3,2]", "quad_perm:[2,3,0,1]", "row_half_mirror", "row_mirror"]:
        E("s_nop 1")
        for v in vs: E(f"{op}_dpp v{v}, v{v}, v{v} {mode} row_mask:0xf bank_mask:0xf")
    E("s_nop 1")
    for k, v in enumerate(vs):
        for i in range(4): E(f"v_readlane_b32 s{80+4*k+i}, v{v}, {16*i}")
    E("s_nop 1")
    for k, v in enumerate(vs):
        E(f"v_mov_b32 v{v}, s{80+4*k}")
        for i in range(1, 4): E(f"{op} v{v}, s{80+4*k+i}, v{v}")
def unpack8(dst, src):
    for i in range(4):
        E(f"v_lshlrev_b32 v{dst+2*i}, 16, v{src+i}"); E(f"v_and_b32 v{dst+2*i+1}, 0xffff0000, v{src+i}")
def pkfma8(acc, p, x):
    if p % 2 == 0: pp, sel = p, "op_sel_hi:[0,1,1]"
    else: pp, sel = p - 1, "op_sel:[1,0,0] op_sel_hi:[1,1,1]"
    for i in range(4):
        E(f"v_pk_fma_f32 v[{acc+2*i}:{acc+2*i+1}], v[{pp}:{pp+1}], v[{x+2*i}:{x+2*i+1}], v[{acc+2*i}:{acc+2*i+1}] {sel}")
def fdiv(dst, num, den, rcp, t):
    E(f"v_mul_f32 v{dst}, v{num}, v{rcp}"); E(f"v_fma_f32 v{t}, -v{dst}, v{den}, v{num}"); E(f"v_fma_f32 v{dst}, v{t}, v{rcp}, v{dst}")
def bar():
    E("s_waitcnt lgkmcnt(0)"); E("s_barrier")
lab = [0]
def stamp(k, w=0):
    if not STAMP: return
    lab[0] += 1; n = lab[0]
    E(f"s_cmp_lg_u32 s60, {w}"); E(f"s_cbranch_scc1 ST{n}")
    E("s_memrealtime s[94:95]"); E("s_waitcnt lgkmcnt(0)")
    E("v_mov_b32 v254, s94"); E("s_lshl_b32 s96, s2, 6"); E(f"s_add_u32 s96, s96, {3145728 + 4*k}")
    E("v_mov_b32 v255, 0")
    E("buffer_store_dword v254, v255, s[40:43], s96 offen")
    L(f"ST{n}")
def gather(loads, tags):
    lab[0] += 1; n = lab[0]
    E("s_mov_b32 s71, 0")
    L(f"GL{n}")
    for l in loads: E(l)
    E("s_waitcnt vmcnt(0)")
    E(f"v_xor_b32 v250, s97, v{tags[0]}")
    for t_ in tags[1:]:
        E(f"v_xor_b32 v251, s97, v{t_}"); E("v_or_b32 v250, v250, v251")
    E("v_cmp_eq_u32 vcc, 0, v250"); E("s_nop 4")
    E("s_cmp_eq_u64 vcc, exec"); E(f"s_cbranch_scc1 GD{n}")
    E("s_add_u32 s71, s71, 1"); E("s_cmp_lt_u32 s71, 0x20000"); E(f"s_cbranch_scc1 GL{n}")
    L(f"GD{n}")

n = NAME + "_kernel"
out.append(f".globl {n}"); out.append(".p2align 8"); out.append(f".type {n},@function"); L(n)
E("s_cmp_ge_u32 s2, 256"); E("s_cbranch_scc1 END")
E("s_load_dwordx16 s[64:79], s[0:1], 0")
E("s_load_dwordx8 s[80:87], s[0:1], 64")
E("s_load_dwordx2 s[88:89], s[0:1], 96")
E("v_and_b32 v1, 63, v0"); E("v_and_b32 v2, 15, v1"); E("v_lshrrev_b32 v3, 4, v1"); E("v_lshrrev_b32 v4, 6, v0")
E("v_lshrrev_b32 v5, 3, v0"); E("v_and_b32 v6, 7, v0"); E("v_and_b32 v7, 3, v1")
E("v_readfirstlane_b32 s60, v4")
E("s_lshr_b32 s61, s2, 5"); E("s_and_b32 s62, s2, 31")
E("s_waitcnt lgkmcnt(0)")
srd(12, 64, 1024); srd(16, 66, 0x8000000); srd(20, 68, 0x8000000); srd(24, 70, 512*4096*2); srd(28, 72, 4096*512*2)
srd(32, 76, 512*1792*2); srd(36, 80, 1792*512*2); srd(40, 88, WSN); srd(44, 86, 256); srd(48, 78, 3584); srd(52, 82, 1024); srd(56, 84, 1024)
E("s_cmp_eq_u32 s60, 4"); E("s_cbranch_scc1 MW")
stamp(0)
E("v_lshlrev_b32 v144, 4, v1")
E("buffer_load_dwordx4 v[156:159], v144, s[12:15], 0 offen")
E("v_lshlrev_b32 v145, 13, v5"); E("v_lshl_add_u32 v145, v6, 4, v145")
E("s_and_b32 s63, s2, 3"); E("s_lshl_b32 s63, s63, 20"); E("s_lshr_b32 s64, s2, 2"); E("s_lshl_b32 s64, s64, 7"); E("s_add_u32 s63, s63, s64")
for j in range(4):
    E(f"s_add_u32 s64, s63, {j*32*8192}")
    E(f"buffer_load_dwordx4 v[{8+4*j}:{11+4*j}], v145, s[24:27], s64 offen")
E("s_lshl_b32 s98, s61, 24"); E("s_lshl_b32 s65, s62, 15"); E("s_add_u32 s98, s98, s65"); E(f"s_add_u32 s98, s98, {61440*256}")
E("v_lshlrev_b32 v136, 5, v4"); E("v_add_u32 v136, v136, v2"); E("v_lshlrev_b32 v136, 8, v136")
E("v_lshl_add_u32 v136, v3, 4, v136"); E("v_add_u32 v137, 4096, v136")
E("v_lshlrev_b32 v138, 5, v4"); E("v_lshl_add_u32 v138, v3, 2, v138"); E("v_lshlrev_b32 v138, 8, v138")
E("v_lshl_add_u32 v138, v2, 4, v138"); E("v_add_u32 v139, 4096, v138")
KL = []
for t in range(2):
    for b in range(4):
        r = 24 + 16*t + 4*b
        KL.append(f"buffer_load_dwordx4 v[{r}:{r+3}], v{136+t}, s[16:19], s98 offen offset:{64*b}")
VL = []
for i in range(8):
    r = 56 + 4*i
    VL.append(f"buffer_load_dwordx4 v[{r}:{r+3}], v{138 + i//4}, s[20:23], s98 offen offset:{256*(i%4)}")
E("s_waitcnt vmcnt(4)")
unpack8(160, 156)
t = 170
E(f"v_add_f32 v{t}, v160, v161")
for i in range(2, 8): E(f"v_add_f32 v{t}, v{t}, v{160+i}")
wave_reduce("v_add_f32", t)
E(f"v_mul_f32 v{t}, {INV512}, v{t}"); E(f"v_mov_b32 v{t+1}, 0")
for i in range(8):
    E(f"v_sub_f32 v{t+2}, v{160+i}, v{t}"); E(f"v_fmac_f32 v{t+1}, v{t+2}, v{t+2}")
wave_reduce("v_add_f32", t+1)
E(f"v_mul_f32 v{t+1}, {INV512}, v{t+1}")
rbf(t); rbf(t+1); E(f"v_add_f32 v{t+1}, {EPS}, v{t+1}"); rbf(t+1)
E(f"v_sqrt_f32 v{t+1}, v{t+1}"); E("s_nop 0"); rbf(t+1); E(f"v_rcp_f32 v{t+2}, v{t+1}"); E("s_nop 0")
for i in range(8):
    E(f"v_sub_f32 v{t+3}, v{160+i}, v{t}"); rbf(t+3); fdiv(160+i, t+3, t+1, t+2, t+4); rbf(160+i)
E("v_lshlrev_b32 v144, 5, v1")
E(f"ds_write_b128 v144, v[160:163] offset:{XN}"); E(f"ds_write_b128 v144, v[164:167] offset:{XN+16}")
E("s_waitcnt lgkmcnt(0)")
E("s_and_b32 s69, s2, 3"); E("s_lshl_b32 s69, s69, 7"); E("v_add_u32 v144, s69, v5"); E("v_lshlrev_b32 v144, 2, v144")
for j in range(4): E(f"ds_read_b32 v{176+2*j}, v144 offset:{XN+128*j}")
for k in range(8): E(f"v_mov_b32 v{160+k}, 0")
E("s_waitcnt vmcnt(0) lgkmcnt(0)")
stamp(1)
for l in KL[:DEPTH]: E(l)
for j in range(4):
    unpack8(168, 8+4*j)
    pkfma8(160, 176+2*j, 168)
E("v_lshlrev_b32 v144, 8, v5"); E("v_lshl_add_u32 v144, v6, 5, v144")
E(f"ds_write_b128 v144, v[160:163] offset:{SC}"); E(f"ds_write_b128 v144, v[164:167] offset:{SC+16}")
bar()
seq = KL[DEPTH:] + VL[:DEPTH]
for l in seq:
    E(f"s_waitcnt vmcnt({DEPTH-1})"); E(l)
for l in VL[DEPTH:]: E(l)
E("s_barrier")
stamp(4)
E(f"v_mov_b32 v144, {NON}"); E("ds_read_b32 v145, v144")
E("v_lshlrev_b32 v144, 8, v7"); E("v_lshl_add_u32 v144, v3, 4, v144")
for b in range(4): E(f"ds_read_b128 v[{160+4*b}:{163+4*b}], v144 offset:{QL+64*b}")
for k in range(8): E(f"v_mov_b32 v{176+k}, 0")
E("s_waitcnt vmcnt(8) lgkmcnt(0)")
E("v_readfirstlane_b32 s97, v145")
for tt in range(2):
    for b in range(4):
        r = 24 + 16*tt + 4*b
        E(f"v_mfma_f32_16x16x32_bf16 v[{176+4*tt}:{179+4*tt}], v[{r}:{r+3}], v[{160+4*b}:{163+4*b}], v[{176+4*tt}:{179+4*tt}]")
E(f"s_mov_b32 s76, {SCALE}"); E(f"s_mov_b32 s77, {LOG2E}")
for k in range(32): E(f"v_mov_b32 v{224+k}, 0")
E("s_nop 1")
for k in range(8):
    rbf(176+k); E(f"v_mul_f32 v{176+k}, s76, v{176+k}"); rbf(176+k)
E("v_max3_f32 v184, v176, v177, v178"); E("v_max3_f32 v185, v179, v180, v181"); E("v_max3_f32 v184, v184, v182, v183"); E("v_max_f32 v184, v184, v185")
def xrow(op, v, t):
    E(f"v_mov_b32 v{t}, v{v}"); E("s_nop 1"); E(f"v_permlane32_swap_b32 v{v}, v{t}"); E("s_nop 1"); E(f"{op} v{v}, v{v}, v{t}")
    E(f"v_mov_b32 v{t}, v{v}"); E("s_nop 1"); E(f"v_permlane16_swap_b32 v{v}, v{t}"); E("s_nop 1"); E(f"{op} v{v}, v{v}, v{t}")
xrow("v_max_f32", 184, 185)
E("v_mul_f32 v185, s77, v184")
for k in range(8): E(f"v_fma_f32 v{176+k}, v{176+k}, s77, -v185")
for k in range(8): E(f"v_exp_f32 v{176+k}, v{176+k}")
E("s_nop 0")
E("v_add_f32 v185, v176, v177")
for k in range(2, 8): E(f"v_add_f32 v185, v185, v{176+k}")
for j in range(8):
    for h in range(4): E(f"v_mov_b32_dpp v{192+4*j+h}, v{176+j} quad_perm:[{h},{h},{h},{h}] row_mask:0xf bank_mask:0xf")
xrow("v_add_f32", 185, 186)
for i in range(8):
    E(f"s_waitcnt vmcnt({7-i})")
    unpack8(160, 56+4*i)
    for h in range(4): pkfma8(224+8*h, 192+4*i+h, 160)
E("s_nop 1")
for k in range(8):
    E(f"v_permlane32_swap_b32 v{224+k}, v{240+k}"); E(f"v_permlane32_swap_b32 v{232+k}, v{248+k}")
E("s_nop 1")
for k in range(8):
    E(f"v_add_f32 v{224+k}, v{224+k}, v{240+k}"); E(f"v_add_f32 v{232+k}, v{232+k}, v{248+k}")
E("s_nop 1")
for k in range(8): E(f"v_permlane16_swap_b32 v{224+k}, v{232+k}")
E("s_nop 1")
for k in range(8): E(f"v_add_f32 v{224+k}, v{224+k}, v{232+k}")
E("v_lshlrev_b32 v144, 11, v4"); E("v_lshl_add_u32 v144, v1, 5, v144")
E(f"ds_write_b128 v144, v[224:227] offset:{R0}"); E(f"ds_write_b128 v144, v[228:231] offset:{R0+16}")
E("v_lshlrev_b32 v144, 5, v4"); E("v_lshl_add_u32 v144, v7, 3, v144")
E(f"ds_write_b64 v144, v[184:185] offset:{LR}")
bar()
E("v_lshlrev_b32 v144, 9, v4"); E("v_lshl_add_u32 v144, v1, 3, v144")
for w in range(4): E(f"ds_read_b64 v[{192+2*w}:{193+2*w}], v144 offset:{R0+2048*w}")
E("v_lshlrev_b32 v145, 3, v4")
for w in range(4): E(f"ds_read_b64 v[{200+2*w}:{201+2*w}], v145 offset:{LR+32*w}")
E("v_lshlrev_b32 v146, 15, v4"); E("v_lshl_add_u32 v146, v1, 4, v146")
E("s_lshl_b32 s68, s61, 17"); E("s_lshl_b32 s69, s62, 10"); E("s_add_u32 s68, s68, s69"); E(f"s_add_u32 s68, s68, {APO}")
E("v_lshlrev_b32 v147, 9, v4")
E("s_lshl_b32 s70, s61, 11"); E("s_lshl_b32 s69, s62, 4"); E("s_add_u32 s70, s70, s69"); E(f"s_add_u32 s70, s70, {APM}")
E("s_waitcnt lgkmcnt(0)")
E("v_max3_f32 v240, v200, v202, v204"); E("v_max_f32 v240, v240, v206")
for w in range(4):
    E(f"v_sub_f32 v{208+2*w}, v{200+2*w}, v240"); E(f"v_mul_f32 v{208+2*w}, s77, v{208+2*w}")
for w in range(4): E(f"v_exp_f32 v{208+2*w}, v{208+2*w}")
E("s_nop 0")
E("v_mul_f32 v242, v208, v201")
E("v_pk_mul_f32 v[216:217], v[208:209], v[192:193] op_sel_hi:[0,1]")
for w in range(1, 4):
    E(f"v_fmac_f32 v242, v{208+2*w}, v{201+2*w}")
    E(f"v_pk_fma_f32 v[216:217], v[{208+2*w}:{209+2*w}], v[{192+2*w}:{193+2*w}], v[216:217] op_sel_hi:[0,1,1]")
E("v_mov_b32 v241, s97"); E("v_mov_b32 v243, s97")
E("v_mov_b32 v218, v217"); E("v_mov_b32 v217, s97"); E("v_mov_b32 v219, s97")
E("buffer_store_dwordx4 v[216:219], v146, s[40:43], s68 offen sc1")
E("buffer_store_dwordx4 v[240:243], v147, s[40:43], s70 offen sc1")
stamp(5)
E("s_cmp_lt_u32 s2, 28"); E("s_cbranch_scc1 ROLEC")
E("s_cmp_lt_u32 s2, 36"); E("s_cbranch_scc1 ROLED")
E("s_cmp_lt_u32 s2, 128"); E("s_cbranch_scc1 END")
E("s_sub_u32 s68, s2, 128"); E("s_lshr_b32 s68, s68, 2"); E("s_and_b32 s67, s2, 3")
E("v_lshrrev_b32 v5, 4, v0"); E("v_and_b32 v6, 15, v0")
E("v_lshlrev_b32 v148, 10, v5"); E("v_lshl_add_u32 v148, v6, 4, v148")
E("s_lshl_b32 s69, s68, 17"); E("s_lshl_b32 s70, s67, 8"); E("s_add_u32 s69, s69, s70")
for j in range(8):
    E(f"buffer_load_dwordx4 v[{88+4*j}:{91+4*j}], v148, s[28:31], s69 offen")
    if j < 7: E("s_add_u32 s69, s69, 16384")
E("v_and_b32 v144, 31, v1"); E("v_lshlrev_b32 v149, 4, v144"); E("v_lshlrev_b32 v144, 3, v144")
E("s_lshl_b32 s69, s68, 9"); E(f"s_add_u32 s69, s69, {APM}")
E("v_lshrrev_b32 v145, 7, v0"); E("v_and_b32 v146, 127, v0")
E("v_lshlrev_b32 v147, 14, v145"); E("v_lshl_add_u32 v147, v146, 3, v147")
for q in range(1, 4): E(f"v_add_u32 v{151+q}, {4096*q}, v147")
E("v_mov_b32 v151, v147")
E("s_lshl_b32 s70, s68, 15"); E(f"s_add_u32 s70, s70, {APO}")
gather(["buffer_load_dwordx4 v[156:159], v149, s[40:43], s69 offen sc1"], [157, 159])
lds_ = ["buffer_load_dwordx4 v[156:159], v149, s[40:43], s69 offen sc1"]
for s_ in range(16): lds_.append(f"buffer_load_dwordx2 v[{192+2*s_}:{193+2*s_}], v{151 + s_//4}, s[40:43], s70 offen offset:{1024*(s_%4)} sc1")
gather(lds_, [157, 159] + [193+2*s_ for s_ in range(16)])
stamp(6)
E("v_mov_b32 v160, v156"); E("v_mov_b32 v161, v158")
E("v_mov_b32 v162, v160"); wave_reduce("v_max_f32", 162)
E("v_sub_f32 v163, v160, v162"); E("v_mul_f32 v163, s77, v163"); E("v_exp_f32 v163, v163"); E("s_nop 0")
E("v_mul_f32 v162, v163, v161"); wave_reduce("v_add_f32", 162)
E("v_mul_f32 v162, 0.5, v162"); E("v_rcp_f32 v164, v162"); E("s_nop 0")
fdiv(165, 163, 162, 164, 166)
E("v_lshrrev_b32 v144, 1, v144"); E(f"ds_write_b32 v144, v165 offset:{QL}"); E("s_waitcnt lgkmcnt(0)")
E("v_lshlrev_b32 v144, 6, v145")
for q in range(4): E(f"ds_read_b128 v[{228+4*q}:{231+4*q}], v144 offset:{QL+16*q}")
E("s_waitcnt lgkmcnt(0)")
E("v_mul_f32 v168, v192, v228")
for s in range(1, 16): E(f"v_fmac_f32 v168, v{192+2*s}, v{228+s}")
E("v_lshlrev_b32 v144, 2, v0"); E(f"ds_write_b32 v144, v168 offset:{XN}")
bar()
E("v_lshlrev_b32 v144, 2, v5")
for j in range(8):
    E(f"ds_read_b32 v{176+2*j}, v144 offset:{XN+64*j}"); E(f"ds_read_b32 v{177+2*j}, v144 offset:{XN+512+64*j}")
for k in range(8): E(f"v_mov_b32 v{160+k}, 0")
E("s_waitcnt lgkmcnt(0)")
for j in range(8):
    E(f"v_add_f32 v{176+2*j}, v{176+2*j}, v{177+2*j}"); rbf(176+2*j)
for j in range(8):
    unpack8(168, 88+4*j)
    pkfma8(160, 176+2*j, 168)
E("v_lshlrev_b32 v144, 9, v5"); E("v_lshl_add_u32 v144, v6, 5, v144")
E(f"ds_write_b128 v144, v[160:163] offset:{SC}"); E(f"ds_write_b128 v144, v[164:167] offset:{SC+16}")
bar()
E("s_cmp_ge_u32 s60, 2"); E("s_cbranch_scc1 END")
E("v_lshlrev_b32 v144, 2, v0")
for r in range(16): E(f"ds_read_b32 v{176+r}, v144 offset:{SC+512*r}")
E("s_lshl_b32 s69, s68, 12"); E("s_lshl_b32 s70, s67, 10"); E("s_add_u32 s69, s69, s70"); E(f"s_add_u32 s69, s69, {OP}")
E("v_lshlrev_b32 v144, 3, v0")
E("s_waitcnt lgkmcnt(0)")
for r in range(1, 16): E(f"v_add_f32 v176, v176, v{176+r}")
E("v_mov_b32 v177, s97")
E("buffer_store_dwordx2 v[176:177], v144, s[40:43], s69 offen sc1")
stamp(7)
E("s_branch END")
L("ROLEC")
E("s_mov_b32 s69, 57344"); E("v_mul_lo_u32 v148, v5, s69"); E("v_lshl_add_u32 v148, v6, 4, v148")
E("s_lshl_b32 s69, s2, 7")
for i in range(16):
    E(f"buffer_load_dwordx4 v[{8+4*i}:{11+4*i}], v148, s[32:35], s69 offen")
    if i < 15: E("s_add_u32 s69, s69, 3584")
E("v_lshlrev_b32 v148, 14, v4"); E("v_lshl_add_u32 v148, v1, 4, v148")
E("s_lshl_b32 s69, s2, 16")
for i in range(16):
    E(f"buffer_load_dwordx4 v[{72+4*i}:{75+4*i}], v148, s[36:39], s69 offen offset:{1024*(i%4)}")
    if i % 4 == 3 and i < 15: E("s_add_u32 s69, s69, 4096")
E("v_lshlrev_b32 v148, 1, v1"); E("s_lshl_b32 s69, s2, 7")
E("buffer_load_ushort v140, v148, s[48:51], s69 offen")
E("v_lshlrev_b32 v148, 2, v0")
E("buffer_load_dword v142, v148, s[12:15], 0 offen")
E("v_lshlrev_b32 v145, 4, v0")
E("v_lshlrev_b32 v149, 9, v0"); E(f"s_mov_b32 s69, {OP}")
gather(["buffer_load_dwordx2 v[156:157], v149, s[40:43], s69 offen sc1"], [157])
E("s_barrier")
stamp(9)
lab[0] += 1; gn = lab[0]
E("s_mov_b32 s71, 0")
L(f"GL{gn}")
E("v_mov_b32 v146, 0"); E("v_mov_b32 v147, 0"); E("v_mov_b32 v250, 0")
E(f"s_mov_b32 s69, {OP}")
NR = 20
for r in range(NR):
    E(f"buffer_load_dwordx4 v[{160+4*r}:{163+4*r}], v145, s[40:43], s69 offen sc1"); E("s_add_u32 s69, s69, 4096")
for r in range(32):
    x = 160 + 4*(r % NR)
    E(f"s_waitcnt vmcnt({min(NR-1, 31-r)})")
    E(f"v_xor_b32 v251, s97, v{x+1}"); E(f"v_xor_b32 v252, s97, v{x+3}"); E("v_or3_b32 v250, v250, v251, v252")
    E(f"v_add_f32 v146, v146, v{x}"); E(f"v_add_f32 v147, v147, v{x+2}")
    if r + NR < 32:
        E(f"buffer_load_dwordx4 v[{x}:{x+3}], v145, s[40:43], s69 offen sc1"); E("s_add_u32 s69, s69, 4096")
E("v_cmp_eq_u32 vcc, 0, v250"); E("s_nop 4")
E("s_cmp_eq_u64 vcc, exec"); E(f"s_cbranch_scc1 GD{gn}")
E("s_add_u32 s71, s71, 1"); E("s_cmp_lt_u32 s71, 0x20000"); E(f"s_cbranch_scc1 GL{gn}")
L(f"GD{gn}")
stamp(10)
E("v_mov_b32 v192, v146"); E("v_mov_b32 v193, v147")
E("v_lshlrev_b32 v144, 3, v0")
rbf(192); rbf(193)
E("v_lshlrev_b32 v146, 16, v142"); E("v_and_b32 v147, 0xffff0000, v142")
E("v_add_f32 v192, v192, v146"); E("v_add_f32 v193, v193, v147"); rbf(192); rbf(193)
def block_sum(v, off):
    wave_reduce("v_add_f32", v)
    E("v_lshlrev_b32 v146, 2, v4"); E(f"ds_write_b32 v146, v{v} offset:{off}")
    bar()
    E("v_mov_b32 v146, 0"); E(f"ds_read_b128 v[148:151], v146 offset:{off}"); E("s_waitcnt lgkmcnt(0)")
    E(f"v_add_f32 v{v}, v148, v149"); E(f"v_add_f32 v{v}, v{v}, v150"); E(f"v_add_f32 v{v}, v{v}, v151")
E("v_add_f32 v194, v192, v193"); block_sum(194, QL)
E(f"v_mul_f32 v194, {INV512}, v194")
E("v_sub_f32 v196, v192, v194"); E("v_mul_f32 v195, v196, v196"); E("v_sub_f32 v196, v193, v194"); E("v_fmac_f32 v195, v196, v196")
block_sum(195, QL+16)
E(f"v_mul_f32 v195, {INV512}, v195"); rbf(194); rbf(195)
E(f"v_add_f32 v195, {EPS}, v195"); rbf(195); E("v_sqrt_f32 v195, v195"); E("s_nop 0"); rbf(195)
E("v_rcp_f32 v196, v195"); E("s_nop 0")
for i in range(2):
    E(f"v_sub_f32 v197, v{192+i}, v194"); rbf(197); fdiv(192+i, 197, 195, 196, 198); rbf(192+i)
E(f"ds_write_b64 v144, v[192:193] offset:{XN}")
bar()
E("v_lshlrev_b32 v144, 6, v5")
for q in range(4): E(f"ds_read_b128 v[{192+4*q}:{195+4*q}], v144 offset:{XN+16*q}")
for k in range(8): E(f"v_mov_b32 v{160+k}, 0")
E("s_waitcnt lgkmcnt(0)")
for i in range(16):
    unpack8(168, 8+4*i)
    pkfma8(160, 192+i, 168)
E("v_lshlrev_b32 v144, 8, v5"); E("v_lshl_add_u32 v144, v6, 5, v144")
E(f"ds_write_b128 v144, v[160:163] offset:{SC}"); E(f"ds_write_b128 v144, v[164:167] offset:{SC+16}")
bar()
E("v_lshlrev_b32 v144, 2, v1")
for r in range(32): E(f"ds_read_b32 v{192+r}, v144 offset:{SC+256*r}")
E("s_lshl_b32 s63, s60, 4")
for k in range(8): E(f"v_mov_b32 v{160+k}, 0")
E("s_waitcnt lgkmcnt(0)")
for r in range(1, 32): E(f"v_add_f32 v192, v192, v{192+r}")
E("v_mov_b32 v176, v192")
rbf(176); E("v_lshlrev_b32 v140, 16, v140"); E("v_add_f32 v176, v176, v140"); rbf(176)
E("v_mul_f32 v177, v176, v176"); E("v_mul_f32 v177, v177, v176"); E("s_mov_b32 s69, 0x3d372713"); E("v_fma_f32 v177, v177, s69, v176")
E("v_mul_f32 v177, 0x40135761, v177"); E("v_exp_f32 v177, v177"); E("s_nop 0"); E("v_add_f32 v177, 1.0, v177")
E("v_rcp_f32 v177, v177"); E("s_nop 0"); E("v_fma_f32 v177, v177, -2.0, 1.0"); E("v_add_f32 v177, 1.0, v177")
E("v_mul_f32 v177, v177, v176"); E("v_mul_f32 v177, 0.5, v177"); rbf(177)
E("s_nop 1")
for i in range(16):
    E(f"v_readlane_b32 s{64+i}, v177, s63")
    if i < 15: E("s_add_u32 s63, s63, 1")
E("s_nop 1")
for i in range(16):
    unpack8(168, 72+4*i)
    for k in range(8): E(f"v_fmac_f32 v{160+k}, s{64+i}, v{168+k}")
E("v_lshlrev_b32 v144, 11, v4"); E("v_lshl_add_u32 v144, v1, 5, v144")
E(f"ds_write_b128 v144, v[160:163] offset:{SC+8192}"); E(f"ds_write_b128 v144, v[164:167] offset:{SC+8192+16}")
bar()
E("v_lshlrev_b32 v144, 3, v0")
for r in range(4): E(f"ds_read_b64 v[{192+2*r}:{193+2*r}], v144 offset:{SC+8192+2048*r}")
E("s_lshl_b32 s69, s2, 12"); E(f"s_add_u32 s69, s69, {F2}")
E("s_waitcnt lgkmcnt(0)")
for r in range(1, 4): E(f"v_pk_add_f32 v[192:193], v[192:193], v[{192+2*r}:{193+2*r}]")
E("v_mov_b32 v194, v193"); E("v_mov_b32 v193, s97"); E("v_mov_b32 v195, s97")
E("buffer_store_dwordx4 v[192:195], v145, s[40:43], s69 offen sc1")
stamp(11)
E("s_branch END")
L("ROLED")
E("s_cmp_lg_u32 s60, 0"); E("s_cbranch_scc1 END")
E("s_sub_u32 s68, s2, 28")
E("v_lshlrev_b32 v148, 1, v1"); E("s_lshl_b32 s69, s68, 7")
E("buffer_load_ushort v141, v148, s[52:55], s69 offen")
E("buffer_load_ushort v140, v148, s[12:15], s69 offen")
E("v_lshlrev_b32 v144, 3, v1"); E("s_lshl_b32 s70, s68, 9")
lds_ = []
for k in range(32):
    lds_.append(f"s_add_u32 s69, s70, {OP + 4096*k}")
    lds_.append(f"buffer_load_dwordx2 v[{160+2*k}:{161+2*k}], v144, s[40:43], s69 offen sc1")
gather(lds_, [161+2*k for k in range(32)])
stamp(12)
for k in range(1, 32): E(f"v_add_f32 v160, v160, v{160+2*k}")
rbf(160); E("v_lshlrev_b32 v140, 16, v140"); E("v_add_f32 v248, v160, v140"); rbf(248)
lds_ = []
for k in range(28):
    lds_.append(f"s_add_u32 s69, s70, {F2 + 4096*k}")
    lds_.append(f"buffer_load_dwordx2 v[{192+2*k}:{193+2*k}], v144, s[40:43], s69 offen sc1")
gather(lds_, [193+2*k for k in range(28)])
for k in range(1, 28): E(f"v_add_f32 v192, v192, v{192+2*k}")
rbf(192); E("v_lshlrev_b32 v141, 16, v141"); E("v_add_f32 v192, v192, v141"); rbf(192)
E("v_add_f32 v192, v192, v248"); E("v_cvt_pk_bf16_f32 v192, v192, v192")
E("s_lshl_b32 s69, s68, 7")
E("buffer_store_short v192, v148, s[56:59], s69 offen")
stamp(13)
E("s_branch END")
L("MW")
E("s_cmp_lg_u32 s2, 0"); E("s_cbranch_scc1 NONW")
E("s_memrealtime s[94:95]"); E("s_waitcnt lgkmcnt(0)"); E("s_or_b32 s94, s94, 1")
E("v_mov_b32 v250, 0"); E("v_mov_b32 v251, s94"); E("buffer_store_dword v251, v250, s[44:47], 0 offen sc1")
L("NONW")
E("s_mov_b32 s71, 0"); E("v_mov_b32 v250, 0")
L("NL")
E("buffer_load_dword v251, v250, s[44:47], 0 offen sc1"); E("s_waitcnt vmcnt(0)")
E("v_readfirstlane_b32 s97, v251"); E("s_nop 3")
E("s_cmp_lg_u32 s97, 0"); E("s_cbranch_scc1 ND")
E("s_add_u32 s71, s71, 1"); E("s_cmp_lt_u32 s71, 0x40000"); E("s_cbranch_scc1 NL")
L("ND")
E(f"v_mov_b32 v144, {NON}"); E("v_mov_b32 v145, s97"); E("ds_write_b32 v144, v145")
E("v_lshlrev_b32 v144, 2, v1")
E("s_and_b32 s69, s2, 3"); E("s_lshl_b32 s69, s69, 15"); E("s_lshr_b32 s74, s2, 2"); E("s_lshl_b32 s74, s74, 9"); E("s_add_u32 s69, s69, s74")
E("v_lshlrev_b32 v146, 3, v1"); E("v_lshlrev_b32 v147, 4, v1")
bar()
for r in range(32): E(f"ds_read_b32 v{160+r}, v144 offset:{SC+256*r}")
E("s_waitcnt lgkmcnt(0)")
for r in range(1, 32): E(f"v_add_f32 v160, v160, v{160+r}")
E("v_mov_b32 v161, s97")
E("buffer_store_dwordx2 v[160:161], v146, s[40:43], s69 offen sc1")
stamp(2, 4)
E("s_lshl_b32 s69, s61, 12")
lds_ = []
for p in range(4):
    lds_.append(f"s_add_u32 s70, s69, {p*32768}")
    for j in range(4):
        r = 160 + 16*p + 4*j
        lds_.append(f"buffer_load_dwordx4 v[{r}:{r+3}], v147, s[40:43], s70 offen offset:{1024*j} sc1")
gather(lds_, [161+2*i for i in range(32)])
stamp(3, 4)
if STAMP:
    E("v_mov_b32 v254, s71"); E("v_add_u32 v254, 1000, v254"); E("s_lshl_b32 s96, s2, 6"); E(f"s_add_u32 s96, s96, {3145728 + 4*15}")
    E("v_mov_b32 v255, 0")
    E("buffer_store_dword v254, v255, s[40:43], s96 offen")
for j in range(4):
    for p in range(1, 4):
        E(f"v_add_f32 v{160+4*j}, v{160+4*j}, v{160+16*p+4*j}"); E(f"v_add_f32 v{162+4*j}, v{162+4*j}, v{162+16*p+4*j}")
    E(f"v_cvt_pk_bf16_f32 v{160+4*j}, v{160+4*j}, v{162+4*j}")
    E(f"ds_write_b32 v144, v{160+4*j} offset:{QL+256*j}")
bar()
L("END"); E("s_endpgm")

hdr = open(f"cdna_kernels/{NAME}.s.ref").read().split("; Override")[0]
res = [hdr.rstrip("\n"), f"; @launch grid=(256,1,1) block=(320,1,1) lds={LDSN}",
       '.amdgcn_target "amdgcn-amd-amdhsa--gfx950"', ".text"] + out
res.append(f""".section .rodata,"a"
.p2align 6
.amdhsa_kernel {n}
  .amdhsa_next_free_vgpr 256
  .amdhsa_next_free_sgpr 102
  .amdhsa_accum_offset 256
  .amdhsa_group_segment_fixed_size 0
  .amdhsa_kernarg_size 104
  .amdhsa_user_sgpr_count 2
  .amdhsa_user_sgpr_kernarg_segment_ptr 1
  .amdhsa_system_sgpr_workgroup_id_x 1
.end_amdhsa_kernel""")
path = sys.argv[1] if len(sys.argv) > 1 else f"cdna_kernels/{NAME}.s"
open(path, "w").write("\n".join(res) + "\n")
```

```python
import sys
NAME = "sequential_preLN__sliding_block_cached__dense_activation_gelu__decode"
out = []
def E(s): out.append("    " + s)
def L(s): out.append(s + ":")

Q   = 0
APO = 131072
APM = APO + 1048576
OP  = APM + 16384
F2  = OP + 131072
WSN = 1 << 22
LOG2E = 0x3fb8aa3b; SCALE = 0x3db504f3; EPS = 0x3727c5ac; INV512 = 0x3b000000
XN = 0; QL = 2048; NON = 3072; CNT = 3076; SCO = 4096; SC = 8192
R0 = SC; LR = SC + 32768
LDSN = LR + 512

STAMP = len(sys.argv) > 2 and sys.argv[2] == "1"
DEPTH = int(sys.argv[3]) if len(sys.argv) > 3 else 4

def srd(d, b, n):
    E(f"s_mov_b32 s{d}, s{b}"); E(f"s_and_b32 s{d+1}, s{b+1}, 0xffff")
    E(f"s_mov_b32 s{d+2}, {n}"); E(f"s_mov_b32 s{d+3}, 0x00020000")
def rbf(v):
    E(f"v_cvt_pk_bf16_f32 v{v}, v{v}, v{v}"); E(f"v_lshlrev_b32 v{v}, 16, v{v}")
def wave_reduce(op, v, st=90):
    for mode in ["quad_perm:[1,0,3,2]", "quad_perm:[2,3,0,1]", "row_half_mirror", "row_mirror"]:
        E("s_nop 1"); E(f"{op}_dpp v{v}, v{v}, v{v} {mode} row_mask:0xf bank_mask:0xf")
    E("s_nop 1")
    for i in range(4): E(f"v_readlane_b32 s{st+i}, v{v}, {16*i}")
    E("s_nop 1"); E(f"v_mov_b32 v{v}, s{st}")
    for i in range(1, 4): E(f"{op} v{v}, s{st+i}, v{v}")
def wave_reduce_multi(op, vs):
    for mode in ["quad_perm:[1,0,3,2]", "quad_perm:[2,3,0,1]", "row_half_mirror", "row_mirror"]:
        E("s_nop 1")
        for v in vs: E(f"{op}_dpp v{v}, v{v}, v{v} {mode} row_mask:0xf bank_mask:0xf")
    E("s_nop 1")
    for k, v in enumerate(vs):
        for i in range(4): E(f"v_readlane_b32 s{80+4*k+i}, v{v}, {16*i}")
    E("s_nop 1")
    for k, v in enumerate(vs):
        E(f"v_mov_b32 v{v}, s{80+4*k}")
        for i in range(1, 4): E(f"{op} v{v}, s{80+4*k+i}, v{v}")
def unpack8(dst, src):
    for i in range(4):
        E(f"v_lshlrev_b32 v{dst+2*i}, 16, v{src+i}"); E(f"v_and_b32 v{dst+2*i+1}, 0xffff0000, v{src+i}")
def pkfma8(acc, p, x):
    if p % 2 == 0: pp, sel = p, "op_sel_hi:[0,1,1]"
    else: pp, sel = p - 1, "op_sel:[1,0,0] op_sel_hi:[1,1,1]"
    for i in range(4):
        E(f"v_pk_fma_f32 v[{acc+2*i}:{acc+2*i+1}], v[{pp}:{pp+1}], v[{x+2*i}:{x+2*i+1}], v[{acc+2*i}:{acc+2*i+1}] {sel}")
def fdiv(dst, num, den, rcp, t):
    E(f"v_mul_f32 v{dst}, v{num}, v{rcp}"); E(f"v_fma_f32 v{t}, -v{dst}, v{den}, v{num}"); E(f"v_fma_f32 v{dst}, v{t}, v{rcp}, v{dst}")
def bar():
    E("s_waitcnt lgkmcnt(0)"); E("s_barrier")
lab = [0]
def stamp(k, w=0):
    if not STAMP: return
    lab[0] += 1; n = lab[0]
    E(f"s_cmp_lg_u32 s60, {w}"); E(f"s_cbranch_scc1 ST{n}")
    E("s_memrealtime s[94:95]"); E("s_waitcnt lgkmcnt(0)")
    E("v_mov_b32 v254, s94"); E("s_lshl_b32 s96, s2, 6"); E(f"s_add_u32 s96, s96, {3145728 + 4*k}")
    E("v_mov_b32 v255, 0")
    E("buffer_store_dword v254, v255, s[40:43], s96 offen")
    L(f"ST{n}")
def gather(loads, tags):
    lab[0] += 1; n = lab[0]
    E("s_mov_b32 s71, 0")
    L(f"GL{n}")
    for l in loads: E(l)
    E("s_waitcnt vmcnt(0)")
    E(f"v_xor_b32 v250, s97, v{tags[0]}")
    for t_ in tags[1:]:
        E(f"v_xor_b32 v251, s97, v{t_}"); E("v_or_b32 v250, v250, v251")
    E("v_cmp_eq_u32 vcc, 0, v250"); E("s_nop 4")
    E("s_cmp_eq_u64 vcc, exec"); E(f"s_cbranch_scc1 GD{n}")
    E("s_add_u32 s71, s71, 1"); E("s_cmp_lt_u32 s71, 0x20000"); E(f"s_cbranch_scc1 GL{n}")
    L(f"GD{n}")

n = NAME + "_kernel"
out.append(f".globl {n}"); out.append(".p2align 8"); out.append(f".type {n},@function"); L(n)
E("s_cmp_ge_u32 s2, 256"); E("s_cbranch_scc1 END")
E("s_load_dwordx16 s[64:79], s[0:1], 0")
E("s_load_dwordx8 s[80:87], s[0:1], 64")
E("s_load_dwordx2 s[88:89], s[0:1], 96")
E("v_and_b32 v1, 63, v0"); E("v_and_b32 v2, 15, v1"); E("v_lshrrev_b32 v3, 4, v1"); E("v_lshrrev_b32 v4, 6, v0")
E("v_lshrrev_b32 v5, 3, v0"); E("v_and_b32 v6, 7, v0"); E("v_and_b32 v7, 3, v1")
E("v_readfirstlane_b32 s60, v4")
E("s_lshr_b32 s61, s2, 5"); E("s_and_b32 s62, s2, 31")
E("s_waitcnt lgkmcnt(0)")
srd(12, 64, 1024); srd(16, 66, 0x8000000); srd(20, 68, 0x8000000); srd(24, 70, 512*4096*2); srd(28, 72, 4096*512*2)
srd(32, 76, 512*1792*2); srd(36, 80, 1792*512*2); srd(40, 88, WSN); srd(44, 86, 256); srd(48, 78, 3584); srd(52, 82, 1024); srd(56, 84, 1024)
E("s_cmp_eq_u32 s60, 4"); E("s_cbranch_scc1 MW")
stamp(0)
E("v_lshlrev_b32 v144, 4, v1")
E("buffer_load_dwordx4 v[156:159], v144, s[12:15], 0 offen")
E("v_lshlrev_b32 v145, 13, v5"); E("v_lshl_add_u32 v145, v6, 4, v145")
E("s_and_b32 s63, s2, 3"); E("s_lshl_b32 s63, s63, 20"); E("s_lshr_b32 s64, s2, 2"); E("s_lshl_b32 s64, s64, 7"); E("s_add_u32 s63, s63, s64")
for j in range(4):
    E(f"s_add_u32 s64, s63, {j*32*8192}")
    E(f"buffer_load_dwordx4 v[{8+4*j}:{11+4*j}], v145, s[24:27], s64 offen")
E("s_barrier")
E("s_lshl_b32 s98, s61, 24"); E("s_lshl_b32 s65, s62, 15"); E("s_add_u32 s98, s98, s65"); E(f"s_add_u32 s98, s98, {61440*256}")
E("v_lshlrev_b32 v136, 5, v4"); E("v_add_u32 v136, v136, v2"); E("v_lshlrev_b32 v136, 8, v136")
E("v_lshl_add_u32 v136, v3, 4, v136"); E("v_add_u32 v137, 4096, v136")
E("v_lshlrev_b32 v138, 5, v4"); E("v_lshl_add_u32 v138, v3, 2, v138"); E("v_lshlrev_b32 v138, 8, v138")
E("v_lshl_add_u32 v138, v2, 4, v138"); E("v_add_u32 v139, 4096, v138")
KL = []
for t in range(2):
    for b in range(4):
        r = 24 + 16*t + 4*b
        KL.append(f"buffer_load_dwordx4 v[{r}:{r+3}], v{136+t}, s[16:19], s98 offen offset:{64*b}")
VL = []
for i in range(8):
    r = 56 + 4*i
    VL.append(f"buffer_load_dwordx4 v[{r}:{r+3}], v{138 + i//4}, s[20:23], s98 offen offset:{256*(i%4)}")
E("s_waitcnt vmcnt(4)")
unpack8(160, 156)
t = 170
E(f"v_add_f32 v{t}, v160, v161")
for i in range(2, 8): E(f"v_add_f32 v{t}, v{t}, v{160+i}")
wave_reduce("v_add_f32", t)
E(f"v_mul_f32 v{t}, {INV512}, v{t}"); E(f"v_mov_b32 v{t+1}, 0")
for i in range(8):
    E(f"v_sub_f32 v{t+2}, v{160+i}, v{t}"); E(f"v_fmac_f32 v{t+1}, v{t+2}, v{t+2}")
wave_reduce("v_add_f32", t+1)
E(f"v_mul_f32 v{t+1}, {INV512}, v{t+1}")
rbf(t); rbf(t+1); E(f"v_add_f32 v{t+1}, {EPS}, v{t+1}"); rbf(t+1)
E(f"v_sqrt_f32 v{t+1}, v{t+1}"); E("s_nop 0"); rbf(t+1); E(f"v_rcp_f32 v{t+2}, v{t+1}"); E("s_nop 0")
for i in range(8):
    E(f"v_sub_f32 v{t+3}, v{160+i}, v{t}"); rbf(t+3); fdiv(160+i, t+3, t+1, t+2, t+4); rbf(160+i)
E("v_lshlrev_b32 v144, 5, v1")
E(f"ds_write_b128 v144, v[160:163] offset:{XN}"); E(f"ds_write_b128 v144, v[164:167] offset:{XN+16}")
E("s_waitcnt lgkmcnt(0)")
E("s_and_b32 s69, s2, 3"); E("s_lshl_b32 s69, s69, 7"); E("v_add_u32 v144, s69, v5"); E("v_lshlrev_b32 v144, 2, v144")
for j in range(4): E(f"ds_read_b32 v{176+2*j}, v144 offset:{XN+128*j}")
for k in range(8): E(f"v_mov_b32 v{160+k}, 0")
E("s_waitcnt vmcnt(0) lgkmcnt(0)")
stamp(1)
for l in KL[:DEPTH]: E(l)
for j in range(4):
    unpack8(168, 8+4*j)
    pkfma8(160, 176+2*j, 168)
E("v_lshlrev_b32 v144, 8, v5"); E("v_lshl_add_u32 v144, v6, 5, v144")
E(f"ds_write_b128 v144, v[160:163] offset:{SC}"); E(f"ds_write_b128 v144, v[164:167] offset:{SC+16}")
E(f"v_mov_b32 v144, {CNT}"); E("v_mov_b32 v145, 1")
E("s_waitcnt lgkmcnt(0)"); E("ds_add_u32 v144, v145")
seq = KL[DEPTH:] + VL[:DEPTH]
for l in seq:
    E(f"s_waitcnt vmcnt({DEPTH-1})"); E(l)
for l in VL[DEPTH:]: E(l)
E("s_barrier")
stamp(4)
E(f"v_mov_b32 v144, {NON}"); E("ds_read_b32 v145, v144")
E("v_lshlrev_b32 v144, 8, v7"); E("v_lshl_add_u32 v144, v3, 4, v144")
for b in range(4): E(f"ds_read_b128 v[{160+4*b}:{163+4*b}], v144 offset:{QL+64*b}")
for k in range(8): E(f"v_mov_b32 v{176+k}, 0")
E("s_waitcnt vmcnt(8) lgkmcnt(0)")
E("v_readfirstlane_b32 s97, v145")
for tt in range(2):
    for b in range(4):
        r = 24 + 16*tt + 4*b
        E(f"v_mfma_f32_16x16x32_bf16 v[{176+4*tt}:{179+4*tt}], v[{r}:{r+3}], v[{160+4*b}:{163+4*b}], v[{176+4*tt}:{179+4*tt}]")
E(f"s_mov_b32 s76, {SCALE}"); E(f"s_mov_b32 s77, {LOG2E}")
for k in range(32): E(f"v_mov_b32 v{224+k}, 0")
E("s_nop 1")
for k in range(8):
    rbf(176+k); E(f"v_mul_f32 v{176+k}, s76, v{176+k}"); rbf(176+k)
E("v_max3_f32 v184, v176, v177, v178"); E("v_max3_f32 v185, v179, v180, v181"); E("v_max3_f32 v184, v184, v182, v183"); E("v_max_f32 v184, v184, v185")
def xrow(op, v, t):
    E(f"v_mov_b32 v{t}, v{v}"); E("s_nop 1"); E(f"v_permlane32_swap_b32 v{v}, v{t}"); E("s_nop 1"); E(f"{op} v{v}, v{v}, v{t}")
    E(f"v_mov_b32 v{t}, v{v}"); E("s_nop 1"); E(f"v_permlane16_swap_b32 v{v}, v{t}"); E("s_nop 1"); E(f"{op} v{v}, v{v}, v{t}")
xrow("v_max_f32", 184, 185)
E("v_mul_f32 v185, s77, v184")
for k in range(8): E(f"v_fma_f32 v{176+k}, v{176+k}, s77, -v185")
for k in range(8): E(f"v_exp_f32 v{176+k}, v{176+k}")
E("s_nop 0")
E("v_add_f32 v185, v176, v177")
for k in range(2, 8): E(f"v_add_f32 v185, v185, v{176+k}")
for j in range(8):
    for h in range(4): E(f"v_mov_b32_dpp v{192+4*j+h}, v{176+j} quad_perm:[{h},{h},{h},{h}] row_mask:0xf bank_mask:0xf")
xrow("v_add_f32", 185, 186)
for i in range(8):
    E(f"s_waitcnt vmcnt({7-i})")
    unpack8(160, 56+4*i)
    for h in range(4): pkfma8(224+8*h, 192+4*i+h, 160)
E("s_nop 1")
for k in range(8):
    E(f"v_permlane32_swap_b32 v{224+k}, v{240+k}"); E(f"v_permlane32_swap_b32 v{232+k}, v{248+k}")
E("s_nop 1")
for k in range(8):
    E(f"v_add_f32 v{224+k}, v{224+k}, v{240+k}"); E(f"v_add_f32 v{232+k}, v{232+k}, v{248+k}")
E("s_nop 1")
for k in range(8): E(f"v_permlane16_swap_b32 v{224+k}, v{232+k}")
E("s_nop 1")
for k in range(8): E(f"v_add_f32 v{224+k}, v{224+k}, v{232+k}")
E("v_lshlrev_b32 v144, 11, v4"); E("v_lshl_add_u32 v144, v1, 5, v144")
E(f"ds_write_b128 v144, v[224:227] offset:{R0}"); E(f"ds_write_b128 v144, v[228:231] offset:{R0+16}")
E("v_lshlrev_b32 v144, 5, v4"); E("v_lshl_add_u32 v144, v7, 3, v144")
E(f"ds_write_b64 v144, v[184:185] offset:{LR}")
bar()
E("v_lshlrev_b32 v144, 9, v4"); E("v_lshl_add_u32 v144, v1, 3, v144")
for w in range(4): E(f"ds_read_b64 v[{192+2*w}:{193+2*w}], v144 offset:{R0+2048*w}")
E("v_lshlrev_b32 v145, 3, v4")
for w in range(4): E(f"ds_read_b64 v[{200+2*w}:{201+2*w}], v145 offset:{LR+32*w}")
E("v_lshlrev_b32 v146, 15, v4"); E("v_lshl_add_u32 v146, v1, 4, v146")
E("s_lshl_b32 s68, s61, 17"); E("s_lshl_b32 s69, s62, 10"); E("s_add_u32 s68, s68, s69"); E(f"s_add_u32 s68, s68, {APO}")
E("v_lshlrev_b32 v147, 9, v4")
E("s_lshl_b32 s70, s61, 11"); E("s_lshl_b32 s69, s62, 4"); E("s_add_u32 s70, s70, s69"); E(f"s_add_u32 s70, s70, {APM}")
E("s_waitcnt lgkmcnt(0)")
E("v_max3_f32 v240, v200, v202, v204"); E("v_max_f32 v240, v240, v206")
for w in range(4):
    E(f"v_sub_f32 v{208+2*w}, v{200+2*w}, v240"); E(f"v_mul_f32 v{208+2*w}, s77, v{208+2*w}")
for w in range(4): E(f"v_exp_f32 v{208+2*w}, v{208+2*w}")
E("s_nop 0")
E("v_mul_f32 v242, v208, v201")
E("v_pk_mul_f32 v[216:217], v[208:209], v[192:193] op_sel_hi:[0,1]")
for w in range(1, 4):
    E(f"v_fmac_f32 v242, v{208+2*w}, v{201+2*w}")
    E(f"v_pk_fma_f32 v[216:217], v[{208+2*w}:{209+2*w}], v[{192+2*w}:{193+2*w}], v[216:217] op_sel_hi:[0,1,1]")
E("v_mov_b32 v241, s97"); E("v_mov_b32 v243, s97")
E("v_mov_b32 v218, v217"); E("v_mov_b32 v217, s97"); E("v_mov_b32 v219, s97")
E("buffer_store_dwordx4 v[216:219], v146, s[40:43], s68 offen sc1")
E("buffer_store_dwordx4 v[240:243], v147, s[40:43], s70 offen sc1")
stamp(5)
E("s_cmp_lt_u32 s2, 28"); E("s_cbranch_scc1 ROLEC")
E("s_cmp_lt_u32 s2, 36"); E("s_cbranch_scc1 ROLED")
E("s_cmp_lt_u32 s2, 128"); E("s_cbranch_scc1 END")
E("s_sub_u32 s68, s2, 128"); E("s_lshr_b32 s68, s68, 2"); E("s_and_b32 s67, s2, 3")
E("v_lshrrev_b32 v5, 4, v0"); E("v_and_b32 v6, 15, v0")
E("v_lshlrev_b32 v148, 10, v5"); E("v_lshl_add_u32 v148, v6, 4, v148")
E("s_lshl_b32 s69, s68, 17"); E("s_lshl_b32 s70, s67, 8"); E("s_add_u32 s69, s69, s70")
for j in range(8):
    E(f"buffer_load_dwordx4 v[{88+4*j}:{91+4*j}], v148, s[28:31], s69 offen")
    if j < 7: E("s_add_u32 s69, s69, 16384")
E("v_and_b32 v144, 31, v1"); E("v_lshlrev_b32 v149, 4, v144"); E("v_lshlrev_b32 v144, 3, v144")
E("s_lshl_b32 s69, s68, 9"); E(f"s_add_u32 s69, s69, {APM}")
E("v_lshrrev_b32 v145, 7, v0"); E("v_and_b32 v146, 127, v0")
E("v_lshlrev_b32 v147, 14, v145"); E("v_lshl_add_u32 v147, v146, 3, v147")
for q in range(1, 4): E(f"v_add_u32 v{151+q}, {4096*q}, v147")
E("v_mov_b32 v151, v147")
E("s_lshl_b32 s70, s68, 15"); E(f"s_add_u32 s70, s70, {APO}")
gather(["buffer_load_dwordx4 v[156:159], v149, s[40:43], s69 offen sc1"], [157, 159])
lds_ = ["buffer_load_dwordx4 v[156:159], v149, s[40:43], s69 offen sc1"]
for s_ in range(16): lds_.append(f"buffer_load_dwordx2 v[{192+2*s_}:{193+2*s_}], v{151 + s_//4}, s[40:43], s70 offen offset:{1024*(s_%4)} sc1")
gather(lds_, [157, 159] + [193+2*s_ for s_ in range(16)])
stamp(6)
E("v_mov_b32 v160, v156"); E("v_mov_b32 v161, v158")
E("v_mov_b32 v162, v160"); wave_reduce("v_max_f32", 162)
E("v_sub_f32 v163, v160, v162"); E("v_mul_f32 v163, s77, v163"); E("v_exp_f32 v163, v163"); E("s_nop 0")
E("v_mul_f32 v162, v163, v161"); wave_reduce("v_add_f32", 162)
E("v_mul_f32 v162, 0.5, v162"); E("v_rcp_f32 v164, v162"); E("s_nop 0")
fdiv(165, 163, 162, 164, 166)
E("v_lshrrev_b32 v144, 1, v144"); E(f"ds_write_b32 v144, v165 offset:{QL}"); E("s_waitcnt lgkmcnt(0)")
E("v_lshlrev_b32 v144, 6, v145")
for q in range(4): E(f"ds_read_b128 v[{228+4*q}:{231+4*q}], v144 offset:{QL+16*q}")
E("s_waitcnt lgkmcnt(0)")
E("v_mul_f32 v168, v192, v228")
for s in range(1, 16): E(f"v_fmac_f32 v168, v{192+2*s}, v{228+s}")
E("v_lshlrev_b32 v144, 2, v0"); E(f"ds_write_b32 v144, v168 offset:{XN}")
bar()
E("v_lshlrev_b32 v144, 2, v5")
for j in range(8):
    E(f"ds_read_b32 v{176+2*j}, v144 offset:{XN+64*j}"); E(f"ds_read_b32 v{177+2*j}, v144 offset:{XN+512+64*j}")
for k in range(8): E(f"v_mov_b32 v{160+k}, 0")
E("s_waitcnt lgkmcnt(0)")
for j in range(8):
    E(f"v_add_f32 v{176+2*j}, v{176+2*j}, v{177+2*j}"); rbf(176+2*j)
for j in range(8):
    unpack8(168, 88+4*j)
    pkfma8(160, 176+2*j, 168)
E("v_lshlrev_b32 v144, 9, v5"); E("v_lshl_add_u32 v144, v6, 5, v144")
E(f"ds_write_b128 v144, v[160:163] offset:{SC}"); E(f"ds_write_b128 v144, v[164:167] offset:{SC+16}")
bar()
E("s_cmp_ge_u32 s60, 2"); E("s_cbranch_scc1 END")
E("v_lshlrev_b32 v144, 2, v0")
for r in range(16): E(f"ds_read_b32 v{176+r}, v144 offset:{SC+512*r}")
E("s_lshl_b32 s69, s68, 12"); E("s_lshl_b32 s70, s67, 10"); E("s_add_u32 s69, s69, s70"); E(f"s_add_u32 s69, s69, {OP}")
E("v_lshlrev_b32 v144, 3, v0")
E("s_waitcnt lgkmcnt(0)")
for r in range(1, 16): E(f"v_add_f32 v176, v176, v{176+r}")
E("v_mov_b32 v177, s97")
E("buffer_store_dwordx2 v[176:177], v144, s[40:43], s69 offen sc1")
stamp(7)
E("s_branch END")
L("ROLEC")
E("s_mov_b32 s69, 57344"); E("v_mul_lo_u32 v148, v5, s69"); E("v_lshl_add_u32 v148, v6, 4, v148")
E("s_lshl_b32 s69, s2, 7")
for i in range(16):
    E(f"buffer_load_dwordx4 v[{8+4*i}:{11+4*i}], v148, s[32:35], s69 offen")
    if i < 15: E("s_add_u32 s69, s69, 3584")
E("v_lshlrev_b32 v148, 14, v4"); E("v_lshl_add_u32 v148, v1, 4, v148")
E("s_lshl_b32 s69, s2, 16")
for i in range(16):
    E(f"buffer_load_dwordx4 v[{72+4*i}:{75+4*i}], v148, s[36:39], s69 offen offset:{1024*(i%4)}")
    if i % 4 == 3 and i < 15: E("s_add_u32 s69, s69, 4096")
E("v_lshlrev_b32 v148, 1, v1"); E("s_lshl_b32 s69, s2, 7")
E("buffer_load_ushort v140, v148, s[48:51], s69 offen")
E("v_lshlrev_b32 v148, 2, v0")
E("buffer_load_dword v142, v148, s[12:15], 0 offen")
E("v_lshlrev_b32 v145, 4, v0")
E("v_lshlrev_b32 v149, 9, v0"); E(f"s_mov_b32 s69, {OP}")
gather(["buffer_load_dwordx2 v[156:157], v149, s[40:43], s69 offen sc1"], [157])
E("s_barrier")
stamp(9)
lab[0] += 1; gn = lab[0]
E("s_mov_b32 s71, 0")
L(f"GL{gn}")
E("v_mov_b32 v146, 0"); E("v_mov_b32 v147, 0"); E("v_mov_b32 v250, 0")
E(f"s_mov_b32 s69, {OP}")
NR = 20
for r in range(NR):
    E(f"buffer_load_dwordx4 v[{160+4*r}:{163+4*r}], v145, s[40:43], s69 offen sc1"); E("s_add_u32 s69, s69, 4096")
for r in range(32):
    x = 160 + 4*(r % NR)
    E(f"s_waitcnt vmcnt({min(NR-1, 31-r)})")
    E(f"v_xor_b32 v251, s97, v{x+1}"); E(f"v_xor_b32 v252, s97, v{x+3}"); E("v_or3_b32 v250, v250, v251, v252")
    E(f"v_add_f32 v146, v146, v{x}"); E(f"v_add_f32 v147, v147, v{x+2}")
    if r + NR < 32:
        E(f"buffer_load_dwordx4 v[{x}:{x+3}], v145, s[40:43], s69 offen sc1"); E("s_add_u32 s69, s69, 4096")
E("v_cmp_eq_u32 vcc, 0, v250"); E("s_nop 4")
E("s_cmp_eq_u64 vcc, exec"); E(f"s_cbranch_scc1 GD{gn}")
E("s_add_u32 s71, s71, 1"); E("s_cmp_lt_u32 s71, 0x20000"); E(f"s_cbranch_scc1 GL{gn}")
L(f"GD{gn}")
stamp(10)
E("v_mov_b32 v192, v146"); E("v_mov_b32 v193, v147")
E("v_lshlrev_b32 v144, 3, v0")
rbf(192); rbf(193)
E("v_lshlrev_b32 v146, 16, v142"); E("v_and_b32 v147, 0xffff0000, v142")
E("v_add_f32 v192, v192, v146"); E("v_add_f32 v193, v193, v147"); rbf(192); rbf(193)
def block_sum(v, off):
    wave_reduce("v_add_f32", v)
    E("v_lshlrev_b32 v146, 2, v4"); E(f"ds_write_b32 v146, v{v} offset:{off}")
    bar()
    E("v_mov_b32 v146, 0"); E(f"ds_read_b128 v[148:151], v146 offset:{off}"); E("s_waitcnt lgkmcnt(0)")
    E(f"v_add_f32 v{v}, v148, v149"); E(f"v_add_f32 v{v}, v{v}, v150"); E(f"v_add_f32 v{v}, v{v}, v151")
E("v_add_f32 v194, v192, v193"); block_sum(194, QL)
E(f"v_mul_f32 v194, {INV512}, v194")
E("v_sub_f32 v196, v192, v194"); E("v_mul_f32 v195, v196, v196"); E("v_sub_f32 v196, v193, v194"); E("v_fmac_f32 v195, v196, v196")
block_sum(195, QL+16)
E(f"v_mul_f32 v195, {INV512}, v195"); rbf(194); rbf(195)
E(f"v_add_f32 v195, {EPS}, v195"); rbf(195); E("v_sqrt_f32 v195, v195"); E("s_nop 0"); rbf(195)
E("v_rcp_f32 v196, v195"); E("s_nop 0")
for i in range(2):
    E(f"v_sub_f32 v197, v{192+i}, v194"); rbf(197); fdiv(192+i, 197, 195, 196, 198); rbf(192+i)
E(f"ds_write_b64 v144, v[192:193] offset:{XN}")
bar()
E("v_lshlrev_b32 v144, 6, v5")
for q in range(4): E(f"ds_read_b128 v[{192+4*q}:{195+4*q}], v144 offset:{XN+16*q}")
for k in range(8): E(f"v_mov_b32 v{160+k}, 0")
E("s_waitcnt lgkmcnt(0)")
for i in range(16):
    unpack8(168, 8+4*i)
    pkfma8(160, 192+i, 168)
E("v_lshlrev_b32 v144, 8, v5"); E("v_lshl_add_u32 v144, v6, 5, v144")
E(f"ds_write_b128 v144, v[160:163] offset:{SC}"); E(f"ds_write_b128 v144, v[164:167] offset:{SC+16}")
bar()
E("v_lshlrev_b32 v144, 2, v1")
for r in range(32): E(f"ds_read_b32 v{192+r}, v144 offset:{SC+256*r}")
E("s_lshl_b32 s63, s60, 4")
for k in range(8): E(f"v_mov_b32 v{160+k}, 0")
E("s_waitcnt lgkmcnt(0)")
for r in range(1, 32): E(f"v_add_f32 v192, v192, v{192+r}")
E("v_mov_b32 v176, v192")
rbf(176); E("v_lshlrev_b32 v140, 16, v140"); E("v_add_f32 v176, v176, v140"); rbf(176)
E("v_mul_f32 v177, v176, v176"); E("v_mul_f32 v177, v177, v176"); E("s_mov_b32 s69, 0x3d372713"); E("v_fma_f32 v177, v177, s69, v176")
E("v_mul_f32 v177, 0x40135761, v177"); E("v_exp_f32 v177, v177"); E("s_nop 0"); E("v_add_f32 v177, 1.0, v177")
E("v_rcp_f32 v177, v177"); E("s_nop 0"); E("v_fma_f32 v177, v177, -2.0, 1.0"); E("v_add_f32 v177, 1.0, v177")
E("v_mul_f32 v177, v177, v176"); E("v_mul_f32 v177, 0.5, v177"); rbf(177)
E("s_nop 1")
for i in range(16):
    E(f"v_readlane_b32 s{64+i}, v177, s63")
    if i < 15: E("s_add_u32 s63, s63, 1")
E("s_nop 1")
for i in range(16):
    unpack8(168, 72+4*i)
    for k in range(8): E(f"v_fmac_f32 v{160+k}, s{64+i}, v{168+k}")
E("v_lshlrev_b32 v144, 11, v4"); E("v_lshl_add_u32 v144, v1, 5, v144")
E(f"ds_write_b128 v144, v[160:163] offset:{SC+8192}"); E(f"ds_write_b128 v144, v[164:167] offset:{SC+8192+16}")
bar()
E("v_lshlrev_b32 v144, 3, v0")
for r in range(4): E(f"ds_read_b64 v[{192+2*r}:{193+2*r}], v144 offset:{SC+8192+2048*r}")
E("s_lshl_b32 s69, s2, 12"); E(f"s_add_u32 s69, s69, {F2}")
E("s_waitcnt lgkmcnt(0)")
for r in range(1, 4): E(f"v_pk_add_f32 v[192:193], v[192:193], v[{192+2*r}:{193+2*r}]")
E("v_mov_b32 v194, v193"); E("v_mov_b32 v193, s97"); E("v_mov_b32 v195, s97")
E("buffer_store_dwordx4 v[192:195], v145, s[40:43], s69 offen sc1")
stamp(11)
E("s_branch END")
L("ROLED")
E("s_cmp_lg_u32 s60, 0"); E("s_cbranch_scc1 END")
E("s_sub_u32 s68, s2, 28")
E("v_lshlrev_b32 v148, 1, v1"); E("s_lshl_b32 s69, s68, 7")
E("buffer_load_ushort v141, v148, s[52:55], s69 offen")
E("buffer_load_ushort v140, v148, s[12:15], s69 offen")
E("v_lshlrev_b32 v144, 3, v1"); E("s_lshl_b32 s70, s68, 9")
lds_ = []
for k in range(32):
    lds_.append(f"s_add_u32 s69, s70, {OP + 4096*k}")
    lds_.append(f"buffer_load_dwordx2 v[{160+2*k}:{161+2*k}], v144, s[40:43], s69 offen sc1")
gather(lds_, [161+2*k for k in range(32)])
stamp(12)
for k in range(1, 32): E(f"v_add_f32 v160, v160, v{160+2*k}")
rbf(160); E("v_lshlrev_b32 v140, 16, v140"); E("v_add_f32 v248, v160, v140"); rbf(248)
lds_ = []
for k in range(28):
    lds_.append(f"s_add_u32 s69, s70, {F2 + 4096*k}")
    lds_.append(f"buffer_load_dwordx2 v[{192+2*k}:{193+2*k}], v144, s[40:43], s69 offen sc1")
gather(lds_, [193+2*k for k in range(28)])
for k in range(1, 28): E(f"v_add_f32 v192, v192, v{192+2*k}")
rbf(192); E("v_lshlrev_b32 v141, 16, v141"); E("v_add_f32 v192, v192, v141"); rbf(192)
E("v_add_f32 v192, v192, v248"); E("v_cvt_pk_bf16_f32 v192, v192, v192")
E("s_lshl_b32 s69, s68, 7")
E("buffer_store_short v192, v148, s[56:59], s69 offen")
stamp(13)
E("s_branch END")
L("MW")
E(f"v_mov_b32 v144, {CNT}"); E("v_mov_b32 v145, 0"); E("ds_write_b32 v144, v145")
bar()
E("s_cmp_lg_u32 s2, 0"); E("s_cbranch_scc1 NONW")
E("s_memrealtime s[94:95]"); E("s_waitcnt lgkmcnt(0)"); E("s_or_b32 s94, s94, 1")
E("v_mov_b32 v250, 0"); E("v_mov_b32 v251, s94"); E("buffer_store_dword v251, v250, s[44:47], 0 offen sc1")
L("NONW")
E("s_mov_b32 s71, 0"); E("v_mov_b32 v250, 0")
L("NL")
E("buffer_load_dword v251, v250, s[44:47], 0 offen sc1"); E("s_waitcnt vmcnt(0)")
E("v_readfirstlane_b32 s97, v251"); E("s_nop 3")
E("s_cmp_lg_u32 s97, 0"); E("s_cbranch_scc1 ND")
E("s_add_u32 s71, s71, 1"); E("s_cmp_lt_u32 s71, 0x40000"); E("s_cbranch_scc1 NL")
L("ND")
E(f"v_mov_b32 v144, {NON}"); E("v_mov_b32 v145, s97"); E("ds_write_b32 v144, v145")
E("v_lshlrev_b32 v144, 2, v1")
E("s_and_b32 s69, s2, 3"); E("s_lshl_b32 s69, s69, 15"); E("s_lshr_b32 s74, s2, 2"); E("s_lshl_b32 s74, s74, 9"); E("s_add_u32 s69, s69, s74")
E("v_lshlrev_b32 v146, 3, v1"); E("v_lshlrev_b32 v147, 4, v1")
E(f"v_mov_b32 v148, {CNT}"); E("s_mov_b32 s71, 0")
L("CL")
E("ds_read_b32 v149, v148"); E("s_waitcnt lgkmcnt(0)")
E("v_readfirstlane_b32 s72, v149"); E("s_nop 3")
E("s_cmp_eq_u32 s72, 256"); E("s_cbranch_scc1 CD")
E("s_add_u32 s71, s71, 1"); E("s_cmp_lt_u32 s71, 0x100000"); E("s_cbranch_scc1 CL")
L("CD")
for r in range(32): E(f"ds_read_b32 v{160+r}, v144 offset:{SC+256*r}")
E("s_waitcnt lgkmcnt(0)")
for r in range(1, 32): E(f"v_add_f32 v160, v160, v{160+r}")
E("v_mov_b32 v161, s97")
E("buffer_store_dwordx2 v[160:161], v146, s[40:43], s69 offen sc1")
stamp(2, 4)
E("s_lshl_b32 s69, s61, 12")
lds_ = []
for p in range(4):
    lds_.append(f"s_add_u32 s70, s69, {p*32768}")
    for j in range(4):
        r = 160 + 16*p + 4*j
        lds_.append(f"buffer_load_dwordx4 v[{r}:{r+3}], v147, s[40:43], s70 offen offset:{1024*j} sc1")
gather(lds_, [161+2*i for i in range(32)])
stamp(3, 4)
if STAMP:
    E("v_mov_b32 v254, s71"); E("v_add_u32 v254, 1000, v254"); E("s_lshl_b32 s96, s2, 6"); E(f"s_add_u32 s96, s96, {3145728 + 4*15}")
    E("v_mov_b32 v255, 0")
    E("buffer_store_dword v254, v255, s[40:43], s96 offen")
for j in range(4):
    for p in range(1, 4):
        E(f"v_add_f32 v{160+4*j}, v{160+4*j}, v{160+16*p+4*j}"); E(f"v_add_f32 v{162+4*j}, v{162+4*j}, v{162+16*p+4*j}")
    E(f"v_cvt_pk_bf16_f32 v{160+4*j}, v{160+4*j}, v{162+4*j}")
    E(f"ds_write_b32 v144, v{160+4*j} offset:{QL+256*j}")
bar()
L("END"); E("s_endpgm")

hdr = open(f"cdna_kernels/{NAME}.s.ref").read().split("; Override")[0]
res = [hdr.rstrip("\n"), f"; @launch grid=(256,1,1) block=(320,1,1) lds={LDSN}",
       '.amdgcn_target "amdgcn-amd-amdhsa--gfx950"', ".text"] + out
res.append(f""".section .rodata,"a"
.p2align 6
.amdhsa_kernel {n}
  .amdhsa_next_free_vgpr 256
  .amdhsa_next_free_sgpr 102
  .amdhsa_accum_offset 256
  .amdhsa_group_segment_fixed_size 0
  .amdhsa_kernarg_size 104
  .amdhsa_user_sgpr_count 2
  .amdhsa_user_sgpr_kernarg_segment_ptr 1
  .amdhsa_system_sgpr_workgroup_id_x 1
.end_amdhsa_kernel""")
path = sys.argv[1] if len(sys.argv) > 1 else f"cdna_kernels/{NAME}.s"
open(path, "w").write("\n".join(res) + "\n")
```

```python
import sys
NAME = "sequential_preLN__sliding_block_cached__dense_activation_gelu__decode"
out = []
def E(s): out.append("    " + s)
def L(s): out.append(s + ":")

Q   = 0
APO = 131072
APM = APO + 1048576
OP  = APM + 16384
F2  = OP + 131072
WSN = 1 << 22
LOG2E = 0x3fb8aa3b; SCALE = 0x3db504f3; EPS = 0x3727c5ac; INV512 = 0x3b000000
XN = 0; QL = 2048; NON = 3072; CNT = 3076; SCO = 4096; SC = 8192
R0 = SC; LR = SC + 32768
LDSN = LR + 512

STAMP = len(sys.argv) > 2 and sys.argv[2] == "1"
DEPTH = int(sys.argv[3]) if len(sys.argv) > 3 else 4

def srd(d, b, n):
    E(f"s_mov_b32 s{d}, s{b}"); E(f"s_and_b32 s{d+1}, s{b+1}, 0xffff")
    E(f"s_mov_b32 s{d+2}, {n}"); E(f"s_mov_b32 s{d+3}, 0x00020000")
def rbf(v):
    E(f"v_cvt_pk_bf16_f32 v{v}, v{v}, v{v}"); E(f"v_lshlrev_b32 v{v}, 16, v{v}")
def wave_reduce(op, v, st=90):
    for mode in ["quad_perm:[1,0,3,2]", "quad_perm:[2,3,0,1]", "row_half_mirror", "row_mirror"]:
        E("s_nop 1"); E(f"{op}_dpp v{v}, v{v}, v{v} {mode} row_mask:0xf bank_mask:0xf")
    E("s_nop 1")
    for i in range(4): E(f"v_readlane_b32 s{st+i}, v{v}, {16*i}")
    E("s_nop 1"); E(f"v_mov_b32 v{v}, s{st}")
    for i in range(1, 4): E(f"{op} v{v}, s{st+i}, v{v}")
def wave_reduce_multi(op, vs):
    for mode in ["quad_perm:[1,0,3,2]", "quad_perm:[2,3,0,1]", "row_half_mirror", "row_mirror"]:
        E("s_nop 1")
        for v in vs: E(f"{op}_dpp v{v}, v{v}, v{v} {mode} row_mask:0xf bank_mask:0xf")
    E("s_nop 1")
    for k, v in enumerate(vs):
        for i in range(4): E(f"v_readlane_b32 s{80+4*k+i}, v{v}, {16*i}")
    E("s_nop 1")
    for k, v in enumerate(vs):
        E(f"v_mov_b32 v{v}, s{80+4*k}")
        for i in range(1, 4): E(f"{op} v{v}, s{80+4*k+i}, v{v}")
def unpack8(dst, src):
    for i in range(4):
        E(f"v_lshlrev_b32 v{dst+2*i}, 16, v{src+i}"); E(f"v_and_b32 v{dst+2*i+1}, 0xffff0000, v{src+i}")
def pkfma8(acc, p, x):
    if p % 2 == 0: pp, sel = p, "op_sel_hi:[0,1,1]"
    else: pp, sel = p - 1, "op_sel:[1,0,0] op_sel_hi:[1,1,1]"
    for i in range(4):
        E(f"v_pk_fma_f32 v[{acc+2*i}:{acc+2*i+1}], v[{pp}:{pp+1}], v[{x+2*i}:{x+2*i+1}], v[{acc+2*i}:{acc+2*i+1}] {sel}")
def fdiv(dst, num, den, rcp, t):
    E(f"v_mul_f32 v{dst}, v{num}, v{rcp}"); E(f"v_fma_f32 v{t}, -v{dst}, v{den}, v{num}"); E(f"v_fma_f32 v{dst}, v{t}, v{rcp}, v{dst}")
def bar():
    E("s_waitcnt lgkmcnt(0)"); E("s_barrier")
lab = [0]
def stamp(k, w=0):
    if not STAMP: return
    lab[0] += 1; n = lab[0]
    E(f"s_cmp_lg_u32 s60, {w}"); E(f"s_cbranch_scc1 ST{n}")
    E("s_memrealtime s[94:95]"); E("s_waitcnt lgkmcnt(0)")
    E("v_mov_b32 v254, s94"); E("s_lshl_b32 s96, s2, 6"); E(f"s_add_u32 s96, s96, {3145728 + 4*k}")
    E("v_mov_b32 v255, 0")
    E("buffer_store_dword v254, v255, s[40:43], s96 offen")
    L(f"ST{n}")
def gather(loads, tags):
    lab[0] += 1; n = lab[0]
    E("s_mov_b32 s71, 0")
    L(f"GL{n}")
    for l in loads: E(l)
    E("s_waitcnt vmcnt(0)")
    E(f"v_xor_b32 v250, s97, v{tags[0]}")
    for t_ in tags[1:]:
        E(f"v_xor_b32 v251, s97, v{t_}"); E("v_or_b32 v250, v250, v251")
    E("v_cmp_eq_u32 vcc, 0, v250"); E("s_nop 4")
    E("s_cmp_eq_u64 vcc, exec"); E(f"s_cbranch_scc1 GD{n}")
    E("s_add_u32 s71, s71, 1"); E("s_cmp_lt_u32 s71, 0x20000"); E(f"s_cbranch_scc1 GL{n}")
    L(f"GD{n}")

n = NAME + "_kernel"
out.append(f".globl {n}"); out.append(".p2align 8"); out.append(f".type {n},@function"); L(n)
E("s_cmp_ge_u32 s2, 256"); E("s_cbranch_scc1 END")
E("s_load_dwordx16 s[64:79], s[0:1], 0")
E("s_load_dwordx8 s[80:87], s[0:1], 64")
E("s_load_dwordx2 s[88:89], s[0:1], 96")
E("v_and_b32 v1, 63, v0"); E("v_and_b32 v2, 15, v1"); E("v_lshrrev_b32 v3, 4, v1"); E("v_lshrrev_b32 v4, 6, v0")
E("v_lshrrev_b32 v5, 3, v0"); E("v_and_b32 v6, 7, v0"); E("v_and_b32 v7, 3, v1")
E("v_readfirstlane_b32 s60, v4")
E("s_lshr_b32 s61, s2, 5"); E("s_and_b32 s62, s2, 31")
E("s_waitcnt lgkmcnt(0)")
srd(12, 64, 1024); srd(16, 66, 0x8000000); srd(20, 68, 0x8000000); srd(24, 70, 512*4096*2); srd(28, 72, 4096*512*2)
srd(32, 76, 512*1792*2); srd(36, 80, 1792*512*2); srd(40, 88, WSN); srd(44, 86, 256); srd(48, 78, 3584); srd(52, 82, 1024); srd(56, 84, 1024)
E("s_cmp_eq_u32 s60, 4"); E("s_cbranch_scc1 MW")
stamp(0)
E("v_lshlrev_b32 v144, 4, v1")
E("buffer_load_dwordx4 v[156:159], v144, s[12:15], 0 offen")
E("v_lshlrev_b32 v145, 13, v5"); E("v_lshl_add_u32 v145, v6, 4, v145")
E("s_and_b32 s63, s2, 3"); E("s_lshl_b32 s63, s63, 20"); E("s_lshr_b32 s64, s2, 2"); E("s_lshl_b32 s64, s64, 7"); E("s_add_u32 s63, s63, s64")
for j in range(4):
    E(f"s_add_u32 s64, s63, {j*32*8192}")
    E(f"buffer_load_dwordx4 v[{8+4*j}:{11+4*j}], v145, s[24:27], s64 offen")
E("s_barrier")
E("s_lshl_b32 s98, s61, 24"); E("s_lshl_b32 s65, s62, 15"); E("s_add_u32 s98, s98, s65"); E(f"s_add_u32 s98, s98, {61440*256}")
E("v_lshlrev_b32 v136, 5, v4"); E("v_add_u32 v136, v136, v2"); E("v_lshlrev_b32 v136, 8, v136")
E("v_lshl_add_u32 v136, v3, 4, v136"); E("v_add_u32 v137, 4096, v136")
E("v_lshlrev_b32 v138, 5, v4"); E("v_lshl_add_u32 v138, v3, 2, v138"); E("v_lshlrev_b32 v138, 8, v138")
E("v_lshl_add_u32 v138, v2, 4, v138"); E("v_add_u32 v139, 4096, v138")
KL = []
for t in range(2):
    for b in range(4):
        r = 24 + 16*t + 4*b
        KL.append(f"buffer_load_dwordx4 v[{r}:{r+3}], v{136+t}, s[16:19], s98 offen offset:{64*b}")
VL = []
for i in range(8):
    r = 56 + 4*i
    VL.append(f"buffer_load_dwordx4 v[{r}:{r+3}], v{138 + i//4}, s[20:23], s98 offen offset:{256*(i%4)}")
E("s_waitcnt vmcnt(4)")
unpack8(160, 156)
t = 170
E(f"v_add_f32 v{t}, v160, v161")
for i in range(2, 8): E(f"v_add_f32 v{t}, v{t}, v{160+i}")
wave_reduce("v_add_f32", t)
E(f"v_mul_f32 v{t}, {INV512}, v{t}"); E(f"v_mov_b32 v{t+1}, 0")
for i in range(8):
    E(f"v_sub_f32 v{t+2}, v{160+i}, v{t}"); E(f"v_fmac_f32 v{t+1}, v{t+2}, v{t+2}")
wave_reduce("v_add_f32", t+1)
E(f"v_mul_f32 v{t+1}, {INV512}, v{t+1}")
rbf(t); rbf(t+1); E(f"v_add_f32 v{t+1}, {EPS}, v{t+1}"); rbf(t+1)
E(f"v_sqrt_f32 v{t+1}, v{t+1}"); E("s_nop 0"); rbf(t+1); E(f"v_rcp_f32 v{t+2}, v{t+1}"); E("s_nop 0")
for i in range(8):
    E(f"v_sub_f32 v{t+3}, v{160+i}, v{t}"); rbf(t+3); fdiv(160+i, t+3, t+1, t+2, t+4); rbf(160+i)
E("v_lshlrev_b32 v144, 5, v1")
E(f"ds_write_b128 v144, v[160:163] offset:{XN}"); E(f"ds_write_b128 v144, v[164:167] offset:{XN+16}")
E("s_waitcnt lgkmcnt(0)")
E("s_and_b32 s69, s2, 3"); E("s_lshl_b32 s69, s69, 7"); E("v_add_u32 v144, s69, v5"); E("v_lshlrev_b32 v144, 2, v144")
for j in range(4): E(f"ds_read_b32 v{176+2*j}, v144 offset:{XN+128*j}")
for k in range(8): E(f"v_mov_b32 v{160+k}, 0")
E("s_waitcnt vmcnt(0) lgkmcnt(0)")
stamp(1)
for l in KL[:DEPTH]: E(l)
for j in range(4):
    unpack8(168, 8+4*j)
    pkfma8(160, 176+2*j, 168)
E("v_lshlrev_b32 v144, 8, v5"); E("v_lshl_add_u32 v144, v6, 5, v144")
E(f"ds_write_b128 v144, v[160:163] offset:{SC}"); E(f"ds_write_b128 v144, v[164:167] offset:{SC+16}")
E(f"v_mov_b32 v144, {CNT}"); E("v_mov_b32 v145, 1")
E("s_waitcnt lgkmcnt(0)"); E("ds_add_u32 v144, v145")
seq = KL[DEPTH:] + VL[:DEPTH]
for l in seq:
    E(f"s_waitcnt vmcnt({DEPTH-1})"); E(l)
for l in VL[DEPTH:]: E(l)
E("s_barrier")
stamp(4)
E(f"v_mov_b32 v144, {NON}"); E("ds_read_b32 v145, v144")
E("v_lshlrev_b32 v144, 8, v7"); E("v_lshl_add_u32 v144, v3, 4, v144")
for b in range(4): E(f"ds_read_b128 v[{160+4*b}:{163+4*b}], v144 offset:{QL+64*b}")
for k in range(8): E(f"v_mov_b32 v{176+k}, 0")
E("s_waitcnt vmcnt(8) lgkmcnt(0)")
E("v_readfirstlane_b32 s97, v145")
for tt in range(2):
    for b in range(4):
        r = 24 + 16*tt + 4*b
        E(f"v_mfma_f32_16x16x32_bf16 v[{176+4*tt}:{179+4*tt}], v[{r}:{r+3}], v[{160+4*b}:{163+4*b}], v[{176+4*tt}:{179+4*tt}]")
E(f"s_mov_b32 s76, {SCALE}"); E(f"s_mov_b32 s77, {LOG2E}")
for k in range(32): E(f"v_mov_b32 v{224+k}, 0")
E("s_nop 1")
for k in range(8):
    rbf(176+k); E(f"v_mul_f32 v{176+k}, s76, v{176+k}"); rbf(176+k)
E("v_max3_f32 v184, v176, v177, v178"); E("v_max3_f32 v185, v179, v180, v181"); E("v_max3_f32 v184, v184, v182, v183"); E("v_max_f32 v184, v184, v185")
def xrow(op, v, t):
    E(f"v_mov_b32 v{t}, v{v}"); E("s_nop 1"); E(f"v_permlane32_swap_b32 v{v}, v{t}"); E("s_nop 1"); E(f"{op} v{v}, v{v}, v{t}")
    E(f"v_mov_b32 v{t}, v{v}"); E("s_nop 1"); E(f"v_permlane16_swap_b32 v{v}, v{t}"); E("s_nop 1"); E(f"{op} v{v}, v{v}, v{t}")
xrow("v_max_f32", 184, 185)
E("v_mul_f32 v185, s77, v184")
for k in range(8): E(f"v_fma_f32 v{176+k}, v{176+k}, s77, -v185")
for k in range(8): E(f"v_exp_f32 v{176+k}, v{176+k}")
E("s_nop 0")
E("v_add_f32 v185, v176, v177")
for k in range(2, 8): E(f"v_add_f32 v185, v185, v{176+k}")
for j in range(8):
    for h in range(4): E(f"v_mov_b32_dpp v{192+4*j+h}, v{176+j} quad_perm:[{h},{h},{h},{h}] row_mask:0xf bank_mask:0xf")
xrow("v_add_f32", 185, 186)
for i in range(8):
    E(f"s_waitcnt vmcnt({7-i})")
    unpack8(160, 56+4*i)
    for h in range(4): pkfma8(224+8*h, 192+4*i+h, 160)
E("s_nop 1")
for k in range(8):
    E(f"v_permlane32_swap_b32 v{224+k}, v{240+k}"); E(f"v_permlane32_swap_b32 v{232+k}, v{248+k}")
E("s_nop 1")
for k in range(8):
    E(f"v_add_f32 v{224+k}, v{224+k}, v{240+k}"); E(f"v_add_f32 v{232+k}, v{232+k}, v{248+k}")
E("s_nop 1")
for k in range(8): E(f"v_permlane16_swap_b32 v{224+k}, v{232+k}")
E("s_nop 1")
for k in range(8): E(f"v_add_f32 v{224+k}, v{224+k}, v{232+k}")
E("v_lshlrev_b32 v144, 11, v4"); E("v_lshl_add_u32 v144, v1, 5, v144")
E(f"ds_write_b128 v144, v[224:227] offset:{R0}"); E(f"ds_write_b128 v144, v[228:231] offset:{R0+16}")
E("v_lshlrev_b32 v144, 5, v4"); E("v_lshl_add_u32 v144, v7, 3, v144")
E(f"ds_write_b64 v144, v[184:185] offset:{LR}")
bar()
E("v_lshlrev_b32 v144, 9, v4"); E("v_lshl_add_u32 v144, v1, 3, v144")
for w in range(4): E(f"ds_read_b64 v[{192+2*w}:{193+2*w}], v144 offset:{R0+2048*w}")
E("v_lshlrev_b32 v145, 3, v4")
for w in range(4): E(f"ds_read_b64 v[{200+2*w}:{201+2*w}], v145 offset:{LR+32*w}")
E("v_lshlrev_b32 v146, 15, v4"); E("v_lshl_add_u32 v146, v1, 4, v146")
E("s_lshl_b32 s68, s61, 17"); E("s_lshl_b32 s69, s62, 10"); E("s_add_u32 s68, s68, s69"); E(f"s_add_u32 s68, s68, {APO}")
E("v_lshlrev_b32 v147, 9, v4")
E("s_lshl_b32 s70, s61, 11"); E("s_lshl_b32 s69, s62, 4"); E("s_add_u32 s70, s70, s69"); E(f"s_add_u32 s70, s70, {APM}")
E("s_waitcnt lgkmcnt(0)")
E("v_max3_f32 v240, v200, v202, v204"); E("v_max_f32 v240, v240, v206")
for w in range(4):
    E(f"v_sub_f32 v{208+2*w}, v{200+2*w}, v240"); E(f"v_mul_f32 v{208+2*w}, s77, v{208+2*w}")
for w in range(4): E(f"v_exp_f32 v{208+2*w}, v{208+2*w}")
E("s_nop 0")
E("v_mul_f32 v242, v208, v201")
E("v_pk_mul_f32 v[216:217], v[208:209], v[192:193] op_sel_hi:[0,1]")
for w in range(1, 4):
    E(f"v_fmac_f32 v242, v{208+2*w}, v{201+2*w}")
    E(f"v_pk_fma_f32 v[216:217], v[{208+2*w}:{209+2*w}], v[{192+2*w}:{193+2*w}], v[216:217] op_sel_hi:[0,1,1]")
E("v_mov_b32 v241, s97"); E("v_mov_b32 v243, s97")
E("v_mov_b32 v218, v217"); E("v_mov_b32 v217, s97"); E("v_mov_b32 v219, s97")
E("buffer_store_dwordx4 v[216:219], v146, s[40:43], s68 offen sc1")
E("buffer_store_dwordx4 v[240:243], v147, s[40:43], s70 offen sc1")
stamp(5)
E("s_cmp_lt_u32 s2, 28"); E("s_cbranch_scc1 ROLEC")
E("s_cmp_lt_u32 s2, 36"); E("s_cbranch_scc1 ROLED")
E("s_cmp_lt_u32 s2, 128"); E("s_cbranch_scc1 END")
E("s_sub_u32 s68, s2, 128"); E("s_lshr_b32 s68, s68, 2"); E("s_and_b32 s67, s2, 3")
E("v_lshrrev_b32 v5, 4, v0"); E("v_and_b32 v6, 15, v0")
E("v_lshlrev_b32 v148, 10, v5"); E("v_lshl_add_u32 v148, v6, 4, v148")
E("s_lshl_b32 s69, s68, 17"); E("s_lshl_b32 s70, s67, 8"); E("s_add_u32 s69, s69, s70")
for j in range(8):
    E(f"buffer_load_dwordx4 v[{88+4*j}:{91+4*j}], v148, s[28:31], s69 offen")
    if j < 7: E("s_add_u32 s69, s69, 16384")
E("v_and_b32 v144, 31, v1"); E("v_lshlrev_b32 v149, 4, v144"); E("v_lshlrev_b32 v144, 3, v144")
E("s_lshl_b32 s69, s68, 9"); E(f"s_add_u32 s69, s69, {APM}")
E("v_lshrrev_b32 v145, 7, v0"); E("v_and_b32 v146, 127, v0")
E("v_lshlrev_b32 v147, 14, v145"); E("v_lshl_add_u32 v147, v146, 3, v147")
for q in range(1, 4): E(f"v_add_u32 v{151+q}, {4096*q}, v147")
E("v_mov_b32 v151, v147")
E("s_lshl_b32 s70, s68, 15"); E(f"s_add_u32 s70, s70, {APO}")
gather(["buffer_load_dwordx4 v[156:159], v149, s[40:43], s69 offen sc1"], [157, 159])
lds_ = []
for s_ in range(16): lds_.append(f"buffer_load_dwordx2 v[{192+2*s_}:{193+2*s_}], v{151 + s_//4}, s[40:43], s70 offen offset:{1024*(s_%4)} sc1")
for l in lds_: E(l)
E("v_mov_b32 v160, v156"); E("v_mov_b32 v161, v158")
E("v_mov_b32 v162, v160"); wave_reduce("v_max_f32", 162)
E("v_sub_f32 v163, v160, v162"); E("v_mul_f32 v163, s77, v163"); E("v_exp_f32 v163, v163"); E("s_nop 0")
E("v_mul_f32 v162, v163, v161"); wave_reduce("v_add_f32", 162)
E("v_mul_f32 v162, 0.5, v162"); E("v_rcp_f32 v164, v162"); E("s_nop 0")
fdiv(165, 163, 162, 164, 166)
E("v_lshrrev_b32 v144, 1, v144"); E(f"ds_write_b32 v144, v165 offset:{QL}"); E("s_waitcnt lgkmcnt(0)")
E("v_lshlrev_b32 v144, 6, v145")
for q in range(4): E(f"ds_read_b128 v[{228+4*q}:{231+4*q}], v144 offset:{QL+16*q}")
E("s_waitcnt vmcnt(0)")
E("v_xor_b32 v250, s97, v193")
for s_ in range(1, 16):
    E(f"v_xor_b32 v251, s97, v{193+2*s_}"); E("v_or_b32 v250, v250, v251")
E("v_cmp_eq_u32 vcc, 0, v250"); E("s_nop 4")
E("s_cmp_eq_u64 vcc, exec"); E("s_cbranch_scc1 BOK")
gather(lds_, [193+2*s_ for s_ in range(16)])
L("BOK")
stamp(6)
E("s_waitcnt lgkmcnt(0)")
E("v_mul_f32 v168, v192, v228")
for s in range(1, 16): E(f"v_fmac_f32 v168, v{192+2*s}, v{228+s}")
E("v_lshlrev_b32 v144, 2, v0"); E(f"ds_write_b32 v144, v168 offset:{XN}")
bar()
E("v_lshlrev_b32 v144, 2, v5")
for j in range(8):
    E(f"ds_read_b32 v{176+2*j}, v144 offset:{XN+64*j}"); E(f"ds_read_b32 v{177+2*j}, v144 offset:{XN+512+64*j}")
for k in range(8): E(f"v_mov_b32 v{160+k}, 0")
E("s_waitcnt lgkmcnt(0)")
for j in range(8):
    E(f"v_add_f32 v{176+2*j}, v{176+2*j}, v{177+2*j}"); rbf(176+2*j)
for j in range(8):
    unpack8(168, 88+4*j)
    pkfma8(160, 176+2*j, 168)
E("v_lshlrev_b32 v144, 9, v5"); E("v_lshl_add_u32 v144, v6, 5, v144")
E(f"ds_write_b128 v144, v[160:163] offset:{SC}"); E(f"ds_write_b128 v144, v[164:167] offset:{SC+16}")
bar()
E("s_cmp_ge_u32 s60, 2"); E("s_cbranch_scc1 END")
E("v_lshlrev_b32 v144, 2, v0")
for r in range(16): E(f"ds_read_b32 v{176+r}, v144 offset:{SC+512*r}")
E("s_lshl_b32 s69, s68, 12"); E("s_lshl_b32 s70, s67, 10"); E("s_add_u32 s69, s69, s70"); E(f"s_add_u32 s69, s69, {OP}")
E("v_lshlrev_b32 v144, 3, v0")
E("s_waitcnt lgkmcnt(0)")
for r in range(1, 16): E(f"v_add_f32 v176, v176, v{176+r}")
E("v_mov_b32 v177, s97")
E("buffer_store_dwordx2 v[176:177], v144, s[40:43], s69 offen sc1")
stamp(7)
E("s_branch END")
L("ROLEC")
E("s_mov_b32 s69, 57344"); E("v_mul_lo_u32 v148, v5, s69"); E("v_lshl_add_u32 v148, v6, 4, v148")
E("s_lshl_b32 s69, s2, 7")
for i in range(16):
    E(f"buffer_load_dwordx4 v[{8+4*i}:{11+4*i}], v148, s[32:35], s69 offen")
    if i < 15: E("s_add_u32 s69, s69, 3584")
E("v_lshlrev_b32 v148, 14, v4"); E("v_lshl_add_u32 v148, v1, 4, v148")
E("s_lshl_b32 s69, s2, 16")
for i in range(16):
    E(f"buffer_load_dwordx4 v[{72+4*i}:{75+4*i}], v148, s[36:39], s69 offen offset:{1024*(i%4)}")
    if i % 4 == 3 and i < 15: E("s_add_u32 s69, s69, 4096")
E("v_lshlrev_b32 v148, 1, v1"); E("s_lshl_b32 s69, s2, 7")
E("buffer_load_ushort v140, v148, s[48:51], s69 offen")
E("v_lshlrev_b32 v148, 2, v0")
E("buffer_load_dword v142, v148, s[12:15], 0 offen")
E("v_lshlrev_b32 v145, 4, v0")
E("v_lshlrev_b32 v149, 9, v0"); E(f"s_mov_b32 s69, {OP}")
gather(["buffer_load_dwordx2 v[156:157], v149, s[40:43], s69 offen sc1"], [157])
E("s_barrier")
stamp(9)
lab[0] += 1; gn = lab[0]
E("s_mov_b32 s71, 0")
L(f"GL{gn}")
E("v_mov_b32 v146, 0"); E("v_mov_b32 v147, 0"); E("v_mov_b32 v250, 0")
E(f"s_mov_b32 s69, {OP}")
NR = 20
for r in range(NR):
    E(f"buffer_load_dwordx4 v[{160+4*r}:{163+4*r}], v145, s[40:43], s69 offen sc1"); E("s_add_u32 s69, s69, 4096")
for r in range(32):
    x = 160 + 4*(r % NR)
    E(f"s_waitcnt vmcnt({min(NR-1, 31-r)})")
    E(f"v_xor_b32 v251, s97, v{x+1}"); E(f"v_xor_b32 v252, s97, v{x+3}"); E("v_or3_b32 v250, v250, v251, v252")
    E(f"v_add_f32 v146, v146, v{x}"); E(f"v_add_f32 v147, v147, v{x+2}")
    if r + NR < 32:
        E(f"buffer_load_dwordx4 v[{x}:{x+3}], v145, s[40:43], s69 offen sc1"); E("s_add_u32 s69, s69, 4096")
E("v_cmp_eq_u32 vcc, 0, v250"); E("s_nop 4")
E("s_cmp_eq_u64 vcc, exec"); E(f"s_cbranch_scc1 GD{gn}")
E("s_add_u32 s71, s71, 1"); E("s_cmp_lt_u32 s71, 0x20000"); E(f"s_cbranch_scc1 GL{gn}")
L(f"GD{gn}")
stamp(10)
E("v_mov_b32 v192, v146"); E("v_mov_b32 v193, v147")
E("v_lshlrev_b32 v144, 3, v0")
rbf(192); rbf(193)
E("v_lshlrev_b32 v146, 16, v142"); E("v_and_b32 v147, 0xffff0000, v142")
E("v_add_f32 v192, v192, v146"); E("v_add_f32 v193, v193, v147"); rbf(192); rbf(193)
E(f"ds_write_b64 v144, v[192:193] offset:{XN}")
bar()
E("v_lshlrev_b32 v144, 5, v1")
E(f"ds_read_b128 v[160:163], v144 offset:{XN}"); E(f"ds_read_b128 v[164:167], v144 offset:{XN+16}")
E("s_waitcnt lgkmcnt(0)")
t = 170
E(f"v_add_f32 v{t}, v160, v161")
for i in range(2, 8): E(f"v_add_f32 v{t}, v{t}, v{160+i}")
wave_reduce("v_add_f32", t)
E(f"v_mul_f32 v{t}, {INV512}, v{t}"); E(f"v_mov_b32 v{t+1}, 0")
for i in range(8):
    E(f"v_sub_f32 v{t+2}, v{160+i}, v{t}"); E(f"v_fmac_f32 v{t+1}, v{t+2}, v{t+2}")
wave_reduce("v_add_f32", t+1)
E(f"v_mul_f32 v{t+1}, {INV512}, v{t+1}")
rbf(t); rbf(t+1); E(f"v_add_f32 v{t+1}, {EPS}, v{t+1}"); rbf(t+1)
E(f"v_sqrt_f32 v{t+1}, v{t+1}"); E("s_nop 0"); rbf(t+1); E(f"v_rcp_f32 v{t+2}, v{t+1}"); E("s_nop 0")
for i in range(8):
    E(f"v_sub_f32 v{t+3}, v{160+i}, v{t}"); rbf(t+3); fdiv(160+i, t+3, t+1, t+2, t+4); rbf(160+i)
E(f"ds_write_b128 v144, v[160:163] offset:{SCO}"); E(f"ds_write_b128 v144, v[164:167] offset:{SCO+16}")
E("s_waitcnt lgkmcnt(0)")
E("v_lshlrev_b32 v144, 6, v5")
for q in range(4): E(f"ds_read_b128 v[{192+4*q}:{195+4*q}], v144 offset:{SCO+16*q}")
for k in range(8): E(f"v_mov_b32 v{160+k}, 0")
E("s_waitcnt lgkmcnt(0)")
for i in range(16):
    unpack8(168, 8+4*i)
    pkfma8(160, 192+i, 168)
E("v_lshlrev_b32 v144, 8, v5"); E("v_lshl_add_u32 v144, v6, 5, v144")
E(f"ds_write_b128 v144, v[160:163] offset:{SC}"); E(f"ds_write_b128 v144, v[164:167] offset:{SC+16}")
bar()
E("v_lshlrev_b32 v144, 2, v1")
for r in range(32): E(f"ds_read_b32 v{192+r}, v144 offset:{SC+256*r}")
E("s_lshl_b32 s63, s60, 4")
for k in range(8): E(f"v_mov_b32 v{160+k}, 0")
E("s_waitcnt lgkmcnt(0)")
for r in range(1, 32): E(f"v_add_f32 v192, v192, v{192+r}")
E("v_mov_b32 v176, v192")
rbf(176); E("v_lshlrev_b32 v140, 16, v140"); E("v_add_f32 v176, v176, v140"); rbf(176)
E("v_mul_f32 v177, v176, v176"); E("v_mul_f32 v177, v177, v176"); E("s_mov_b32 s69, 0x3d372713"); E("v_fma_f32 v177, v177, s69, v176")
E("v_mul_f32 v177, 0x40135761, v177"); E("v_exp_f32 v177, v177"); E("s_nop 0"); E("v_add_f32 v177, 1.0, v177")
E("v_rcp_f32 v177, v177"); E("s_nop 0"); E("v_fma_f32 v177, v177, -2.0, 1.0"); E("v_add_f32 v177, 1.0, v177")
E("v_mul_f32 v177, v177, v176"); E("v_mul_f32 v177, 0.5, v177"); rbf(177)
E("s_nop 1")
for i in range(16):
    E(f"v_readlane_b32 s{64+i}, v177, s63")
    if i < 15: E("s_add_u32 s63, s63, 1")
E("s_nop 1")
for i in range(16):
    unpack8(168, 72+4*i)
    sp_ = 64 + i - (i % 2); sel = "op_sel_hi:[0,1,1]" if i % 2 == 0 else "op_sel:[1,0,0] op_sel_hi:[1,1,1]"
    for k in range(4): E(f"v_pk_fma_f32 v[{160+2*k}:{161+2*k}], s[{sp_}:{sp_+1}], v[{168+2*k}:{169+2*k}], v[{160+2*k}:{161+2*k}] {sel}")
E("v_lshlrev_b32 v144, 11, v4"); E("v_lshl_add_u32 v144, v1, 5, v144")
E(f"ds_write_b128 v144, v[160:163] offset:{SC+8192}"); E(f"ds_write_b128 v144, v[164:167] offset:{SC+8192+16}")
bar()
E("v_lshlrev_b32 v144, 3, v0")
for r in range(4): E(f"ds_read_b64 v[{192+2*r}:{193+2*r}], v144 offset:{SC+8192+2048*r}")
E("s_lshl_b32 s69, s2, 12"); E(f"s_add_u32 s69, s69, {F2}")
E("s_waitcnt lgkmcnt(0)")
for r in range(1, 4): E(f"v_pk_add_f32 v[192:193], v[192:193], v[{192+2*r}:{193+2*r}]")
E("v_mov_b32 v194, v193"); E("v_mov_b32 v193, s97"); E("v_mov_b32 v195, s97")
E("buffer_store_dwordx4 v[192:195], v145, s[40:43], s69 offen sc1")
stamp(11)
E("s_branch END")
L("ROLED")
E("s_cmp_lg_u32 s60, 0"); E("s_cbranch_scc1 END")
E("s_sub_u32 s68, s2, 28")
E("v_lshlrev_b32 v148, 1, v1"); E("s_lshl_b32 s69, s68, 7")
E("buffer_load_ushort v141, v148, s[52:55], s69 offen")
E("buffer_load_ushort v140, v148, s[12:15], s69 offen")
E("v_lshlrev_b32 v144, 3, v1"); E("s_lshl_b32 s70, s68, 9")
lds_ = []
for k in range(32):
    lds_.append(f"s_add_u32 s69, s70, {OP + 4096*k}")
    lds_.append(f"buffer_load_dwordx2 v[{160+2*k}:{161+2*k}], v144, s[40:43], s69 offen sc1")
gather(lds_, [161+2*k for k in range(32)])
stamp(12)
for k in range(1, 32): E(f"v_add_f32 v160, v160, v{160+2*k}")
rbf(160); E("v_lshlrev_b32 v140, 16, v140"); E("v_add_f32 v248, v160, v140"); rbf(248)
lds_ = []
for k in range(28):
    lds_.append(f"s_add_u32 s69, s70, {F2 + 4096*k}")
    lds_.append(f"buffer_load_dwordx2 v[{192+2*k}:{193+2*k}], v144, s[40:43], s69 offen sc1")
gather(lds_, [193+2*k for k in range(28)])
for k in range(1, 28): E(f"v_add_f32 v192, v192, v{192+2*k}")
rbf(192); E("v_lshlrev_b32 v141, 16, v141"); E("v_add_f32 v192, v192, v141"); rbf(192)
E("v_add_f32 v192, v192, v248"); E("v_cvt_pk_bf16_f32 v192, v192, v192")
E("s_lshl_b32 s69, s68, 7")
E("buffer_store_short v192, v148, s[56:59], s69 offen")
stamp(13)
E("s_branch END")
L("MW")
E(f"v_mov_b32 v144, {CNT}"); E("v_mov_b32 v145, 0"); E("ds_write_b32 v144, v145")
bar()
E("s_cmp_lg_u32 s2, 0"); E("s_cbranch_scc1 NONW")
E("s_memrealtime s[94:95]"); E("s_waitcnt lgkmcnt(0)"); E("s_or_b32 s94, s94, 1")
E("v_mov_b32 v250, 0"); E("v_mov_b32 v251, s94"); E("buffer_store_dword v251, v250, s[44:47], 0 offen sc1")
L("NONW")
E("s_mov_b32 s71, 0"); E("v_mov_b32 v250, 0")
L("NL")
E("buffer_load_dword v251, v250, s[44:47], 0 offen sc1"); E("s_waitcnt vmcnt(0)")
E("v_readfirstlane_b32 s97, v251"); E("s_nop 3")
E("s_cmp_lg_u32 s97, 0"); E("s_cbranch_scc1 ND")
E("s_add_u32 s71, s71, 1"); E("s_cmp_lt_u32 s71, 0x40000"); E("s_cbranch_scc1 NL")
L("ND")
E(f"v_mov_b32 v144, {NON}"); E("v_mov_b32 v145, s97"); E("ds_write_b32 v144, v145")
E("v_lshlrev_b32 v144, 2, v1")
E("s_and_b32 s69, s2, 3"); E("s_lshl_b32 s69, s69, 15"); E("s_lshr_b32 s74, s2, 2"); E("s_lshl_b32 s74, s74, 9"); E("s_add_u32 s69, s69, s74")
E("v_lshlrev_b32 v146, 3, v1"); E("v_lshlrev_b32 v147, 4, v1")
E(f"v_mov_b32 v148, {CNT}"); E("s_mov_b32 s71, 0")
L("CL")
E("ds_read_b32 v149, v148"); E("s_waitcnt lgkmcnt(0)")
E("v_readfirstlane_b32 s72, v149"); E("s_nop 3")
E("s_cmp_eq_u32 s72, 256"); E("s_cbranch_scc1 CD")
E("s_add_u32 s71, s71, 1"); E("s_cmp_lt_u32 s71, 0x100000"); E("s_cbranch_scc1 CL")
L("CD")
for r in range(32): E(f"ds_read_b32 v{160+r}, v144 offset:{SC+256*r}")
E("s_waitcnt lgkmcnt(0)")
for r in range(1, 32): E(f"v_add_f32 v160, v160, v{160+r}")
E("v_mov_b32 v161, s97")
E("buffer_store_dwordx2 v[160:161], v146, s[40:43], s69 offen sc1")
stamp(2, 4)
E("s_lshl_b32 s69, s61, 12")
lds_ = []
for p in range(4):
    lds_.append(f"s_add_u32 s70, s69, {p*32768}")
    for j in range(4):
        r = 160 + 16*p + 4*j
        lds_.append(f"buffer_load_dwordx4 v[{r}:{r+3}], v147, s[40:43], s70 offen offset:{1024*j} sc1")
gather(lds_, [161+2*i for i in range(32)])
stamp(3, 4)
if STAMP:
    E("v_mov_b32 v254, s71"); E("v_add_u32 v254, 1000, v254"); E("s_lshl_b32 s96, s2, 6"); E(f"s_add_u32 s96, s96, {3145728 + 4*15}")
    E("v_mov_b32 v255, 0")
    E("buffer_store_dword v254, v255, s[40:43], s96 offen")
for j in range(4):
    for p in range(1, 4):
        E(f"v_add_f32 v{160+4*j}, v{160+4*j}, v{160+16*p+4*j}"); E(f"v_add_f32 v{162+4*j}, v{162+4*j}, v{162+16*p+4*j}")
    E(f"v_cvt_pk_bf16_f32 v{160+4*j}, v{160+4*j}, v{162+4*j}")
    E(f"ds_write_b32 v144, v{160+4*j} offset:{QL+256*j}")
bar()
L("END"); E("s_endpgm")

hdr = open(f"cdna_kernels/{NAME}.s.ref").read().split("; Override")[0]
res = [hdr.rstrip("\n"), f"; @launch grid=(256,1,1) block=(320,1,1) lds={LDSN}",
       '.amdgcn_target "amdgcn-amd-amdhsa--gfx950"', ".text"] + out
res.append(f""".section .rodata,"a"
.p2align 6
.amdhsa_kernel {n}
  .amdhsa_next_free_vgpr 256
  .amdhsa_next_free_sgpr 102
  .amdhsa_accum_offset 256
  .amdhsa_group_segment_fixed_size 0
  .amdhsa_kernarg_size 104
  .amdhsa_user_sgpr_count 2
  .amdhsa_user_sgpr_kernarg_segment_ptr 1
  .amdhsa_system_sgpr_workgroup_id_x 1
.end_amdhsa_kernel""")
path = sys.argv[1] if len(sys.argv) > 1 else f"cdna_kernels/{NAME}.s"
open(path, "w").write("\n".join(res) + "\n")
```

```python
import sys
NAME = "sequential_preLN__sliding_block_cached__dense_activation_gelu__decode"
out = []
def E(s): out.append("    " + s)
def L(s): out.append(s + ":")

Q   = 0
APO = 131072
APM = APO + 1048576
OP  = APM + 16384
F2  = OP + 131072
WSN = 1 << 22
LOG2E = 0x3fb8aa3b; SCALE = 0x3db504f3; EPS = 0x3727c5ac; INV512 = 0x3b000000
XN = 0; QL = 2048; NON = 3072; CNT = 3076; SCO = 4096; SC = 8192
R0 = SC; LR = SC + 32768
LDSN = LR + 512

STAMP = len(sys.argv) > 2 and sys.argv[2] == "1"
DEPTH = int(sys.argv[3]) if len(sys.argv) > 3 else 4

def srd(d, b, n):
    E(f"s_mov_b32 s{d}, s{b}"); E(f"s_and_b32 s{d+1}, s{b+1}, 0xffff")
    E(f"s_mov_b32 s{d+2}, {n}"); E(f"s_mov_b32 s{d+3}, 0x00020000")
def rbf(v):
    E(f"v_cvt_pk_bf16_f32 v{v}, v{v}, v{v}"); E(f"v_lshlrev_b32 v{v}, 16, v{v}")
def wave_reduce(op, v, st=90):
    for mode in ["quad_perm:[1,0,3,2]", "quad_perm:[2,3,0,1]", "row_half_mirror", "row_mirror"]:
        E("s_nop 1"); E(f"{op}_dpp v{v}, v{v}, v{v} {mode} row_mask:0xf bank_mask:0xf")
    E("s_nop 1")
    for i in range(4): E(f"v_readlane_b32 s{st+i}, v{v}, {16*i}")
    E("s_nop 1"); E(f"v_mov_b32 v{v}, s{st}")
    for i in range(1, 4): E(f"{op} v{v}, s{st+i}, v{v}")
def wave_reduce_multi(op, vs):
    for mode in ["quad_perm:[1,0,3,2]", "quad_perm:[2,3,0,1]", "row_half_mirror", "row_mirror"]:
        E("s_nop 1")
        for v in vs: E(f"{op}_dpp v{v}, v{v}, v{v} {mode} row_mask:0xf bank_mask:0xf")
    E("s_nop 1")
    for k, v in enumerate(vs):
        for i in range(4): E(f"v_readlane_b32 s{80+4*k+i}, v{v}, {16*i}")
    E("s_nop 1")
    for k, v in enumerate(vs):
        E(f"v_mov_b32 v{v}, s{80+4*k}")
        for i in range(1, 4): E(f"{op} v{v}, s{80+4*k+i}, v{v}")
def unpack8(dst, src):
    for i in range(4):
        E(f"v_lshlrev_b32 v{dst+2*i}, 16, v{src+i}"); E(f"v_and_b32 v{dst+2*i+1}, 0xffff0000, v{src+i}")
def pkfma8(acc, p, x):
    if p % 2 == 0: pp, sel = p, "op_sel_hi:[0,1,1]"
    else: pp, sel = p - 1, "op_sel:[1,0,0] op_sel_hi:[1,1,1]"
    for i in range(4):
        E(f"v_pk_fma_f32 v[{acc+2*i}:{acc+2*i+1}], v[{pp}:{pp+1}], v[{x+2*i}:{x+2*i+1}], v[{acc+2*i}:{acc+2*i+1}] {sel}")
def fdiv(dst, num, den, rcp, t):
    E(f"v_mul_f32 v{dst}, v{num}, v{rcp}"); E(f"v_fma_f32 v{t}, -v{dst}, v{den}, v{num}"); E(f"v_fma_f32 v{dst}, v{t}, v{rcp}, v{dst}")
def bar():
    E("s_waitcnt lgkmcnt(0)"); E("s_barrier")
lab = [0]
def stamp(k, w=0):
    if not STAMP: return
    lab[0] += 1; n = lab[0]
    E(f"s_cmp_lg_u32 s60, {w}"); E(f"s_cbranch_scc1 ST{n}")
    E("s_memrealtime s[94:95]"); E("s_waitcnt lgkmcnt(0)")
    E("v_mov_b32 v254, s94"); E("s_lshl_b32 s96, s2, 6"); E(f"s_add_u32 s96, s96, {3145728 + 4*k}")
    E("v_mov_b32 v255, 0")
    E("buffer_store_dword v254, v255, s[40:43], s96 offen")
    L(f"ST{n}")
def gather(loads, tags):
    lab[0] += 1; n = lab[0]
    E("s_mov_b32 s71, 0")
    L(f"GL{n}")
    for l in loads: E(l)
    E("s_waitcnt vmcnt(0)")
    E(f"v_xor_b32 v250, s97, v{tags[0]}")
    for t_ in tags[1:]:
        E(f"v_xor_b32 v251, s97, v{t_}"); E("v_or_b32 v250, v250, v251")
    E("v_cmp_eq_u32 vcc, 0, v250"); E("s_nop 4")
    E("s_cmp_eq_u64 vcc, exec"); E(f"s_cbranch_scc1 GD{n}")
    E("s_add_u32 s71, s71, 1"); E("s_cmp_lt_u32 s71, 0x20000"); E(f"s_cbranch_scc1 GL{n}")
    L(f"GD{n}")

PN = int(sys.argv[4]) if len(sys.argv) > 4 else 8
PSL = int(sys.argv[5]) if len(sys.argv) > 5 else 6
def ppoll(mk, tags, base, stride, fin=None, N=None):
    N = N or PN
    lab[0] += 1; n = lab[0]
    nl = len([x for x in mk(base) if x.startswith("buffer_load")])
    for i in range(N):
        for l in mk(base + i*stride): E(l)
        if i < N-1: E(f"s_sleep {PSL}")
    E("s_mov_b32 s71, 0")
    L(f"PP{n}")
    for i in range(N):
        r = base + i*stride
        E(f"s_waitcnt vmcnt({(N-1)*nl})")
        tg = tags(r)
        E(f"v_xor_b32 v250, s97, v{tg[0]}")
        for t_ in tg[1:]:
            E(f"v_xor_b32 v251, s97, v{t_}"); E("v_or_b32 v250, v250, v251")
        E("v_cmp_eq_u32 vcc, 0, v250"); E("s_nop 4")
        E("s_cmp_eq_u64 vcc, exec"); E(f"s_cbranch_scc1 PD{n}_{i}")
        for l in mk(r): E(l)
        E(f"s_sleep {PSL}")
    E("s_add_u32 s71, s71, 1"); E("s_cmp_lt_u32 s71, 0x8000"); E(f"s_cbranch_scc1 PP{n}")
    for i in range(N):
        L(f"PD{n}_{i}")
        if fin:
            for l in fin(base + i*stride): E(l)
            if i < N-1: E(f"s_branch PE{n}")
    L(f"PE{n}")

n = NAME + "_kernel"
out.append(f".globl {n}"); out.append(".p2align 8"); out.append(f".type {n},@function"); L(n)
E("s_cmp_ge_u32 s2, 256"); E("s_cbranch_scc1 END")
E("s_load_dwordx16 s[64:79], s[0:1], 0")
E("s_load_dwordx8 s[80:87], s[0:1], 64")
E("s_load_dwordx2 s[88:89], s[0:1], 96")
E("v_and_b32 v1, 63, v0"); E("v_and_b32 v2, 15, v1"); E("v_lshrrev_b32 v3, 4, v1"); E("v_lshrrev_b32 v4, 6, v0")
E("v_lshrrev_b32 v5, 3, v0"); E("v_and_b32 v6, 7, v0"); E("v_and_b32 v7, 3, v1")
E("v_readfirstlane_b32 s60, v4")
E("s_lshr_b32 s61, s2, 5"); E("s_and_b32 s62, s2, 31")
E("s_waitcnt lgkmcnt(0)")
srd(12, 64, 1024); srd(16, 66, 0x8000000); srd(20, 68, 0x8000000); srd(24, 70, 512*4096*2); srd(28, 72, 4096*512*2)
srd(32, 76, 512*1792*2); srd(36, 80, 1792*512*2); srd(40, 88, WSN); srd(44, 86, 256); srd(48, 78, 3584); srd(52, 82, 1024); srd(56, 84, 1024)
E("s_cmp_eq_u32 s60, 4"); E("s_cbranch_scc1 MW")
stamp(0)
E("v_lshlrev_b32 v144, 4, v1")
E("buffer_load_dwordx4 v[156:159], v144, s[12:15], 0 offen")
E("v_lshlrev_b32 v145, 13, v5"); E("v_lshl_add_u32 v145, v6, 4, v145")
E("s_and_b32 s63, s2, 3"); E("s_lshl_b32 s63, s63, 20"); E("s_lshr_b32 s64, s2, 2"); E("s_lshl_b32 s64, s64, 7"); E("s_add_u32 s63, s63, s64")
for j in range(4):
    E(f"s_add_u32 s64, s63, {j*32*8192}")
    E(f"buffer_load_dwordx4 v[{8+4*j}:{11+4*j}], v145, s[24:27], s64 offen")
E("s_barrier")
E("s_lshl_b32 s98, s61, 24"); E("s_lshl_b32 s65, s62, 15"); E("s_add_u32 s98, s98, s65"); E(f"s_add_u32 s98, s98, {61440*256}")
E("v_lshlrev_b32 v136, 5, v4"); E("v_add_u32 v136, v136, v2"); E("v_lshlrev_b32 v136, 8, v136")
E("v_lshl_add_u32 v136, v3, 4, v136"); E("v_add_u32 v137, 4096, v136")
E("v_lshlrev_b32 v138, 5, v4"); E("v_lshl_add_u32 v138, v3, 2, v138"); E("v_lshlrev_b32 v138, 8, v138")
E("v_lshl_add_u32 v138, v2, 4, v138"); E("v_add_u32 v139, 4096, v138")
KL = []
for t in range(2):
    for b in range(4):
        r = 24 + 16*t + 4*b
        KL.append(f"buffer_load_dwordx4 v[{r}:{r+3}], v{136+t}, s[16:19], s98 offen offset:{64*b}")
VL = []
for i in range(8):
    r = 56 + 4*i
    VL.append(f"buffer_load_dwordx4 v[{r}:{r+3}], v{138 + i//4}, s[20:23], s98 offen offset:{256*(i%4)}")
E("s_waitcnt vmcnt(4)")
unpack8(160, 156)
t = 170
E(f"v_add_f32 v{t}, v160, v161")
for i in range(2, 8): E(f"v_add_f32 v{t}, v{t}, v{160+i}")
wave_reduce("v_add_f32", t)
E(f"v_mul_f32 v{t}, {INV512}, v{t}"); E(f"v_mov_b32 v{t+1}, 0")
for i in range(8):
    E(f"v_sub_f32 v{t+2}, v{160+i}, v{t}"); E(f"v_fmac_f32 v{t+1}, v{t+2}, v{t+2}")
wave_reduce("v_add_f32", t+1)
E(f"v_mul_f32 v{t+1}, {INV512}, v{t+1}")
rbf(t); rbf(t+1); E(f"v_add_f32 v{t+1}, {EPS}, v{t+1}"); rbf(t+1)
E(f"v_sqrt_f32 v{t+1}, v{t+1}"); E("s_nop 0"); rbf(t+1); E(f"v_rcp_f32 v{t+2}, v{t+1}"); E("s_nop 0")
for i in range(8):
    E(f"v_sub_f32 v{t+3}, v{160+i}, v{t}"); rbf(t+3); fdiv(160+i, t+3, t+1, t+2, t+4); rbf(160+i)
E("v_lshlrev_b32 v144, 5, v1")
E(f"ds_write_b128 v144, v[160:163] offset:{XN}"); E(f"ds_write_b128 v144, v[164:167] offset:{XN+16}")
E("s_waitcnt lgkmcnt(0)")
E("s_and_b32 s69, s2, 3"); E("s_lshl_b32 s69, s69, 7"); E("v_add_u32 v144, s69, v5"); E("v_lshlrev_b32 v144, 2, v144")
for j in range(4): E(f"ds_read_b32 v{176+2*j}, v144 offset:{XN+128*j}")
for k in range(8): E(f"v_mov_b32 v{160+k}, 0")
E("s_waitcnt vmcnt(0) lgkmcnt(0)")
stamp(1)
for l in KL[:DEPTH]: E(l)
for j in range(4):
    unpack8(168, 8+4*j)
    pkfma8(160, 176+2*j, 168)
E("v_lshlrev_b32 v144, 8, v5"); E("v_lshl_add_u32 v144, v6, 5, v144")
E(f"ds_write_b128 v144, v[160:163] offset:{SC}"); E(f"ds_write_b128 v144, v[164:167] offset:{SC+16}")
E(f"v_mov_b32 v144, {CNT}"); E("v_mov_b32 v145, 1")
E("s_waitcnt lgkmcnt(0)"); E("ds_add_u32 v144, v145")
seq = KL[DEPTH:] + VL[:DEPTH]
for l in seq:
    E(f"s_waitcnt vmcnt({DEPTH-1})"); E(l)
for l in VL[DEPTH:]: E(l)
E("s_barrier")
stamp(4)
E(f"v_mov_b32 v144, {NON}"); E("ds_read_b32 v145, v144")
E("v_lshlrev_b32 v144, 8, v7"); E("v_lshl_add_u32 v144, v3, 4, v144")
for b in range(4): E(f"ds_read_b128 v[{160+4*b}:{163+4*b}], v144 offset:{QL+64*b}")
for k in range(8): E(f"v_mov_b32 v{176+k}, 0")
E("s_waitcnt vmcnt(8) lgkmcnt(0)")
E("v_readfirstlane_b32 s97, v145")
for tt in range(2):
    for b in range(4):
        r = 24 + 16*tt + 4*b
        E(f"v_mfma_f32_16x16x32_bf16 v[{176+4*tt}:{179+4*tt}], v[{r}:{r+3}], v[{160+4*b}:{163+4*b}], v[{176+4*tt}:{179+4*tt}]")
E(f"s_mov_b32 s76, {SCALE}"); E(f"s_mov_b32 s77, {LOG2E}")
for k in range(32): E(f"v_mov_b32 v{224+k}, 0")
E("s_nop 1")
for k in range(8):
    rbf(176+k); E(f"v_mul_f32 v{176+k}, s76, v{176+k}"); rbf(176+k)
E("v_max3_f32 v184, v176, v177, v178"); E("v_max3_f32 v185, v179, v180, v181"); E("v_max3_f32 v184, v184, v182, v183"); E("v_max_f32 v184, v184, v185")
def xrow(op, v, t):
    E(f"v_mov_b32 v{t}, v{v}"); E("s_nop 1"); E(f"v_permlane32_swap_b32 v{v}, v{t}"); E("s_nop 1"); E(f"{op} v{v}, v{v}, v{t}")
    E(f"v_mov_b32 v{t}, v{v}"); E("s_nop 1"); E(f"v_permlane16_swap_b32 v{v}, v{t}"); E("s_nop 1"); E(f"{op} v{v}, v{v}, v{t}")
xrow("v_max_f32", 184, 185)
E("v_mul_f32 v185, s77, v184")
for k in range(8): E(f"v_fma_f32 v{176+k}, v{176+k}, s77, -v185")
for k in range(8): E(f"v_exp_f32 v{176+k}, v{176+k}")
E("s_nop 0")
E("v_add_f32 v185, v176, v177")
for k in range(2, 8): E(f"v_add_f32 v185, v185, v{176+k}")
for j in range(8):
    for h in range(4): E(f"v_mov_b32_dpp v{192+4*j+h}, v{176+j} quad_perm:[{h},{h},{h},{h}] row_mask:0xf bank_mask:0xf")
xrow("v_add_f32", 185, 186)
for i in range(8):
    E(f"s_waitcnt vmcnt({7-i})")
    unpack8(160, 56+4*i)
    for h in range(4): pkfma8(224+8*h, 192+4*i+h, 160)
E("s_nop 1")
for k in range(8):
    E(f"v_permlane32_swap_b32 v{224+k}, v{240+k}"); E(f"v_permlane32_swap_b32 v{232+k}, v{248+k}")
E("s_nop 1")
for k in range(8):
    E(f"v_add_f32 v{224+k}, v{224+k}, v{240+k}"); E(f"v_add_f32 v{232+k}, v{232+k}, v{248+k}")
E("s_nop 1")
for k in range(8): E(f"v_permlane16_swap_b32 v{224+k}, v{232+k}")
E("s_nop 1")
for k in range(8): E(f"v_add_f32 v{224+k}, v{224+k}, v{232+k}")
E("v_lshlrev_b32 v144, 11, v4"); E("v_lshl_add_u32 v144, v1, 5, v144")
E(f"ds_write_b128 v144, v[224:227] offset:{R0}"); E(f"ds_write_b128 v144, v[228:231] offset:{R0+16}")
E("v_lshlrev_b32 v144, 5, v4"); E("v_lshl_add_u32 v144, v7, 3, v144")
E(f"ds_write_b64 v144, v[184:185] offset:{LR}")
bar()
E("v_lshlrev_b32 v144, 9, v4"); E("v_lshl_add_u32 v144, v1, 3, v144")
for w in range(4): E(f"ds_read_b64 v[{192+2*w}:{193+2*w}], v144 offset:{R0+2048*w}")
E("v_lshlrev_b32 v145, 3, v4")
for w in range(4): E(f"ds_read_b64 v[{200+2*w}:{201+2*w}], v145 offset:{LR+32*w}")
E("v_lshlrev_b32 v146, 15, v4"); E("v_lshl_add_u32 v146, v1, 4, v146")
E("s_lshl_b32 s68, s61, 17"); E("s_lshl_b32 s69, s62, 10"); E("s_add_u32 s68, s68, s69"); E(f"s_add_u32 s68, s68, {APO}")
E("v_lshlrev_b32 v147, 9, v4")
E("s_lshl_b32 s70, s61, 11"); E("s_lshl_b32 s69, s62, 4"); E("s_add_u32 s70, s70, s69"); E(f"s_add_u32 s70, s70, {APM}")
E("s_waitcnt lgkmcnt(0)")
E("v_max3_f32 v240, v200, v202, v204"); E("v_max_f32 v240, v240, v206")
for w in range(4):
    E(f"v_sub_f32 v{208+2*w}, v{200+2*w}, v240"); E(f"v_mul_f32 v{208+2*w}, s77, v{208+2*w}")
for w in range(4): E(f"v_exp_f32 v{208+2*w}, v{208+2*w}")
E("s_nop 0")
E("v_mul_f32 v242, v208, v201")
E("v_pk_mul_f32 v[216:217], v[208:209], v[192:193] op_sel_hi:[0,1]")
for w in range(1, 4):
    E(f"v_fmac_f32 v242, v{208+2*w}, v{201+2*w}")
    E(f"v_pk_fma_f32 v[216:217], v[{208+2*w}:{209+2*w}], v[{192+2*w}:{193+2*w}], v[216:217] op_sel_hi:[0,1,1]")
E("v_mov_b32 v241, s97"); E("v_mov_b32 v243, s97")
E("v_mov_b32 v218, v217"); E("v_mov_b32 v217, s97"); E("v_mov_b32 v219, s97")
E("buffer_store_dwordx4 v[216:219], v146, s[40:43], s68 offen sc1")
E("buffer_store_dwordx4 v[240:243], v147, s[40:43], s70 offen sc1")
stamp(5)
E("s_cmp_lt_u32 s2, 28"); E("s_cbranch_scc1 ROLEC")
E("s_cmp_lt_u32 s2, 36"); E("s_cbranch_scc1 ROLED")
E("s_cmp_lt_u32 s2, 128"); E("s_cbranch_scc1 END")
E("s_sub_u32 s68, s2, 128"); E("s_lshr_b32 s68, s68, 2"); E("s_and_b32 s67, s2, 3")
E("v_lshrrev_b32 v5, 4, v0"); E("v_and_b32 v6, 15, v0")
E("v_lshlrev_b32 v148, 10, v5"); E("v_lshl_add_u32 v148, v6, 4, v148")
E("s_lshl_b32 s69, s68, 17"); E("s_lshl_b32 s70, s67, 8"); E("s_add_u32 s69, s69, s70")
for j in range(8):
    E(f"buffer_load_dwordx4 v[{88+4*j}:{91+4*j}], v148, s[28:31], s69 offen")
    if j < 7: E("s_add_u32 s69, s69, 16384")
E("v_and_b32 v144, 31, v1"); E("v_lshlrev_b32 v149, 4, v144"); E("v_lshlrev_b32 v144, 3, v144")
E("s_lshl_b32 s69, s68, 9"); E(f"s_add_u32 s69, s69, {APM}")
E("v_lshrrev_b32 v145, 7, v0"); E("v_and_b32 v146, 127, v0")
E("v_lshlrev_b32 v147, 14, v145"); E("v_lshl_add_u32 v147, v146, 3, v147")
for q in range(1, 4): E(f"v_add_u32 v{151+q}, {4096*q}, v147")
E("v_mov_b32 v151, v147")
E("s_lshl_b32 s70, s68, 15"); E(f"s_add_u32 s70, s70, {APO}")
ppoll(lambda r: [f"buffer_load_dwordx4 v[{r}:{r+3}], v149, s[40:43], s69 offen sc1"], lambda r: [r+1, r+3], 8, 4,
      fin=lambda r: [f"v_mov_b32 v156, v{r}", f"v_mov_b32 v158, v{r+2}"])
lds_ = []
for s_ in range(16): lds_.append(f"buffer_load_dwordx2 v[{192+2*s_}:{193+2*s_}], v{151 + s_//4}, s[40:43], s70 offen offset:{1024*(s_%4)} sc1")
for l in lds_: E(l)
E("v_mov_b32 v160, v156"); E("v_mov_b32 v161, v158")
E("v_mov_b32 v162, v160"); wave_reduce("v_max_f32", 162)
E("v_sub_f32 v163, v160, v162"); E("v_mul_f32 v163, s77, v163"); E("v_exp_f32 v163, v163"); E("s_nop 0")
E("v_mul_f32 v162, v163, v161"); wave_reduce("v_add_f32", 162)
E("v_mul_f32 v162, 0.5, v162"); E("v_rcp_f32 v164, v162"); E("s_nop 0")
fdiv(165, 163, 162, 164, 166)
E("v_lshrrev_b32 v144, 1, v144"); E(f"ds_write_b32 v144, v165 offset:{QL}"); E("s_waitcnt lgkmcnt(0)")
E("v_lshlrev_b32 v144, 6, v145")
for q in range(4): E(f"ds_read_b128 v[{228+4*q}:{231+4*q}], v144 offset:{QL+16*q}")
E("s_waitcnt vmcnt(0)")
E("v_xor_b32 v250, s97, v193")
for s_ in range(1, 16):
    E(f"v_xor_b32 v251, s97, v{193+2*s_}"); E("v_or_b32 v250, v250, v251")
E("v_cmp_eq_u32 vcc, 0, v250"); E("s_nop 4")
E("s_cmp_eq_u64 vcc, exec"); E("s_cbranch_scc1 BOK")
gather(lds_, [193+2*s_ for s_ in range(16)])
L("BOK")
stamp(6)
E("s_waitcnt lgkmcnt(0)")
E("v_mul_f32 v168, v192, v228")
for s in range(1, 16): E(f"v_fmac_f32 v168, v{192+2*s}, v{228+s}")
E("v_lshlrev_b32 v144, 2, v0"); E(f"ds_write_b32 v144, v168 offset:{XN}")
bar()
E("v_lshlrev_b32 v144, 2, v5")
for j in range(8):
    E(f"ds_read_b32 v{176+2*j}, v144 offset:{XN+64*j}"); E(f"ds_read_b32 v{177+2*j}, v144 offset:{XN+512+64*j}")
for k in range(8): E(f"v_mov_b32 v{160+k}, 0")
E("s_waitcnt lgkmcnt(0)")
for j in range(8):
    E(f"v_add_f32 v{176+2*j}, v{176+2*j}, v{177+2*j}"); rbf(176+2*j)
for j in range(8):
    unpack8(168, 88+4*j)
    pkfma8(160, 176+2*j, 168)
E("v_lshlrev_b32 v144, 9, v5"); E("v_lshl_add_u32 v144, v6, 5, v144")
E(f"ds_write_b128 v144, v[160:163] offset:{SC}"); E(f"ds_write_b128 v144, v[164:167] offset:{SC+16}")
bar()
E("s_cmp_ge_u32 s60, 2"); E("s_cbranch_scc1 END")
E("v_lshlrev_b32 v144, 2, v0")
for r in range(16): E(f"ds_read_b32 v{176+r}, v144 offset:{SC+512*r}")
E("s_lshl_b32 s69, s68, 12"); E("s_lshl_b32 s70, s67, 10"); E("s_add_u32 s69, s69, s70"); E(f"s_add_u32 s69, s69, {OP}")
E("v_lshlrev_b32 v144, 3, v0")
E("s_waitcnt lgkmcnt(0)")
for r in range(1, 16): E(f"v_add_f32 v176, v176, v{176+r}")
E("v_mov_b32 v177, s97")
E("buffer_store_dwordx2 v[176:177], v144, s[40:43], s69 offen sc1")
stamp(7)
E("s_branch END")
L("ROLEC")
E("s_mov_b32 s69, 57344"); E("v_mul_lo_u32 v148, v5, s69"); E("v_lshl_add_u32 v148, v6, 4, v148")
E("s_lshl_b32 s69, s2, 7")
for i in range(16):
    E(f"buffer_load_dwordx4 v[{8+4*i}:{11+4*i}], v148, s[32:35], s69 offen")
    if i < 15: E("s_add_u32 s69, s69, 3584")
E("v_lshlrev_b32 v148, 14, v4"); E("v_lshl_add_u32 v148, v1, 4, v148")
E("s_lshl_b32 s69, s2, 16")
for i in range(16):
    E(f"buffer_load_dwordx4 v[{72+4*i}:{75+4*i}], v148, s[36:39], s69 offen offset:{1024*(i%4)}")
    if i % 4 == 3 and i < 15: E("s_add_u32 s69, s69, 4096")
E("v_lshlrev_b32 v148, 1, v1"); E("s_lshl_b32 s69, s2, 7")
E("buffer_load_ushort v140, v148, s[48:51], s69 offen")
E("v_lshlrev_b32 v148, 2, v0")
E("buffer_load_dword v142, v148, s[12:15], 0 offen")
E("v_lshlrev_b32 v145, 4, v0")
E("v_lshlrev_b32 v149, 9, v0"); E(f"s_mov_b32 s69, {OP}")
ppoll(lambda r: [f"buffer_load_dwordx2 v[{r}:{r+1}], v149, s[40:43], s69 offen sc1"], lambda r: [r+1], 232, 2)
E("s_barrier")
stamp(9)
lab[0] += 1; gn = lab[0]
E("s_mov_b32 s71, 0")
L(f"GL{gn}")
E("v_mov_b32 v146, 0"); E("v_mov_b32 v147, 0"); E("v_mov_b32 v250, 0")
E(f"s_mov_b32 s69, {OP}")
NR = 20
for r in range(NR):
    E(f"buffer_load_dwordx4 v[{160+4*r}:{163+4*r}], v145, s[40:43], s69 offen sc1"); E("s_add_u32 s69, s69, 4096")
for r in range(32):
    x = 160 + 4*(r % NR)
    E(f"s_waitcnt vmcnt({min(NR-1, 31-r)})")
    E(f"v_xor_b32 v251, s97, v{x+1}"); E(f"v_xor_b32 v252, s97, v{x+3}"); E("v_or3_b32 v250, v250, v251, v252")
    E(f"v_add_f32 v146, v146, v{x}"); E(f"v_add_f32 v147, v147, v{x+2}")
    if r + NR < 32:
        E(f"buffer_load_dwordx4 v[{x}:{x+3}], v145, s[40:43], s69 offen sc1"); E("s_add_u32 s69, s69, 4096")
E("v_cmp_eq_u32 vcc, 0, v250"); E("s_nop 4")
E("s_cmp_eq_u64 vcc, exec"); E(f"s_cbranch_scc1 GD{gn}")
E("s_add_u32 s71, s71, 1"); E("s_cmp_lt_u32 s71, 0x20000"); E(f"s_cbranch_scc1 GL{gn}")
L(f"GD{gn}")
stamp(10)
E("v_mov_b32 v192, v146"); E("v_mov_b32 v193, v147")
E("v_lshlrev_b32 v144, 3, v0")
rbf(192); rbf(193)
E("v_lshlrev_b32 v146, 16, v142"); E("v_and_b32 v147, 0xffff0000, v142")
E("v_add_f32 v192, v192, v146"); E("v_add_f32 v193, v193, v147"); rbf(192); rbf(193)
E(f"ds_write_b64 v144, v[192:193] offset:{XN}")
bar()
E("v_lshlrev_b32 v144, 5, v1")
E(f"ds_read_b128 v[160:163], v144 offset:{XN}"); E(f"ds_read_b128 v[164:167], v144 offset:{XN+16}")
E("s_waitcnt lgkmcnt(0)")
t = 170
E(f"v_add_f32 v{t}, v160, v161")
for i in range(2, 8): E(f"v_add_f32 v{t}, v{t}, v{160+i}")
wave_reduce("v_add_f32", t)
E(f"v_mul_f32 v{t}, {INV512}, v{t}"); E(f"v_mov_b32 v{t+1}, 0")
for i in range(8):
    E(f"v_sub_f32 v{t+2}, v{160+i}, v{t}"); E(f"v_fmac_f32 v{t+1}, v{t+2}, v{t+2}")
wave_reduce("v_add_f32", t+1)
E(f"v_mul_f32 v{t+1}, {INV512}, v{t+1}")
rbf(t); rbf(t+1); E(f"v_add_f32 v{t+1}, {EPS}, v{t+1}"); rbf(t+1)
E(f"v_sqrt_f32 v{t+1}, v{t+1}"); E("s_nop 0"); rbf(t+1); E(f"v_rcp_f32 v{t+2}, v{t+1}"); E("s_nop 0")
for i in range(8):
    E(f"v_sub_f32 v{t+3}, v{160+i}, v{t}"); rbf(t+3); fdiv(160+i, t+3, t+1, t+2, t+4); rbf(160+i)
E(f"ds_write_b128 v144, v[160:163] offset:{SCO}"); E(f"ds_write_b128 v144, v[164:167] offset:{SCO+16}")
E("s_waitcnt lgkmcnt(0)")
E("v_lshlrev_b32 v144, 6, v5")
for q in range(4): E(f"ds_read_b128 v[{192+4*q}:{195+4*q}], v144 offset:{SCO+16*q}")
for k in range(8): E(f"v_mov_b32 v{160+k}, 0")
E("s_waitcnt lgkmcnt(0)")
for i in range(16):
    unpack8(168, 8+4*i)
    pkfma8(160, 192+i, 168)
E("v_lshlrev_b32 v144, 8, v5"); E("v_lshl_add_u32 v144, v6, 5, v144")
E(f"ds_write_b128 v144, v[160:163] offset:{SC}"); E(f"ds_write_b128 v144, v[164:167] offset:{SC+16}")
bar()
E("v_lshlrev_b32 v144, 2, v1")
for r in range(32): E(f"ds_read_b32 v{192+r}, v144 offset:{SC+256*r}")
E("s_lshl_b32 s63, s60, 4")
for k in range(8): E(f"v_mov_b32 v{160+k}, 0")
E("s_waitcnt lgkmcnt(0)")
for r in range(1, 32): E(f"v_add_f32 v192, v192, v{192+r}")
E("v_mov_b32 v176, v192")
rbf(176); E("v_lshlrev_b32 v140, 16, v140"); E("v_add_f32 v176, v176, v140"); rbf(176)
E("v_mul_f32 v177, v176, v176"); E("v_mul_f32 v177, v177, v176"); E("s_mov_b32 s69, 0x3d372713"); E("v_fma_f32 v177, v177, s69, v176")
E("v_mul_f32 v177, 0x40135761, v177"); E("v_exp_f32 v177, v177"); E("s_nop 0"); E("v_add_f32 v177, 1.0, v177")
E("v_rcp_f32 v177, v177"); E("s_nop 0"); E("v_fma_f32 v177, v177, -2.0, 1.0"); E("v_add_f32 v177, 1.0, v177")
E("v_mul_f32 v177, v177, v176"); E("v_mul_f32 v177, 0.5, v177"); rbf(177)
E("s_nop 1")
for i in range(16):
    E(f"v_readlane_b32 s{64+i}, v177, s63")
    if i < 15: E("s_add_u32 s63, s63, 1")
E("s_nop 1")
for i in range(16):
    unpack8(168, 72+4*i)
    sp_ = 64 + i - (i % 2); sel = "op_sel_hi:[0,1,1]" if i % 2 == 0 else "op_sel:[1,0,0] op_sel_hi:[1,1,1]"
    for k in range(4): E(f"v_pk_fma_f32 v[{160+2*k}:{161+2*k}], s[{sp_}:{sp_+1}], v[{168+2*k}:{169+2*k}], v[{160+2*k}:{161+2*k}] {sel}")
E("v_lshlrev_b32 v144, 11, v4"); E("v_lshl_add_u32 v144, v1, 5, v144")
E(f"ds_write_b128 v144, v[160:163] offset:{SC+8192}"); E(f"ds_write_b128 v144, v[164:167] offset:{SC+8192+16}")
bar()
E("v_lshlrev_b32 v144, 3, v0")
for r in range(4): E(f"ds_read_b64 v[{192+2*r}:{193+2*r}], v144 offset:{SC+8192+2048*r}")
E("s_lshl_b32 s69, s2, 12"); E(f"s_add_u32 s69, s69, {F2}")
E("s_waitcnt lgkmcnt(0)")
for r in range(1, 4): E(f"v_pk_add_f32 v[192:193], v[192:193], v[{192+2*r}:{193+2*r}]")
E("v_mov_b32 v194, v193"); E("v_mov_b32 v193, s97"); E("v_mov_b32 v195, s97")
E("buffer_store_dwordx4 v[192:195], v145, s[40:43], s69 offen sc1")
stamp(11)
E("s_branch END")
L("ROLED")
E("s_sub_u32 s68, s2, 28")
E("v_lshlrev_b32 v148, 1, v1"); E("s_lshl_b32 s69, s68, 7")
E("buffer_load_ushort v141, v148, s[52:55], s69 offen")
E("buffer_load_ushort v140, v148, s[12:15], s69 offen")
E("v_lshlrev_b32 v144, 3, v1"); E("s_lshl_b32 s70, s68, 9")
E("s_lshl_b32 s72, s60, 15"); E("s_add_u32 s72, s72, s70"); E(f"s_add_u32 s72, s72, {OP}")
E("v_add_u32 v145, 4096, v144"); E("v_add_u32 v146, 8192, v144"); E("v_add_u32 v147, 12288, v144")
E("s_add_u32 s73, s72, 16384")
def mk8(r):
    return [f"buffer_load_dwordx2 v[{r+2*k}:{r+2*k+1}], v{144 + k%4}, s[40:43], s{72 + k//4} offen sc1" for k in range(8)]
def fin8(r):
    o = [f"v_add_f32 v150, v{r}, v{r+2}"]
    for k in range(2, 8): o.append(f"v_add_f32 v150, v150, v{r+2*k}")
    return o
ppoll(mk8, lambda r: [r+2*k+1 for k in range(8)], 8, 16, fin=fin8, N=min(PN,6))
stamp(12)
E("s_mul_i32 s72, s60, 28672"); E("s_add_u32 s72, s72, s70"); E(f"s_add_u32 s72, s72, {F2}")
E("s_add_u32 s73, s72, 16384")
def mk7(r):
    return [f"buffer_load_dwordx2 v[{r+2*k}:{r+2*k+1}], v{144 + k%4}, s[40:43], s{72 + k//4} offen sc1" for k in range(7)]
def fin7(r):
    o = [f"v_add_f32 v151, v{r}, v{r+2}"]
    for k in range(2, 7): o.append(f"v_add_f32 v151, v151, v{r+2*k}")
    return o
ppoll(mk7, lambda r: [r+2*k+1 for k in range(7)], 152, 16, fin=fin7, N=min(PN,6))
E("v_lshlrev_b32 v144, 9, v4"); E("v_lshl_add_u32 v144, v1, 3, v144")
E(f"ds_write_b64 v144, v[150:151] offset:{XN}")
bar()
E("s_cmp_lg_u32 s60, 0"); E("s_cbranch_scc1 END")
E("v_lshlrev_b32 v144, 3, v1")
for w in range(4): E(f"ds_read_b64 v[{104+2*w}:{105+2*w}], v144 offset:{XN+512*w}")
E("s_waitcnt lgkmcnt(0)")
for w in range(1, 4): E(f"v_pk_add_f32 v[104:105], v[104:105], v[{104+2*w}:{105+2*w}]")
rbf(104); E("v_lshlrev_b32 v140, 16, v140"); E("v_add_f32 v104, v104, v140"); rbf(104)
rbf(105); E("v_lshlrev_b32 v141, 16, v141"); E("v_add_f32 v105, v105, v141"); rbf(105)
E("v_add_f32 v105, v105, v104"); E("v_cvt_pk_bf16_f32 v105, v105, v105")
E("s_lshl_b32 s69, s68, 7")
E("buffer_store_short v105, v148, s[56:59], s69 offen")
stamp(13)
E("s_branch END")
L("MW")
E(f"v_mov_b32 v144, {CNT}"); E("v_mov_b32 v145, 0"); E("ds_write_b32 v144, v145")
bar()
E("s_cmp_lg_u32 s2, 0"); E("s_cbranch_scc1 NONW")
E("s_memrealtime s[94:95]"); E("s_waitcnt lgkmcnt(0)"); E("s_or_b32 s94, s94, 1")
E("v_mov_b32 v250, 0"); E("v_mov_b32 v251, s94"); E("buffer_store_dword v251, v250, s[44:47], 0 offen sc1")
L("NONW")
E("v_mov_b32 v252, 0")
for i in range(PN):
    E(f"buffer_load_dword v{230+i}, v252, s[44:47], 0 offen sc1")
    if i < PN-1: E(f"s_sleep {PSL}")
E("s_mov_b32 s71, 0")
L("NL")
for i in range(PN):
    E(f"s_waitcnt vmcnt({PN-1})")
    E(f"v_readfirstlane_b32 s97, v{230+i}"); E("s_nop 3")
    E("s_cmp_lg_u32 s97, 0"); E("s_cbranch_scc1 ND")
    E(f"buffer_load_dword v{230+i}, v252, s[44:47], 0 offen sc1")
    E(f"s_sleep {PSL}")
E("s_add_u32 s71, s71, 1"); E("s_cmp_lt_u32 s71, 0x8000"); E("s_cbranch_scc1 NL")
L("ND")
E(f"v_mov_b32 v144, {NON}"); E("v_mov_b32 v145, s97"); E("ds_write_b32 v144, v145")
E("v_lshlrev_b32 v144, 2, v1")
E("s_and_b32 s69, s2, 3"); E("s_lshl_b32 s69, s69, 15"); E("s_lshr_b32 s74, s2, 2"); E("s_lshl_b32 s74, s74, 9"); E("s_add_u32 s69, s69, s74")
E("v_lshlrev_b32 v146, 3, v1"); E("v_lshlrev_b32 v147, 4, v1")
E(f"v_mov_b32 v148, {CNT}"); E("s_mov_b32 s71, 0")
L("CL")
E("ds_read_b32 v149, v148"); E("s_waitcnt lgkmcnt(0)")
E("v_readfirstlane_b32 s72, v149"); E("s_nop 3")
E("s_cmp_eq_u32 s72, 256"); E("s_cbranch_scc1 CD")
E("s_add_u32 s71, s71, 1"); E("s_cmp_lt_u32 s71, 0x100000"); E("s_cbranch_scc1 CL")
L("CD")
for r in range(32): E(f"ds_read_b32 v{160+r}, v144 offset:{SC+256*r}")
E("s_waitcnt lgkmcnt(0)")
for r in range(1, 32): E(f"v_add_f32 v160, v160, v{160+r}")
E("v_mov_b32 v161, s97")
E("buffer_store_dwordx2 v[160:161], v146, s[40:43], s69 offen sc1")
stamp(2, 4)
E("s_lshl_b32 s69, s61, 12")
E("v_and_b32 v148, 3, v1"); E("v_lshlrev_b32 v148, 15, v148"); E("v_bfe_u32 v149, v1, 2, 3"); E("v_lshl_add_u32 v148, v149, 9, v148")
ppoll(lambda r: [f"buffer_load_dwordx2 v[{r}:{r+1}], v148, s[40:43], s69 offen sc1"], lambda r: [r+1], 228, 2)
lds_ = []
for p in range(4):
    lds_.append(f"s_add_u32 s70, s69, {p*32768}")
    for j in range(4):
        r = 160 + 16*p + 4*j
        lds_.append(f"buffer_load_dwordx4 v[{r}:{r+3}], v147, s[40:43], s70 offen offset:{1024*j} sc1")
gather(lds_, [161+2*i for i in range(32)])
stamp(3, 4)
if STAMP:
    E("v_mov_b32 v254, s71"); E("v_add_u32 v254, 1000, v254"); E("s_lshl_b32 s96, s2, 6"); E(f"s_add_u32 s96, s96, {3145728 + 4*15}")
    E("v_mov_b32 v255, 0")
    E("buffer_store_dword v254, v255, s[40:43], s96 offen")
for j in range(4):
    for p in range(1, 4):
        E(f"v_add_f32 v{160+4*j}, v{160+4*j}, v{160+16*p+4*j}"); E(f"v_add_f32 v{162+4*j}, v{162+4*j}, v{162+16*p+4*j}")
    E(f"v_cvt_pk_bf16_f32 v{160+4*j}, v{160+4*j}, v{162+4*j}")
    E(f"ds_write_b32 v144, v{160+4*j} offset:{QL+256*j}")
bar()
L("END"); E("s_endpgm")

hdr = open(f"cdna_kernels/{NAME}.s.ref").read().split("; Override")[0]
res = [hdr.rstrip("\n"), f"; @launch grid=(256,1,1) block=(320,1,1) lds={LDSN}",
       '.amdgcn_target "amdgcn-amd-amdhsa--gfx950"', ".text"] + out
res.append(f""".section .rodata,"a"
.p2align 6
.amdhsa_kernel {n}
  .amdhsa_next_free_vgpr 256
  .amdhsa_next_free_sgpr 102
  .amdhsa_accum_offset 256
  .amdhsa_group_segment_fixed_size 0
  .amdhsa_kernarg_size 104
  .amdhsa_user_sgpr_count 2
  .amdhsa_user_sgpr_kernarg_segment_ptr 1
  .amdhsa_system_sgpr_workgroup_id_x 1
.end_amdhsa_kernel""")
path = sys.argv[1] if len(sys.argv) > 1 else f"cdna_kernels/{NAME}.s"
open(path, "w").write("\n".join(res) + "\n")
```
